```python
import torch

def _softmax(x, axis=-1):
    return torch.softmax(x, dim=axis)
def _gelu(x):
    return torch.nn.functional.gelu(x, approximate="tanh")
def _silu(x):
    return torch.nn.functional.silu(x)
def _sigmoid(x):
    return torch.sigmoid(x)
def _layernorm(x, axis=-1, eps=1e-5):
    m = x.mean(dim=axis, keepdim=True)
    v = x.var(dim=axis, keepdim=True, unbiased=False)
    return (x - m) / torch.sqrt(v + eps)
def _scatter_add(tgt, idx, src, axis=0):
    return tgt.clone().index_add_(axis, idx, src)
def _segment_sum(src, seg, n):
    out = torch.zeros((n,) + src.shape[1:], dtype=src.dtype)
    return out.index_add_(0, seg, src)
def _pad(x, pw):
    flat = tuple(v for pair in reversed(pw) for v in pair)
    return torch.nn.functional.pad(x, flat)

kernel_name = 'recurrent_scan__gqa_block_cached__geglu_ffn__decode'

def setup_inputs():

    _w = (lambda a: (lambda t: t.to(torch.bfloat16) if t.is_floating_point() else t)(torch.as_tensor(a)))
    def _A_setup():
        B, Sq, D = 2, 1, 640
        Hq, Hkv, Sk, Dh = 32, 32, 4096, 192
        assert Hq % Hkv == 0, (Hq, Hkv)
        return {
            "x": _w((lambda *s: torch.randn(*s, dtype=torch.bfloat16) * 0.05)(B, Sq, D)),
            "k_cache": _w((lambda *s: torch.randn(*s, dtype=torch.bfloat16) * 1.6)(B, Hkv, Sk, Dh)),
            "v_cache": _w((lambda *s: torch.randn(*s, dtype=torch.bfloat16) * 0.2)(B, Hkv, Sk, Dh)),
            "wq": _w((lambda *s: torch.randn(*s, dtype=torch.bfloat16) * 1.6)(D, Hq * Dh) * (D ** -0.5)),
            "wo": _w((lambda *s: torch.randn(*s, dtype=torch.bfloat16) * 0.2)(Hq * Dh, D) * ((Hq * Dh) ** -0.5)),
        }
    _A_in = _A_setup()

    def _B_setup():
        B, S, D, F = 2, 1, 640, 1536
        return {
            "x": _w((lambda *s: torch.randn(*s, dtype=torch.bfloat16) * 0.05)(B, S, D)),
            "w_gate": _w((lambda *s: torch.randn(*s, dtype=torch.bfloat16) * 0.1)(D, F)),
            "w_up": _w((lambda *s: torch.randn(*s, dtype=torch.bfloat16) * 0.1)(D, F)),
            "w_down": _w((lambda *s: torch.randn(*s, dtype=torch.bfloat16) * 0.1)(F, D)),
        }
    _B_in = _B_setup()

    return {
        "A_x": _A_in["x"],
        "A_k_cache": _A_in["k_cache"],
        "A_v_cache": _A_in["v_cache"],
        "A_wq": _A_in["wq"],
        "A_wo": _A_in["wo"],
        "B_x": _B_in["x"],
        "B_w_gate": _B_in["w_gate"],
        "B_w_up": _B_in["w_up"],
        "B_w_down": _B_in["w_down"],
    }

def reference(A_x, A_k_cache, A_v_cache, A_wq, A_wo, B_x, B_w_gate, B_w_up, B_w_down):
    def _A_ref(x, k_cache, v_cache, wq, wo):
        B, Sq, D = x.shape
        Hq, Dh = 32, 192
        Hkv = k_cache.shape[1]
        rep = Hq // Hkv
        q = (lambda x, *d: x.permute(*d))((x @ wq).reshape(B, Sq, Hq, Dh), 0, 2, 1, 3)
        k = (lambda x, n, axis: torch.repeat_interleave(x, n, dim=axis))(k_cache, rep, axis=1)
        v = (lambda x, n, axis: torch.repeat_interleave(x, n, dim=axis))(v_cache, rep, axis=1)
        scores = torch.einsum("bhqd,bhkd->bhqk", q, k) * (Dh ** -0.5)
        p = _softmax(scores, axis=-1)
        o = torch.einsum("bhqk,bhkd->bhqd", p, v)
        return (lambda x, *d: x.permute(*d))(o, 0, 2, 1, 3).reshape(B, Sq, Hq * Dh) @ wo

    def _B_ref(x, w_gate, w_up, w_down):
        return (_gelu(x @ w_gate) * (x @ w_up)) @ w_down

    x = A_x
    xn = _layernorm(x, axis=-1)
    s = _A_ref(xn, A_k_cache, A_v_cache, A_wq, A_wo)
    g = _silu(_B_ref(xn, B_w_gate, B_w_up, B_w_down))
    return x + s * g
```

```python
import sys
KN = "recurrent_scan__gqa_block_cached__geglu_ffn__decode_kernel"
HEADER = open("recurrent_scan__gqa_block_cached__geglu_ffn__decode.s.ref").read().split("; Override launch")[0] if False else None

HDR = """; Kernarg layout for this problem (96 bytes, ptrs only, base s[0:1]):
"""

WS_Q = 0x00000
WS_O = 0x40000
WS_Y = 0x80000
WS_G = 0x100000
WS_E = 0x3F000
TAGM = 0x3ff
WS_STAMP = 0x200000
L_X = 0
L_Q = 512
L_ST = 960
L_YP = 1024
L_ACC = 5120
LDS_BYTES = 5120 + 12288 + 2048

LOG2E = 0x3FB8AA3B
SCALE = 0x3D93CD3A


class G:
    def __init__(self, stamps=False, pol="nt", sleep=2):
        self.L = []
        self.stamps = stamps
        self.pol = (" " + pol) if pol else ""
        self.sleep = sleep
        self.nlab = 0

    def A(self, s):
        for x in s.split("\n"):
            x = x.strip()
            if x:
                self.L.append("    " + x if not x.endswith(":") else x)

    def lab(self, p="L"):
        self.nlab += 1
        return f"{p}_{self.nlab}"

    def stamp(self, idx):
        if not self.stamps:
            return
        self.A(f"""s_memrealtime s[60:61]
        s_waitcnt lgkmcnt(0)
        v_writelane_b32 v168, s60, {idx}""")

    def stamp_flush(self):
        if not self.stamps:
            return
        self.A(f"""s_mov_b64 exec, 0xffff
        s_mul_i32 s47, s2, 5
        s_add_u32 s47, s47, s79
        s_lshl_b32 s47, s47, 6
        s_add_u32 s47, s47, {WS_STAMP}
        v_lshl_add_u32 v169, v1, 2, s47
        global_store_dword v169, v168, s[26:27]
        s_mov_b64 exec, -1""")

    def spin(self, back, out):
        self.A(f"""s_sleep {self.sleep}
        s_sub_u32 s58, s58, 1
        s_cmp_gt_i32 s58, 0
        s_cbranch_scc1 {back}
        s_branch {out}""")

    def allred_16_32(self, op, v, t):
        self.A(f"""v_mov_b32 v{t}, v{v}
        s_nop 1
        v_permlane16_swap_b32 v{v}, v{t}
        s_nop 1
        {op} v{v}, v{v}, v{t}
        v_mov_b32 v{t}, v{v}
        s_nop 1
        v_permlane32_swap_b32 v{v}, v{t}
        s_nop 1
        {op} v{v}, v{v}, v{t}""")

    def dpp(self, op, d, a, b, ctl, bank="0xf"):
        self.A(f"{op}_dpp v{d}, v{a}, v{b} {ctl} row_mask:0xf bank_mask:{bank}")

    def tagcheck(self, regs, t):
        for r in regs:
            self.A(f"v_xor_b32 v{r}, s80, v{r}")
        self.A(f"v_or_b32 v{t}, v{regs[0]}, v{regs[1]}")
        for j in range(2, len(regs), 2):
            self.A(f"v_or3_b32 v{t}, v{t}, v{regs[j]}, v{regs[j+1]}")
        self.A(f"v_and_b32 v{t}, {TAGM}, v{t}\nv_cmp_ne_u32 vcc, 0, v{t}")

    def tagput(self, regs, tg, rnd=True):
        if rnd:
            for r in regs:
                self.A(f"v_add_u32 v{r}, {(TAGM+1)//2}, v{r}")
        for r in regs:
            self.A(f"v_and_or_b32 v{r}, v{r}, s81, v{tg}")

    def rbf(self, v):
        self.A(f"""v_cvt_pk_bf16_f32 v{v}, v{v}, v{v}
        v_and_b32 v{v}, 0xffff0000, v{v}""")


def gen(stamps=0, pol="nt", sleep=2, b1=0, prio=3):
    g = G(stamps, pol, sleep)
    A = g.A
    P = g.pol
    M = 4
    A(f"""s_cmp_ge_u32 s2, 256
    s_cbranch_scc1 L_end
    s_load_dwordx16 s[4:19], s[0:1], 0
    s_load_dwordx8 s[20:27], s[0:1], 64
    v_lshrrev_b32 v2, 6, v0
    v_and_b32 v1, 63, v0
    v_readfirstlane_b32 s3, v2""")
    if stamps:
        A("v_mov_b32 v168, 0")
        A("s_memrealtime s[60:61]")
    A(f"""v_and_b32 v2, 1, v1
    v_lshlrev_b32 v2, 4, v2
    v_mov_b32 v3, 0xffff
    v_lshlrev_b32 v2, v2, v3
    v_bfe_u32 v3, v1, 1, 2
    v_cmp_eq_u32 s[50:51], 0, v3
    v_cmp_eq_u32 s[52:53], 1, v3
    v_cmp_eq_u32 s[54:55], 2, v3
    v_cmp_eq_u32 s[56:57], 3, v3
    s_lshr_b32 s66, s2, 3
    s_and_b32 s47, s2, 7
    v_cndmask_b32 v{M}, 0, v2, s[50:51]
    v_cndmask_b32 v{M+1}, 0, v2, s[52:53]
    v_cndmask_b32 v{M+2}, 0, v2, s[54:55]
    v_cndmask_b32 v{M+3}, 0, v2, s[56:57]
    s_bcnt1_i32_b32 s67, s47
    s_and_b32 s67, s67, 1
    s_lshr_b32 s48, s47, 1
    s_mov_b32 s46, {LOG2E}
    s_mov_b32 s58, 400000
    s_mul_i32 s69, s2, 205
    s_lshr_b32 s69, s69, 10
    s_mul_i32 s70, s69, 5
    s_sub_u32 s70, s2, s70
    s_mov_b32 s79, s3
    s_cmp_eq_u32 s3, 0
    s_cbranch_scc1 L_aux
    s_sub_u32 s3, s3, 1""")
    Q = 8; ACC = 20; A0 = 32; A1 = 36
    SA, SB, T, MM, MC, LL, PA, PB = 40, 41, 42, 43, 44, 45, 46, 47
    KA, VA, KB, VB = 48, 72, 96, 120
    A(f"""s_lshl_b32 s42, s48, 2
    s_add_u32 s42, s42, s3
    s_lshl_b32 s40, s67, 5
    s_add_u32 s40, s40, s66
    s_mul_i32 s40, s40, 1572864
    s_mov_b32 s41, 0
    v_lshrrev_b32 v2, 3, v1
    v_mul_u32_u24 v2, 384, v2
    v_and_b32 v3, 7, v1
    v_lshl_add_u32 v2, v3, 4, v2
    s_waitcnt lgkmcnt(0)""")
    if stamps:
        A("v_writelane_b32 v168, s60, 0")
    A(f"""s_mov_b32 s28, s6
    s_mov_b32 s29, s7
    s_mov_b32 s30, 100663296
    s_mov_b32 s31, 0x20000
    s_mov_b32 s32, s8
    s_mov_b32 s33, s9
    s_mov_b32 s34, 100663296
    s_mov_b32 s35, 0x20000""")
    if b1: A("s_barrier")

    def next_unit(sreg):
        A(f"""s_add_u32 s47, s41, s42
        s_mul_i32 s47, s47, 6144
        s_add_u32 s{sreg}, s40, s47
        s_add_u32 s41, s41, 16
        s_add_u32 s42, s42, 4
        s_and_b32 s42, s42, 15""")

    OFFS = [0, 128, 256, 3072, 3200, 3328]

    def loads6(base, srd, sreg):
        for j, o in enumerate(OFFS):
            A(f"buffer_load_dwordx4 v[{base+4*j}:{base+4*j+3}], v2, s[{srd}:{srd+3}], s{sreg} offen offset:{o}{P}")

    next_unit(43); loads6(KA, 28, 43); loads6(VA, 32, 43)
    next_unit(44); loads6(KB, 28, 44); loads6(VB, 32, 44)
    g.stamp(1)
    A(f"""s_load_dword s80, s[26:27], {WS_E}
    s_mov_b32 s36, s12
    s_mov_b32 s37, s13
    s_mov_b32 s38, 7864320
    s_mov_b32 s39, 0x20000
    s_lshl_b32 s71, s69, 2
    s_add_u32 s71, s71, s3
    s_mul_i32 s72, s71, 40960
    s_lshl_b32 s47, s70, 8
    s_add_u32 s72, s72, s47
    v_lshrrev_b32 v3, 4, v1
    v_mul_u32_u24 v3, 10240, v3
    v_and_b32 v{T}, 15, v1
    v_lshl_add_u32 v3, v{T}, 4, v3
    s_cmp_ge_u32 s2, 240
    s_cselect_b32 s47, 0x40000000, 0
    s_cselect_b32 s72, 0, s72
    v_add_u32 v3, s47, v3""")
    for r in range(12):
        A(f"v_mov_b32 v{ACC+r}, 0")
    A(f"""v_mov_b32 v{MM}, 0xff800000
    v_mov_b32 v{MC}, 0xff800000
    v_mov_b32 v{LL}, 0
    v_and_b32 v{T}, 7, v1
    v_lshlrev_b32 v{T}, 4, v{T}
    s_barrier
    ds_read_b128 v[{Q}:{Q+3}], v{T} offset:{L_Q}
    ds_read_b128 v[{Q+4}:{Q+7}], v{T} offset:{L_Q+128}
    ds_read_b128 v[{Q+8}:{Q+11}], v{T} offset:{L_Q+256}
    s_mov_b32 s45, 7
    s_waitcnt lgkmcnt(0)""")
    g.stamp(2)

    def wo_load(j):
        dst = KA + 4 * j
        o = j * 1280
        if o < 4096:
            A(f"buffer_load_dwordx4 v[{dst}:{dst+3}], v3, s[36:39], s72 offen offset:{o}{P}")
        else:
            A(f"buffer_load_dwordx4 v[{dst}:{dst+3}], v3, s[36:39], s73 offen offset:{o-5120}{P}")

    def unit(K, V, sreg, mode):
        w = {'loop': (21, 18, 21, 18), 'finA': (21, 18, 21, 18), 'finB': (17, 14, 11, 8)}[mode]
        A(f"""v_mov_b32 v{SA}, 0
        v_mov_b32 v{SB}, 0
        s_waitcnt vmcnt({w[0]})""")
        for r in range(12):
            A(f"v_dot2c_f32_bf16 v{SA}, v{K+r}, v{Q+r}")
        A(f"s_waitcnt vmcnt({w[1]})")
        for r in range(12):
            A(f"v_dot2c_f32_bf16 v{SB}, v{K+12+r}, v{Q+r}")
        if mode == 'loop':
            next_unit(sreg); loads6(K, 28, sreg)
        elif mode == 'finA':
            A("s_add_u32 s73, s72, 5120")
            for j in range(6): wo_load(j)
        else:
            A("s_nop 2")
        for ctl in ["quad_perm:[1,0,3,2]", "quad_perm:[2,3,0,1]", "row_half_mirror"]:
            g.dpp("v_add_f32", SA, SA, SA, ctl)
            g.dpp("v_add_f32", SB, SB, SB, ctl)
            A("s_nop 0")
        skip = g.lab("L_skip")
        A(f"""v_cvt_pk_bf16_f32 v{T}, v{SA}, v{SB}
        v_lshlrev_b32 v{SA}, 16, v{T}
        v_and_b32 v{SB}, 0xffff0000, v{T}
        v_mul_f32 v{SA}, {SCALE}, v{SA}
        v_mul_f32 v{SB}, {SCALE}, v{SB}
        v_cvt_pk_bf16_f32 v{T}, v{SA}, v{SB}
        v_lshlrev_b32 v{SA}, 16, v{T}
        v_and_b32 v{SB}, 0xffff0000, v{T}
        v_max_f32 v{T}, v{SA}, v{SB}
        v_cmp_gt_f32 vcc, v{T}, v{MM}
        s_cbranch_vccz {skip}""")
        g.dpp("v_max_f32", T, T, T, "row_ror:8")
        g.allred_16_32("v_max_f32", T, PA)
        A(f"""v_max_f32 v{MM}, v{MM}, v{T}
        v_mul_f32 v{PA}, s46, v{MM}
        v_sub_f32 v{PB}, v{MC}, v{PA}
        v_exp_f32 v{PB}, v{PB}
        v_mov_b32 v{MC}, v{PA}
        v_mul_f32 v{LL}, v{LL}, v{PB}""")
        for r in range(12):
            A(f"v_mul_f32 v{ACC+r}, v{ACC+r}, v{PB}")
        A(f"""{skip}:
        v_fma_f32 v{PA}, v{SA}, s46, -v{MC}
        v_fma_f32 v{PB}, v{SB}, s46, -v{MC}
        v_exp_f32 v{PA}, v{PA}
        v_exp_f32 v{PB}, v{PB}
        s_nop 0
        v_add_f32 v{LL}, v{LL}, v{PA}
        v_cvt_pk_bf16_f32 v{PA}, v{PA}, v{PA}
        v_add_f32 v{LL}, v{LL}, v{PB}
        v_cvt_pk_bf16_f32 v{PB}, v{PB}, v{PB}""")
        for r in range(4):
            A(f"v_and_b32 v{A0+r}, v{PA}, v{M+r}")
        for r in range(4):
            A(f"v_and_b32 v{A1+r}, v{PB}, v{M+r}")
        A(f"s_waitcnt vmcnt({w[2]})")
        for t in range(3):
            A(f"v_mfma_f32_16x16x32_bf16 v[{ACC+4*t}:{ACC+4*t+3}], v[{A0}:{A0+3}], v[{V+4*t}:{V+4*t+3}], v[{ACC+4*t}:{ACC+4*t+3}]")
        A(f"s_waitcnt vmcnt({w[3]})")
        for t in range(3):
            A(f"v_mfma_f32_16x16x32_bf16 v[{ACC+4*t}:{ACC+4*t+3}], v[{A1}:{A1+3}], v[{V+12+4*t}:{V+12+4*t+3}], v[{ACC+4*t}:{ACC+4*t+3}]")
        if mode == 'loop':
            loads6(V, 32, sreg)
        elif mode == 'finA':
            wo_load(6); wo_load(7)

    A("L_loop:")
    unit(KA, VA, 43, 'loop')
    unit(KB, VB, 44, 'loop')
    A("""s_sub_u32 s45, s45, 1
    s_cmp_lg_u32 s45, 0
    s_cbranch_scc1 L_loop""")
    g.stamp(3)
    unit(KA, VA, 43, 'finA')
    unit(KB, VB, 44, 'finB')
    g.stamp(4)
    g.dpp("v_add_f32", LL, LL, LL, "row_ror:8")
    g.allred_16_32("v_add_f32", LL, T)
    A(f"""s_mul_i32 s47, s3, 3072
    v_lshl_add_u32 v{T}, v1, 4, s47
    s_lshl_b32 s47, s3, 3
    v_mov_b32 v{PA}, s47
    ds_write_b128 v{T}, v[{ACC}:{ACC+3}] offset:{L_ACC}
    ds_write_b128 v{T}, v[{ACC+4}:{ACC+7}] offset:{L_ACC+1024}
    ds_write_b128 v{T}, v[{ACC+8}:{ACC+11}] offset:{L_ACC+2048}
    ds_write_b64 v{PA}, v[{MC}:{LL}] offset:{L_ST}""")
    assert LL == MC + 1 and MC % 2 == 0
    OA, OS, BP0, BP1 = 80, 81, 82, 83
    O0, S0 = 84, 88
    TG = 92
    XR = 96
    A(f"""s_mul_i32 s47, s71, 171
    s_lshr_b32 s47, s47, 10
    s_mul_i32 s48, s47, 6
    s_sub_u32 s48, s71, s48
    s_lshl_b32 s47, s47, 13
    s_add_u32 s47, s47, {WS_O}
    v_and_b32 v{OS}, 7, v1
    v_lshl_add_u32 v{OS}, v{OS}, 10, s47
    v_lshrrev_b32 v{OA}, 3, v1
    s_lshl_b32 s48, s48, 7
    v_lshl_add_u32 v{OA}, v{OA}, 4, s48
    v_add_u32 v{OA}, v{OA}, v{OS}
    v_lshrrev_b32 v{BP0}, 4, v1
    v_lshlrev_b32 v{BP0}, 6, v{BP0}
    v_and_b32 v{BP1}, 8, v1
    v_lshl_add_u32 v{BP0}, v{BP1}, 1, v{BP0}
    v_add_u32 v{BP1}, 32, v{BP0}
    s_add_u32 s80, s80, 1
    s_and_b32 s80, s80, {TAGM}
    s_waitcnt lgkmcnt(0)
    s_barrier
    s_cmp_ge_u32 s2, 240
    s_cbranch_scc1 L_sdone
    L_pollO:
    global_load_dwordx4 v[{O0}:{O0+3}], v{OA}, s[26:27] sc1
    global_load_dwordx4 v[{S0}:{S0+3}], v{OS}, s[26:27] offset:768 sc1
    s_waitcnt vmcnt(0)""")
    g.tagcheck(list(range(O0, O0 + 8)), T)
    A("s_cbranch_vccz L_gotO")
    g.spin("L_pollO", "L_gotO")
    A("L_gotO:")
    g.stamp(5)
    A(f"v_mov_b32 v{T}, v{S0}\ns_nop 1")
    g.dpp("v_max_f32", T, T, T, "quad_perm:[1,0,3,2]")
    A("s_nop 1")
    g.dpp("v_max_f32", T, T, T, "quad_perm:[2,3,0,1]")
    A(f"""v_sub_f32 v{T}, v{S0}, v{T}
    v_exp_f32 v{T}, v{T}
    s_nop 0
    v_mul_f32 v{S0+1}, v{S0+1}, v{T}""")
    for e in range(4):
        A(f"v_mul_f32 v{O0+e}, v{O0+e}, v{T}")
    for ctl in ["quad_perm:[1,0,3,2]", "quad_perm:[2,3,0,1]"]:
        g.dpp("v_add_f32", S0 + 1, S0 + 1, S0 + 1, ctl)
        for e in range(4):
            g.dpp("v_add_f32", O0 + e, O0 + e, O0 + e, ctl)
    A(f"""v_rcp_f32 v{T}, v{S0+1}
    s_nop 0""")
    for e in range(4):
        A(f"v_mul_f32 v{O0+e}, v{O0+e}, v{T}")
    for e in range(4):
        A(f"v_cvt_pk_bf16_f32 v{O0+e}, v{O0+e}, v{O0+e}")
    for rq in range(8):
        A(f"ds_bpermute_b32 v{XR+rq}, v{BP0 if rq < 4 else BP1}, v{O0+(rq&3)}")
    D = ACC
    for rq in range(8):
        A(f"s_waitcnt lgkmcnt({7-rq})")
        Ar = A0 if rq % 2 == 0 else A1
        for r in range(4):
            A(f"v_and_b32 v{Ar+r}, v{XR+rq}, v{M+r}")
        A("s_nop 1")
        c = "0" if rq == 0 else f"v[{D}:{D+3}]"
        A(f"v_mfma_f32_16x16x32_bf16 v[{D}:{D+3}], v[{Ar}:{Ar+3}], v[{KA+4*rq}:{KA+4*rq+3}], {c}")
    A(f"""s_lshl_b32 s47, s3, 10
    v_lshl_add_u32 v{T}, v1, 4, s47
    s_nop 7
    ds_write_b128 v{T}, v[{D}:{D+3}] offset:{L_YP}
    s_waitcnt lgkmcnt(0)
    s_barrier
    L_sdone:""")
    g.stamp(6)
    g.stamp_flush()
    A("s_endpgm")

    XP = 8; AX0 = 24; AX1 = 28; W = 32; DD = 160; T0, T1, T2, T3 = 164, 165, 166, 167
    TGV = 22
    A(f"""L_aux:
    s_setprio {prio}
    s_mov_b32 s81, {(~TAGM) & 0xffffffff}
    s_mov_b32 s64, 0x01000100
    s_mov_b32 s65, 0x03020302
    v_lshrrev_b32 v{T0}, 4, v1
    v_and_b32 v{T1}, 7, v1
    v_bfe_u32 v{T2}, v1, 3, 1
    v_mul_u32_u24 v{T2}, 1280, v{T2}
    v_lshl_add_u32 v{T3}, v{T0}, 3, v{T1}
    v_lshl_add_u32 v{DD}, v{T3}, 4, v{T2}
    v_lshl_add_u32 v{DD+1}, v{T3}, 3, v{T2}
    s_lshl_b32 s47, s70, 8
    v_add_u32 v{DD+1}, s47, v{DD+1}
    v_mov_b32 v{XP+8}, 0
    v_mov_b32 v{XP+9}, 0
    v_mov_b32 v{XP+10}, 0
    v_mov_b32 v{XP+11}, 0""")
    A(f"""v_mul_u32_u24 v2, 393216, v{T0}
    v_and_b32 v{T1}, 15, v1
    v_lshl_add_u32 v2, v{T1}, 4, v2
    s_mul_i32 s47, s70, 1572864
    s_lshl_b32 s48, s69, 8
    s_add_u32 s47, s47, s48
    v_add_u32 v2, s47, v2
    v_mov_b32 v3, 0
    s_mov_b32 s62, 12288
    s_mov_b32 s63, 0
    s_waitcnt lgkmcnt(0)""")
    if stamps:
        A("v_writelane_b32 v168, s60, 0")
    A(f"""global_load_dwordx4 v[{XP}:{XP+3}], v{DD}, s[4:5]
    global_load_dwordx4 v[{XP+4}:{XP+7}], v{DD}, s[4:5] offset:512
    global_load_dwordx2 v[{XP+12}:{XP+13}], v{DD+1}, s[4:5]
    s_bfm_b64 exec, 32, 0
    global_load_dwordx4 v[{XP+8}:{XP+11}], v{DD}, s[4:5] offset:1024
    s_mov_b64 exec, -1
    v_lshl_add_u64 v[2:3], v[2:3], 0, s[10:11]
    s_cmp_ge_u32 s2, 240
    s_cbranch_scc1 L_noq1""")

    def tile_issue():
        for i in range(32):
            A(f"global_load_dwordx4 v[{W+4*i}:{W+4*i+3}], v[2:3], off{P}")
            if i < 31:
                A("v_lshl_add_u64 v[2:3], v[2:3], 0, s[62:63]")

    tile_issue()
    A("L_noq1:")
    if b1: A("s_barrier")
    A(f"""s_load_dword s80, s[26:27], {WS_E}
    s_lshl_b32 s68, s66, 3
    s_lshl_b32 s47, s67, 2
    s_add_u32 s68, s68, s47
    s_and_b32 s47, s2, 7
    s_lshr_b32 s47, s47, 1
    s_add_u32 s68, s68, s47
    s_lshl_b32 s68, s68, 10
    s_add_u32 s68, s68, {WS_O}
    s_lshl_b32 s47, s2, 10
    s_add_u32 s74, s47, {WS_Y}
    s_add_u32 s75, s47, {WS_G}
    s_add_u32 s48, s47, {WS_Y + 120*1024}
    s_cmp_lt_u32 s2, 120
    s_cselect_b32 s75, s75, s48
    s_waitcnt lgkmcnt(0)
    s_add_u32 s82, s80, 1
    s_and_b32 s80, s82, {TAGM}
    s_cmp_ge_u32 s2, 240
    s_cbranch_scc1 L_qflag""")
    g.stamp(1)
    SUM, VAR, MEAN = T0, T1, T2
    A(f"""s_mov_b32 s47, 0x3f803f80
    v_mov_b32 v{SUM}, 0
    s_waitcnt vmcnt(32)""")
    for r in range(12):
        A(f"v_dot2c_f32_bf16 v{SUM}, s47, v{XP+r}")
    A("s_nop 2")

    def allred_stats(v, t):
        for ctl in ["quad_perm:[1,0,3,2]", "quad_perm:[2,3,0,1]", "row_half_mirror"]:
            g.dpp("v_add_f32", v, v, v, ctl)
            A("s_nop 1")
        g.allred_16_32("v_add_f32", v, t)

    allred_stats(SUM, T3)
    A(f"""v_mul_f32 v{MEAN}, 0x3acccccd, v{SUM}
    v_mov_b32 v{VAR}, 0""")
    for r in range(12):
        if r == 8:
            A("s_bfm_b64 exec, 32, 0")
        A(f"""v_lshlrev_b32 v{AX1}, 16, v{XP+r}
        v_and_b32 v{AX1+1}, 0xffff0000, v{XP+r}
        v_sub_f32 v{AX1}, v{AX1}, v{MEAN}
        v_sub_f32 v{AX1+1}, v{AX1+1}, v{MEAN}
        v_fmac_f32 v{VAR}, v{AX1}, v{AX1}
        v_fmac_f32 v{VAR}, v{AX1+1}, v{AX1+1}""")
    A("s_mov_b64 exec, -1\ns_nop 1")
    allred_stats(VAR, T3)
    A(f"v_mul_f32 v{VAR}, 0x3acccccd, v{VAR}")
    g.rbf(VAR)
    g.rbf(MEAN)
    A(f"v_add_f32 v{VAR}, 0x3727c5ac, v{VAR}")
    g.rbf(VAR)
    A(f"v_sqrt_f32 v{VAR}, v{VAR}\ns_nop 0")
    g.rbf(VAR)
    A(f"v_rcp_f32 v{VAR}, v{VAR}")
    for k in range(2):
        r = XP + 12 + k
        A(f"""v_lshlrev_b32 v{AX1}, 16, v{r}
        v_and_b32 v{AX1+1}, 0xffff0000, v{r}
        v_sub_f32 v{AX1}, v{AX1}, v{MEAN}
        v_sub_f32 v{AX1+1}, v{AX1+1}, v{MEAN}
        v_cvt_pk_bf16_f32 v{r}, v{AX1}, v{AX1+1}
        v_lshlrev_b32 v{AX1}, 16, v{r}
        v_and_b32 v{AX1+1}, 0xffff0000, v{r}
        v_mul_f32 v{AX1}, v{AX1}, v{VAR}
        v_mul_f32 v{AX1+1}, v{AX1+1}, v{VAR}
        v_cvt_pk_bf16_f32 v{r}, v{AX1}, v{AX1+1}""")

    def xbuf_roundtrip(src):
        A(f"""v_lshrrev_b32 v{T0}, 4, v1
        v_lshlrev_b32 v{T0}, 6, v{T0}
        v_and_b32 v{T1}, 8, v1
        v_lshl_add_u32 v{T0}, v{T1}, 5, v{T0}""")
        src()
        A("s_waitcnt lgkmcnt(0)")
        for j in range(4):
            A(f"ds_read_b128 v[{XP+4*j}:{XP+4*j+3}], v{T0} offset:{L_X+16*j}")
        A("s_waitcnt lgkmcnt(0)")

    def wr_x():
        A(f"""v_and_b32 v{T1}, 7, v1
        v_lshl_add_u32 v{T1}, v{T1}, 3, v{T0}
        ds_write_b64 v{T1}, v[{XP+12}:{XP+13}] offset:{L_X}""")

    xbuf_roundtrip(wr_x)

    def tile_compute(younger):
        for i in range(32):
            Ar = AX0 if i % 2 == 0 else AX1
            A(f"v_perm_b32 v{T3}, v{XP+(i>>1)}, v{XP+(i>>1)}, s{64+(i&1)}")
            for r in range(4):
                A(f"v_and_b32 v{Ar+r}, v{T3}, v{M+r}")
            A(f"s_waitcnt vmcnt({31-i+younger})")
            A("s_nop 0")
            c = "0" if i == 0 else f"v[{DD}:{DD+3}]"
            A(f"v_mfma_f32_16x16x32_bf16 v[{DD}:{DD+3}], v[{Ar}:{Ar+3}], v[{W+4*i}:{W+4*i+3}], {c}")

    def nat_off(dst, tmp):
        A(f"""v_and_b32 v{dst}, 15, v1
        v_lshlrev_b32 v{dst}, 5, v{dst}
        v_and_b32 v{tmp}, 16, v1
        v_add_u32 v{dst}, v{dst}, v{tmp}
        v_and_b32 v{tmp}, 32, v1
        v_lshl_add_u32 v{dst}, v{tmp}, 4, v{dst}""")

    g.stamp(2)
    tile_compute(0)
    nat_off(T0, T1)
    A(f"""s_lshl_b32 s47, s2, 10
    v_add_u32 v{T0}, s47, v{T0}
    v_mov_b32 v{T1}, s80""")
    g.tagput(range(DD, DD + 4), T1)
    A(f"global_store_dwordx4 v{T0}, v[{DD}:{DD+3}], s[26:27] sc1")
    g.stamp(3)
    A(f"""L_qflag:
    s_mul_i32 s47, s66, 192
    v_lshl_add_u32 v{T2}, v1, 2, s47
    v_lshrrev_b32 v{T3}, 7, v{T2}
    v_mul_u32_u24 v{T3}, 5120, v{T3}
    v_and_b32 v{T2}, 127, v{T2}
    v_lshl_add_u32 v{T3}, v{T2}, 2, v{T3}
    s_lshl_b32 s47, s67, 9
    s_add_u32 s47, s47, {WS_Q + 2048}
    v_add_u32 v{T3}, s47, v{T3}
    s_bfm_b64 exec, 48, 0
    L_pollQ:""")
    for rb in range(5):
        A(f"global_load_dwordx4 v[{W+4*rb}:{W+4*rb+3}], v{T3}, s[26:27] offset:{rb*1024-2048} sc1")
    A("s_waitcnt vmcnt(0)")
    g.tagcheck(list(range(W, W + 20)), T2)
    A("s_cbranch_vccz L_gotQ")
    g.spin("L_pollQ", "L_gotQ")
    A("L_gotQ:")
    g.stamp(5)
    A(f"v_lshlrev_b32 v{T0}, 3, v1")
    for rb in range(1, 5):
        for e in range(4):
            A(f"v_add_f32 v{W+e}, v{W+e}, v{W+4*rb+e}")
    A(f"""v_cvt_pk_bf16_f32 v{W}, v{W}, v{W+1}
    v_cvt_pk_bf16_f32 v{W+1}, v{W+2}, v{W+3}
    ds_write_b64 v{T0}, v[{W}:{W+1}] offset:{L_Q}
    s_mov_b64 exec, -1
    s_waitcnt lgkmcnt(0)
    s_barrier""")
    g.stamp(6)
    A(f"""s_cmp_lt_u32 s2, 120
    s_cbranch_scc1 L_gtask
    s_cmp_lt_u32 s2, 180
    s_cbranch_scc0 L_ffn_done""")
    A(f"""s_sub_u32 s76, s69, 24
    s_mul_i32 s47, s76, 10240
    s_add_u32 s47, s47, {WS_G + 4096}
    v_lshl_add_u32 v{T0}, v1, 4, s47
    v_add_u32 v{T1}, 5120, v{T0}
    L_pollG:""")
    for j in range(5):
        A(f"global_load_dwordx4 v[{W+4*j}:{W+4*j+3}], v{T0}, s[26:27] offset:{j*1024-4096} sc1")
    for j in range(5):
        A(f"global_load_dwordx4 v[{W+20+4*j}:{W+20+4*j+3}], v{T1}, s[26:27] offset:{j*1024-4096} sc1")
    A("s_waitcnt vmcnt(0)")
    g.tagcheck(list(range(W, W + 40)), T2)
    A("s_cbranch_vccz L_gotG")
    g.spin("L_pollG", "L_gotG")
    A("L_gotG:")
    for f in range(2):
        for j in range(1, 5):
            for e in range(4):
                A(f"v_add_f32 v{W+20*f+e}, v{W+20*f+e}, v{W+20*f+4*j+e}")
    S0_, S1_ = W, W + 20
    GG, UU = W + 4, W + 8
    for e in range(4):
        A(f"v_mov_b32 v{GG+e}, v{S0_+e}\nv_mov_b32 v{UU+e}, v{S1_+e}")
    A("s_nop 1")
    for e in range(4):
        A(f"v_mov_b32_dpp v{GG+e}, v{S1_+e} row_ror:8 row_mask:0xf bank_mask:0xc")
        A(f"v_mov_b32_dpp v{UU+e}, v{S0_+e} row_ror:8 row_mask:0xf bank_mask:0x3")
    for e in range(4):
        gg, uu = GG + e, UU + e
        g.rbf(gg); g.rbf(uu)
        A(f"""v_mul_f32 v{T2}, v{gg}, v{gg}
        v_mul_f32 v{T2}, v{T2}, v{gg}
        v_mov_b32 v{T3}, v{gg}
        v_fmac_f32 v{T3}, 0x3d372713, v{T2}
        v_mul_f32 v{T3}, 0xc0135761, v{T3}
        v_exp_f32 v{T3}, v{T3}
        s_nop 0
        v_add_f32 v{T3}, 1.0, v{T3}
        v_rcp_f32 v{T3}, v{T3}
        s_nop 0
        v_mul_f32 v{gg}, v{gg}, v{T3}""")
        g.rbf(gg)
        A(f"v_mul_f32 v{gg}, v{gg}, v{uu}")
    A(f"""v_cvt_pk_bf16_f32 v{GG}, v{GG}, v{GG+1}
    v_cvt_pk_bf16_f32 v{GG+1}, v{GG+2}, v{GG+3}""")

    def wr_h():
        A(f"""v_and_b32 v{T1}, 15, v1
        v_lshlrev_b32 v{T1}, 4, v{T1}
        v_and_b32 v{T2}, 32, v1
        v_lshl_add_u32 v{T1}, v{T2}, 3, v{T1}
        v_bfe_u32 v{T2}, v1, 4, 1
        v_lshl_add_u32 v{T1}, v{T2}, 3, v{T1}
        ds_write_b64 v{T1}, v[{GG}:{GG+1}] offset:{L_X}""")

    xbuf_roundtrip(wr_h)
    A(f"""v_lshrrev_b32 v{T0}, 4, v1
    v_mul_u32_u24 v2, 40960, v{T0}
    v_and_b32 v{T1}, 15, v1
    v_lshl_add_u32 v2, v{T1}, 4, v2
    s_mul_i32 s47, s76, 163840
    s_lshl_b32 s48, s70, 8
    s_add_u32 s47, s47, s48
    v_add_u32 v2, s47, v2
    v_mov_b32 v3, 0
    s_mov_b32 s62, 1280
    v_lshl_add_u64 v[2:3], v[2:3], 0, s[20:21]""")
    nat_off(T2, T1)
    A(f"""v_add_u32 v{T2}, s75, v{T2}
    s_branch L_tile2
    L_gtask:
    v_lshrrev_b32 v{T0}, 4, v1
    v_mul_u32_u24 v2, 98304, v{T0}
    v_and_b32 v{T1}, 7, v1
    v_lshl_add_u32 v2, v{T1}, 4, v2
    s_mul_i32 s47, s70, 393216
    s_lshl_b32 s48, s69, 7
    s_add_u32 s47, s47, s48
    v_add_u32 v2, s47, v2
    v_mov_b32 v3, 0
    s_mov_b32 s62, 3072
    v_and_b32 v{T1}, 8, v1
    v_cmp_eq_u32 vcc, 0, v{T1}
    v_mov_b32 v{T0}, s18
    v_mov_b32 v{T1}, s19
    v_mov_b32 v{T2}, s16
    v_mov_b32 v{T3}, s17
    v_cndmask_b32 v{T0}, v{T0}, v{T2}, vcc
    v_cndmask_b32 v{T1}, v{T1}, v{T3}, vcc
    v_lshl_add_u64 v[2:3], v[2:3], 0, v[{T0}:{T1}]
    v_lshl_add_u32 v{T2}, v1, 4, s75
    L_tile2:""")
    assert T0 % 2 == 0
    tile_issue()
    tile_compute(0)
    A(f"v_mov_b32 v{T1}, s80\ns_nop 7")
    g.tagput(range(DD, DD + 4), T1)
    A(f"""global_store_dwordx4 v{T2}, v[{DD}:{DD+3}], s[26:27] sc1
    L_ffn_done:""")
    g.stamp(7)
    GV, XO, YA = 8, 12, 16
    A(f"""s_cmp_lt_u32 s2, 176
    s_cbranch_scc1 L_c_done
    s_sub_u32 s77, s2, 176
    s_cmp_ge_u32 s77, 40
    s_cselect_b32 s78, 1, 0
    s_mul_i32 s47, s78, 40
    s_sub_u32 s77, s77, s47
    s_lshr_b32 s47, s77, 3
    s_lshl_b32 s47, s47, 10
    s_and_b32 s48, s77, 7
    s_lshl_b32 s48, s48, 6
    s_add_u32 s47, s47, s48
    s_lshl_b32 s48, s78, 9
    s_add_u32 s47, s47, s48
    s_add_u32 s47, s47, {WS_Y}
    v_lshrrev_b32 v{T0}, 2, v1
    v_mul_u32_u24 v{T0}, 5120, v{T0}
    v_and_b32 v{T1}, 3, v1
    v_lshl_add_u32 v{T0}, v{T1}, 4, v{T0}
    v_add_u32 v{YA}, s47, v{T0}
    v_add_u32 v{YA+1}, 81920, v{YA}
    v_add_u32 v{YA+2}, 81920, v{YA+1}
    v_add_u32 v{T0}, 81920, v{YA+2}
    s_mul_i32 s47, s78, 1280
    s_lshl_b32 s48, s77, 5
    s_add_u32 s47, s47, s48
    v_lshl_add_u32 v{YA+3}, v{T1}, 3, s47
    global_load_dwordx2 v[{XO}:{XO+1}], v{YA+3}, s[4:5]
    v_mov_b32 v{GV}, 0
    v_mov_b32 v{GV+1}, 0
    v_mov_b32 v{GV+2}, 0
    v_mov_b32 v{GV+3}, 0
    s_bfm_b64 exec, 48, 0
    L_pollF:
    global_load_dwordx4 v[{GV}:{GV+3}], v{T0}, s[26:27] sc1
    s_waitcnt vmcnt(0)""")
    g.tagcheck(list(range(GV, GV + 4)), T2)
    A("s_cbranch_vccz L_gotF")
    g.spin("L_pollF", "L_gotF")
    A("L_gotF:\ns_mov_b64 exec, -1\ns_nop 1")

    def red16(base):
        for ctl in ["row_ror:4", "row_ror:8"]:
            for e in range(4):
                g.dpp("v_add_f32", base + e, base + e, base + e, ctl)
        for sw in ["v_permlane16_swap_b32", "v_permlane32_swap_b32"]:
            for e in range(4):
                A(f"v_mov_b32 v{T0+e}, v{base+e}")
            for e in range(4):
                A(f"{sw} v{base+e}, v{T0+e}")
            for e in range(4):
                A(f"v_add_f32 v{base+e}, v{base+e}, v{T0+e}")

    red16(GV)
    A(f"""v_and_b32 v{XO+3}, 0xffff0000, v{XO+1}
    v_lshlrev_b32 v{XO+2}, 16, v{XO+1}
    v_and_b32 v{XO+1}, 0xffff0000, v{XO}
    v_lshlrev_b32 v{XO}, 16, v{XO}""")
    for e in range(4):
        g.rbf(GV + e)
        A(f"""v_mul_f32 v{T3}, 0xbfb8aa3b, v{GV+e}
        v_exp_f32 v{T3}, v{T3}
        s_nop 0
        v_add_f32 v{T3}, 1.0, v{T3}
        v_rcp_f32 v{T3}, v{T3}
        s_nop 0
        v_mul_f32 v{GV+e}, v{GV+e}, v{T3}""")
        g.rbf(GV + e)
    A("L_c_done:")
    g.stamp(8)
    MA = 20
    A(f"""v_lshrrev_b32 v{MA}, 4, v1
    v_lshlrev_b32 v{MA}, 10, v{MA}
    v_bfe_u32 v{T0}, v1, 1, 3
    v_lshl_add_u32 v{MA}, v{T0}, 4, v{MA}
    v_and_b32 v{T0}, 1, v1
    v_lshl_add_u32 v{MA}, v{T0}, 8, v{MA}
    v_mov_b32 v{MA+1}, 0
    v_lshl_add_u32 v{MA+2}, v1, 4, s68
    v_mov_b32 v{MA+3}, s80
    v_cmp_eq_u32 s[50:51], 48, v1
    s_barrier
    ds_read_b128 v[{AX0}:{AX0+3}], v{MA+1} offset:{L_ST}
    ds_read_b128 v[{AX1}:{AX1+3}], v{MA+1} offset:{L_ST+16}""")
    g.stamp(9)
    for w in range(4):
        A(f"ds_read_b128 v[{W+8*w}:{W+8*w+3}], v{MA} offset:{L_ACC+3072*w}")
        A(f"ds_read_b128 v[{W+8*w+4}:{W+8*w+7}], v{MA} offset:{L_ACC+3072*w+640}")
    ms = [AX0, AX0 + 2, AX1, AX1 + 2]
    A(f"""s_waitcnt lgkmcnt(8)
    v_max_f32 v{T0}, v{ms[0]}, v{ms[1]}
    v_max3_f32 v{T0}, v{T0}, v{ms[2]}, v{ms[3]}
    v_and_b32 v{T0}, s81, v{T0}""")
    for w in range(4):
        A(f"v_sub_f32 v{ms[w]}, v{ms[w]}, v{T0}")
    for w in range(4):
        A(f"v_exp_f32 v{ms[w]}, v{ms[w]}")
    A(f"s_nop 0\nv_mul_f32 v{T1}, v{ms[0]}, v{ms[0]+1}")
    for w in range(1, 4):
        A(f"v_fmac_f32 v{T1}, v{ms[w]}, v{ms[w]+1}")
    for w in range(4):
        A(f"s_waitcnt lgkmcnt({6-2*w})")
        for e in range(4):
            A(f"v_add_f32 v{W+8*w+e}, v{W+8*w+e}, v{W+8*w+4+e}")
        for e in range(4):
            if w == 0:
                A(f"v_mul_f32 v{DD+e}, v{ms[0]}, v{W+e}")
            else:
                A(f"v_fmac_f32 v{DD+e}, v{ms[w]}, v{W+8*w+e}")
    A(f"""v_cndmask_b32 v{DD}, v{DD}, v{T0}, s[50:51]
    v_cndmask_b32 v{DD+1}, v{DD+1}, v{T1}, s[50:51]""")
    g.tagput(range(DD, DD + 4), MA + 3)
    A(f"""s_bfm_b64 exec, 49, 0
    global_store_dwordx4 v{MA+2}, v[{DD}:{DD+3}], s[26:27] sc1
    s_mov_b64 exec, -1""")
    g.stamp(10)
    A(f"""s_cmp_ge_u32 s2, 240
    s_cbranch_scc1 L_noy""")
    nat_off(MA + 1, T1)
    A(f"""v_add_u32 v{MA+1}, s74, v{MA+1}
    v_lshlrev_b32 v{MA}, 4, v1
    s_barrier""")
    for w in range(4):
        A(f"ds_read_b128 v[{W+4*w}:{W+4*w+3}], v{MA} offset:{L_YP+1024*w}")
    for w in range(1, 4):
        A(f"s_waitcnt lgkmcnt({3-w})")
        for e in range(4):
            A(f"v_add_f32 v{W+e}, v{W+e}, v{W+4*w+e}")
    g.tagput(range(W, W + 4), MA + 3)
    A(f"""global_store_dwordx4 v{MA+1}, v[{W}:{W+3}], s[26:27] sc1
    L_noy:""")
    g.stamp(11)
    A(f"""s_cmp_lt_u32 s2, 176
    s_cbranch_scc1 L_adone
    L_pollY:""")
    Y0 = W + 16
    for k in range(3):
        A(f"global_load_dwordx4 v[{Y0+4*k}:{Y0+4*k+3}], v{YA+k}, s[26:27] sc1")
    A("s_waitcnt vmcnt(0)")
    g.tagcheck(list(range(Y0, Y0 + 12)), T2)
    A("s_cbranch_vccz L_gotY")
    g.spin("L_pollY", "L_gotY")
    A("L_gotY:")
    g.stamp(12)
    for k in range(1, 3):
        for e in range(4):
            A(f"v_add_f32 v{Y0+e}, v{Y0+e}, v{Y0+4*k+e}")
    A("s_nop 0")
    red16(Y0)
    for e in range(4):
        g.rbf(Y0 + e)
    for e in range(4):
        A(f"v_mul_f32 v{Y0+e}, v{Y0+e}, v{GV+e}")
    for e in range(4):
        g.rbf(Y0 + e)
    for e in range(4):
        A(f"v_add_f32 v{Y0+e}, v{Y0+e}, v{XO+e}")
    A(f"""v_cvt_pk_bf16_f32 v{Y0}, v{Y0}, v{Y0+1}
    v_cvt_pk_bf16_f32 v{Y0+1}, v{Y0+2}, v{Y0+3}
    s_mov_b64 exec, 15
    global_store_dwordx2 v{YA+3}, v[{Y0}:{Y0+1}], s[22:23]
    s_cmp_lg_u32 s2, 255
    s_cbranch_scc1 L_adone
    s_mov_b64 exec, 1
    v_mov_b32 v{T0}, {WS_E}
    v_mov_b32 v{T1}, s82
    global_store_dword v{T0}, v{T1}, s[26:27]
    L_adone:
    s_mov_b64 exec, -1""")
    g.stamp(13)
    g.stamp_flush()
    A("L_end:\ns_endpgm")

    nv = 176 if stamps else 168
    out = [HDR + f"; @launch grid=(256,1,1) block=(320,1,1) lds={LDS_BYTES}",
           '.amdgcn_target "amdgcn-amd-amdhsa--gfx950"', ".text", f".globl {KN}", ".p2align 8",
           f".type {KN},@function", f"{KN}:"] + g.L + [
        '.section .rodata,"a"', ".p2align 6", f".amdhsa_kernel {KN}",
        f"  .amdhsa_next_free_vgpr {nv}", "  .amdhsa_next_free_sgpr 96", f"  .amdhsa_accum_offset {nv}",
        "  .amdhsa_group_segment_fixed_size 0", "  .amdhsa_kernarg_size 96", "  .amdhsa_user_sgpr_count 2",
        "  .amdhsa_user_sgpr_kernarg_segment_ptr 1", "  .amdhsa_system_sgpr_workgroup_id_x 1",
        "  .amdhsa_float_denorm_mode_32 3", ".end_amdhsa_kernel"]
    return "\n".join(out) + "\n"


if __name__ == "__main__":
    kw = {}
    for kv in sys.argv[2:]:
        k, v = kv.split("=")
        kw[k] = int(v) if v.lstrip("-").isdigit() else v.replace("+", " ")
    open(sys.argv[1], "w").write(gen(**kw))
```

```python
import sys
KN = "recurrent_scan__gqa_block_cached__geglu_ffn__decode_kernel"
HEADER = open("recurrent_scan__gqa_block_cached__geglu_ffn__decode.s.ref").read().split("; Override launch")[0] if False else None

HDR = """; Kernarg layout for this problem (96 bytes, ptrs only, base s[0:1]):
"""

WS_Q = 0x00000
WS_O = 0x40000
WS_Y = 0x80000
WS_G = 0x100000
WS_E = 0x3F000
WS_C = 0x400000
TAGM = 0x3ff
WS_STAMP = 0x200000
L_X = 0
L_Q = 512
L_ST = 960
L_YP = 1024
L_ACC = 5120
LDS_BYTES = 5120 + 12288 + 2048

LOG2E = 0x3FB8AA3B
SCALE = 0x3D93CD3A


class G:
    def __init__(self, stamps=False, pol="nt", sleep=2):
        self.L = []
        self.stamps = stamps
        self.pol = (" " + pol) if pol else ""
        self.sleep = sleep
        self.nlab = 0

    def A(self, s):
        for x in s.split("\n"):
            x = x.strip()
            if x:
                self.L.append("    " + x if not x.endswith(":") else x)

    def lab(self, p="L"):
        self.nlab += 1
        return f"{p}_{self.nlab}"

    def stamp(self, idx):
        if not self.stamps:
            return
        self.A(f"""s_memrealtime s[60:61]
        s_waitcnt lgkmcnt(0)
        v_writelane_b32 v168, s60, {idx}""")

    def stamp_flush(self):
        if not self.stamps:
            return
        self.A(f"""s_getreg_b32 s47, hwreg(HW_REG_HW_ID)
        s_getreg_b32 s48, hwreg(HW_REG_XCC_ID)
        s_lshl_b32 s48, s48, 24
        s_and_b32 s47, s47, 0xffffff
        s_or_b32 s47, s47, s48
        s_or_b32 s47, s47, 0x80000000
        v_writelane_b32 v168, s47, 15
        s_mul_i32 s47, s2, 5
        s_add_u32 s47, s47, s79
        s_lshl_b32 s47, s47, 8
        s_add_u32 s47, s47, {WS_STAMP}
        v_lshl_add_u32 v169, v1, 2, s47
        global_store_dword v169, v168, s[26:27]
        s_mov_b64 exec, -1""")

    def spin(self, back, out, sleep=None):
        self.A(f"""s_sleep {self.sleep if sleep is None else sleep}
        s_sub_u32 s58, s58, 1
        s_cmp_gt_i32 s58, 0
        s_cbranch_scc1 {back}
        s_branch {out}""")

    def allred_16_32(self, op, v, t):
        self.A(f"""v_mov_b32 v{t}, v{v}
        s_nop 1
        v_permlane16_swap_b32 v{v}, v{t}
        s_nop 1
        {op} v{v}, v{v}, v{t}
        v_mov_b32 v{t}, v{v}
        s_nop 1
        v_permlane32_swap_b32 v{v}, v{t}
        s_nop 1
        {op} v{v}, v{v}, v{t}""")

    def dpp(self, op, d, a, b, ctl, bank="0xf"):
        self.A(f"{op}_dpp v{d}, v{a}, v{b} {ctl} row_mask:0xf bank_mask:{bank}")

    def tagcheck(self, regs, t):
        for r in regs:
            self.A(f"v_xor_b32 v{r}, s80, v{r}")
        self.A(f"v_or_b32 v{t}, v{regs[0]}, v{regs[1]}")
        for j in range(2, len(regs), 2):
            self.A(f"v_or3_b32 v{t}, v{t}, v{regs[j]}, v{regs[j+1]}")
        self.A(f"v_and_b32 v{t}, {TAGM}, v{t}\nv_cmp_ne_u32 vcc, 0, v{t}")

    def tagput(self, regs, tg, rnd=True):
        if rnd:
            for r in regs:
                self.A(f"v_add_u32 v{r}, {(TAGM+1)//2}, v{r}")
        for r in regs:
            self.A(f"v_and_or_b32 v{r}, v{r}, s81, v{tg}")

    def rbf(self, v):
        self.A(f"""v_cvt_pk_bf16_f32 v{v}, v{v}, v{v}
        v_and_b32 v{v}, 0xffff0000, v{v}""")


def gen(stamps=0, pol="nt", sleep=2, b1=16, prio=3, pace=3, dyn=2, lsleep=16, qsleep=0, nstat=15, rot=1, atest=0, mul=1, dummy=0, cstride=4224, noffn=0, fine=0, R=2, spread=1, th=224, wolate=1):
    g = G(stamps, pol, sleep)
    A = g.A
    P = g.pol
    M = 4
    A(f"""s_cmp_ge_u32 s2, 256
    s_cbranch_scc1 L_end
    s_load_dwordx16 s[4:19], s[0:1], 0
    s_load_dwordx8 s[20:27], s[0:1], 64
    v_lshrrev_b32 v2, 6, v0
    v_and_b32 v1, 63, v0
    v_readfirstlane_b32 s3, v2""")
    if stamps:
        A("v_mov_b32 v168, 0")
        A("s_memrealtime s[60:61]")
    A(f"""v_and_b32 v2, 1, v1
    v_lshlrev_b32 v2, 4, v2
    v_mov_b32 v3, 0xffff
    v_lshlrev_b32 v2, v2, v3
    v_bfe_u32 v3, v1, 1, 2
    v_cmp_eq_u32 s[50:51], 0, v3
    v_cmp_eq_u32 s[52:53], 1, v3
    v_cmp_eq_u32 s[54:55], 2, v3
    v_cmp_eq_u32 s[56:57], 3, v3
    s_lshr_b32 s66, s2, 3
    s_and_b32 s47, s2, 7
    v_cndmask_b32 v{M}, 0, v2, s[50:51]
    v_cndmask_b32 v{M+1}, 0, v2, s[52:53]
    v_cndmask_b32 v{M+2}, 0, v2, s[54:55]
    v_cndmask_b32 v{M+3}, 0, v2, s[56:57]
    s_bcnt1_i32_b32 s67, s47
    s_and_b32 s67, s67, 1
    s_lshr_b32 s48, s47, 1
    s_mov_b32 s46, {LOG2E}
    s_mov_b32 s58, 400000
    s_mov_b32 s79, s3""")
    if spread:
        A("""s_add_u32 s96, s48, s66
        s_and_b32 s96, s96, 3
        s_lshr_b32 s97, s66, 2
        s_add_u32 s97, s97, s67
        s_and_b32 s97, s97, 1
        s_lshl_b32 s96, s96, 6
        s_lshl_b32 s97, s97, 5
        s_add_u32 s96, s96, s97
        s_add_u32 s96, s96, s66""")
    else:
        A("s_mov_b32 s96, s2")
    A("""s_sub_u32 s97, s96, 16
    s_cmp_lt_u32 s97, 16
    s_cselect_b32 s98, 255, s97
    s_cmp_lt_u32 s96, 16
    s_cselect_b32 s98, s96, s98
    s_cmp_eq_u32 s3, 0
    s_cbranch_scc1 L_aux
    s_mul_i32 s69, s98, 205
    s_lshr_b32 s69, s69, 10
    s_mul_i32 s70, s69, 5
    s_sub_u32 s70, s98, s70
    s_sub_u32 s3, s3, 1""")
    Q = 8; ACC = 20; A0 = 32; A1 = 36
    SA, SB, T, MM, MC, LL, PA, PB = 40, 41, 42, 43, 44, 45, 46, 47
    KA, VA, KB, VB = 48, 72, 96, 120
    A(f"""s_lshl_b32 s42, s48, 2
    s_add_u32 s42, s42, s3
    s_lshl_b32 s40, s67, 5
    s_add_u32 s40, s40, s66
    s_mul_i32 s40, s40, 1572864
    s_mov_b32 s41, 0
    v_lshrrev_b32 v2, 3, v1
    v_mul_u32_u24 v2, 384, v2
    v_and_b32 v3, 7, v1
    v_lshl_add_u32 v2, v3, 4, v2
    s_waitcnt lgkmcnt(0)""")
    if stamps:
        A("v_writelane_b32 v168, s60, 0")
    A(f"""s_mov_b32 s28, s6
    s_mov_b32 s29, s7
    s_mov_b32 s30, 100663296
    s_mov_b32 s31, 0x20000
    s_mov_b32 s32, s8
    s_mov_b32 s33, s9
    s_mov_b32 s34, 100663296
    s_mov_b32 s35, 0x20000""")
    A("s_barrier")
    OFFS = [0, 128, 256, 3072, 3200, 3328]

    def loads6(base, srd, sreg, paced=False, part=None):
        for j, o in enumerate(OFFS):
            if part is not None and j // 3 != part: continue
            if paced and j % 3 == 0:
                A(f"s_waitcnt vmcnt({pace})")
            A(f"buffer_load_dwordx4 v[{base+4*j}:{base+4*j+3}], v2, s[{srd}:{srd+3}], s{sreg} offen offset:{o}{P}")

    GV_, GA, GD = 144, 145, 146
    A(f"""s_mul_i32 s44, s42, {mul}
    s_and_b32 s44, s44, 255
    s_mul_i32 s44, s44, 6144
    s_add_u32 s44, s44, s40
    s_add_u32 s47, s42, 4
    s_and_b32 s47, s47, 15
    s_add_u32 s47, s47, 16
    s_mul_i32 s47, s47, {mul}
    s_and_b32 s47, s47, 255
    s_mul_i32 s43, s47, 6144
    s_add_u32 s43, s43, s40""")
    loads6(KB, 28, 44, True); loads6(VB, 32, 44, True)
    if R:
        assert dyn == 2
        for j in range(R):
            loads6(KA if j < 2 else VA, 28 if j < 2 else 32, 43, True, part=j & 1)
    else:
        loads6(KA, 28, 43, True)
        if dyn != 2:
            A(f"buffer_load_dword v{GA}, v2, s[28:31], s43 offen{P}")
        loads6(VA, 32, 43, True)
    g.stamp(1)
    A(f"""s_add_u32 s47, s42, 8
    s_and_b32 s47, s47, 15
    s_sub_u32 s47, s47, 16
    v_mov_b32 v{GV_}, s47
    s_add_u32 s85, s47, {48 - 16*nstat}
    s_mov_b32 s41, 3
    s_add_u32 s48, s42, 12
    s_and_b32 s48, s48, 15
    s_add_u32 s48, s48, 240
    s_mul_i32 s48, s48, 6144
    s_add_u32 s44, s40, s48
    s_mov_b32 s99, 0
    s_mov_b32 s100, -1
    s_mov_b32 s45, 0
    s_mov_b32 s84, 16""")
    A(f"""s_load_dword s80, s[26:27], {WS_E}
    s_mov_b32 s36, s12
    s_mov_b32 s37, s13
    s_mov_b32 s38, 7864320
    s_mov_b32 s39, 0x20000
    s_lshl_b32 s71, s69, 2
    s_add_u32 s71, s71, s3
    s_mul_i32 s72, s71, 40960
    s_lshl_b32 s47, s70, 8
    s_add_u32 s72, s72, s47
    v_lshrrev_b32 v3, 4, v1
    v_mul_u32_u24 v3, 10240, v3
    v_and_b32 v{T}, 15, v1
    v_lshl_add_u32 v3, v{T}, 4, v3
    s_cmp_ge_u32 s98, 240
    s_cselect_b32 s47, 0x40000000, 0
    s_cselect_b32 s72, 0, s72
    v_add_u32 v3, s47, v3""")
    for r in range(12):
        A(f"v_mov_b32 v{ACC+r}, 0")
    A(f"""v_mov_b32 v{MM}, 0xff800000
    v_mov_b32 v{MC}, 0xff800000
    v_mov_b32 v{LL}, 0
    v_and_b32 v{T}, 7, v1
    v_lshlrev_b32 v{T}, 4, v{T}
    s_barrier
    ds_read_b128 v[{Q}:{Q+3}], v{T} offset:{L_Q}
    ds_read_b128 v[{Q+4}:{Q+7}], v{T} offset:{L_Q+128}
    ds_read_b128 v[{Q+8}:{Q+11}], v{T} offset:{L_Q+256}
    s_mul_i32 s47, s66, 3
    s_lshr_b32 s47, s47, 1
    s_mul_i32 s47, s47, 5
    s_add_u32 s47, s47, s67
    s_mul_i32 s47, s47, {cstride}
    s_add_u32 s83, s47, {WS_C}
    v_mov_b32 v{GD}, 1
    s_waitcnt lgkmcnt(0)""")
    g.stamp(2)

    WO = KA if R else KB

    def wo_load(j):
        dst = WO + 4 * j
        o = j * 1280
        if o < 4096:
            A(f"buffer_load_dwordx4 v[{dst}:{dst+3}], v3, s[36:39], s72 offen offset:{o}{P}")
        else:
            A(f"buffer_load_dwordx4 v[{dst}:{dst+3}], v3, s[36:39], s73 offen offset:{o-5120}{P}")

    def unit(K, V, sreg, mode):
        w = {'loop': (10, 7, 10, 7), 'first': (22, 19, 16, 13)}[mode]
        if dyn == 2:
            w = tuple(x - 1 for x in w)
            if mode == 'loop' and stamps: A("s_memrealtime s[60:61]")
        fn = fine and mode == 'loop' and dyn == 2
        if fn: w = (9, 9, 9, 9)
        A(f"""v_mov_b32 v{SA}, 0
        v_mov_b32 v{SB}, 0
        s_waitcnt vmcnt({w[0]})""")
        for r in range(12):
            A(f"v_dot2c_f32_bf16 v{SA}, v{K+r}, v{Q+r}")

        def kb_dots():
            A(f"s_waitcnt vmcnt({w[1]})")
            for r in range(12):
                A(f"v_dot2c_f32_bf16 v{SB}, v{K+12+r}, v{Q+r}")
        if not fn: kb_dots()
        if mode == 'loop' and dyn == 2:
            if stamps == 2: A("s_memtime s[86:87]")
            A("s_waitcnt lgkmcnt(0)")
            if stamps == 2:
                A("""s_memtime s[88:89]
                s_waitcnt lgkmcnt(0)
                s_sub_u32 s88, s88, s86
                s_add_u32 s86, s84, 24
                s_mov_b32 m0, s86
                s_nop 0
                v_writelane_b32 v168, s88, m0""")
            if stamps:
                A(f"""s_mov_b32 m0, s84
                s_add_u32 s84, s84, 1
                s_min_u32 s84, s84, {39 if stamps == 2 else 63}
                v_writelane_b32 v168, s60, m0""")
            A(f"""s_add_u32 s47, s85, {16*nstat}
            s_cmp_ge_u32 s47, 256
            s_cbranch_scc1 L_fin
            s_mul_i32 s48, s47, {mul}
            s_and_b32 s48, s48, 255
            s_mul_i32 s48, s48, 6144
            s_add_u32 s{sreg}, s40, s48""")
            if fn:
                loads6(K, 28, sreg, part=0); kb_dots(); loads6(K, 28, sreg, part=1)
            else:
                loads6(K, 28, sreg)
            if nstat > 3:
                if rot:
                    A(f"""s_add_u32 s48, s47, 4
                    s_and_b32 s48, s48, 15
                    s_andn2_b32 s47, s47, 15
                    s_add_u32 s47, s47, s48""")
                A(f"""s_add_u32 s85, s47, {(16 - 16*nstat) & 0xffffffff}
                s_add_u32 s41, s41, 1
                s_cmp_le_u32 s41, {nstat}""")
                if dummy == 1: A("s_mov_b32 s90, 1\ns_atomic_add s90, s[26:27], s83 glc")
                if dummy == 2: A("s_load_dword s90, s[26:27], s83 glc")
                if dummy == 3: A("s_mov_b32 s90, 1\ns_atomic_add s90, s[26:27], s83")
                A("s_cbranch_scc1 L_back")
            if nstat < 16:
                A("""s_mov_b32 s85, 1
                s_atomic_add s85, s[26:27], s83 glc""")
            A("L_back:")
        elif mode == 'loop':
            A(f"""s_waitcnt vmcnt(6)
            v_readfirstlane_b32 s47, v{GV_}
            v_mov_b32 v{GA}, s83
            s_add_u32 s47, s47, 48
            s_cmp_ge_u32 s47, 256
            s_cbranch_scc1 L_fin
            s_mul_i32 s47, s47, 6144
            s_add_u32 s{sreg}, s40, s47""")
            loads6(K, 28, sreg)
            if dyn:
                A(f"""s_mov_b64 exec, 1
                global_atomic_add v{GV_}, v{GA}, v{GD}, s[26:27] sc0 sc1
                s_mov_b64 exec, -1""")
            else:
                A(f"""buffer_load_dword v{GA}, v2, s[28:31], s43 offen{P}
                v_add_u32 v{GV_}, 16, v{GV_}""")
            A("L_back:")
            if stamps: A("s_memrealtime s[60:61]")
        else:
            A("s_nop 2")
        for ctl in ["quad_perm:[1,0,3,2]", "quad_perm:[2,3,0,1]", "row_half_mirror"]:
            g.dpp("v_add_f32", SA, SA, SA, ctl)
            g.dpp("v_add_f32", SB, SB, SB, ctl)
            A("s_nop 0")
        skip = g.lab("L_skip")
        A(f"""v_cvt_pk_bf16_f32 v{T}, v{SA}, v{SB}
        v_lshlrev_b32 v{SA}, 16, v{T}
        v_and_b32 v{SB}, 0xffff0000, v{T}
        v_mul_f32 v{SA}, {SCALE}, v{SA}
        v_mul_f32 v{SB}, {SCALE}, v{SB}
        v_cvt_pk_bf16_f32 v{T}, v{SA}, v{SB}
        v_lshlrev_b32 v{SA}, 16, v{T}
        v_and_b32 v{SB}, 0xffff0000, v{T}
        v_max_f32 v{T}, v{SA}, v{SB}
        v_cmp_gt_f32 vcc, v{T}, v{MM}
        s_cbranch_vccz {skip}""")
        g.dpp("v_max_f32", T, T, T, "row_ror:8")
        g.allred_16_32("v_max_f32", T, PA)
        A(f"""v_max_f32 v{MM}, v{MM}, v{T}
        v_mul_f32 v{PA}, s46, v{MM}
        v_sub_f32 v{PB}, v{MC}, v{PA}
        v_exp_f32 v{PB}, v{PB}
        v_mov_b32 v{MC}, v{PA}
        v_mul_f32 v{LL}, v{LL}, v{PB}""")
        for r in range(12):
            A(f"v_mul_f32 v{ACC+r}, v{ACC+r}, v{PB}")
        A(f"""{skip}:
        v_fma_f32 v{PA}, v{SA}, s46, -v{MC}
        v_fma_f32 v{PB}, v{SB}, s46, -v{MC}
        v_exp_f32 v{PA}, v{PA}
        v_exp_f32 v{PB}, v{PB}
        s_nop 0
        v_add_f32 v{LL}, v{LL}, v{PA}
        v_cvt_pk_bf16_f32 v{PA}, v{PA}, v{PA}
        v_add_f32 v{LL}, v{LL}, v{PB}
        v_cvt_pk_bf16_f32 v{PB}, v{PB}, v{PB}""")
        for r in range(4):
            A(f"v_and_b32 v{A0+r}, v{PA}, v{M+r}")
        for r in range(4):
            A(f"v_and_b32 v{A1+r}, v{PB}, v{M+r}")
        A(f"s_waitcnt vmcnt({w[2]})")
        for t in range(3):
            A(f"v_mfma_f32_16x16x32_bf16 v[{ACC+4*t}:{ACC+4*t+3}], v[{A0}:{A0+3}], v[{V+4*t}:{V+4*t+3}], v[{ACC+4*t}:{ACC+4*t+3}]")
        if fn:
            A("s_cmp_lg_u32 s45, 0\ns_cbranch_scc1 L_exit0")
            loads6(V, 32, sreg, part=0)
            A("L_back2:")
        A(f"s_waitcnt vmcnt({w[3]})")
        for t in range(3):
            A(f"v_mfma_f32_16x16x32_bf16 v[{ACC+4*t}:{ACC+4*t+3}], v[{A1}:{A1+3}], v[{V+12+4*t}:{V+12+4*t+3}], v[{ACC+4*t}:{ACC+4*t+3}]")
        if mode == 'loop':
            if stamps and dyn != 2:
                A("""s_waitcnt lgkmcnt(0)
                s_mov_b32 m0, s84
                s_add_u32 s84, s84, 1
                s_min_u32 s84, s84, 63
                v_writelane_b32 v168, s60, m0""")
            A("""s_cmp_lg_u32 s45, 0
            s_cbranch_scc1 L_exit""")
            loads6(V, 32, sreg, part=(1 if fn else None))
            A("s_branch L_loop")

    def softmax_part():
        for ctl in ["quad_perm:[1,0,3,2]", "quad_perm:[2,3,0,1]", "row_half_mirror"]:
            g.dpp("v_add_f32", SA, SA, SA, ctl)
            g.dpp("v_add_f32", SB, SB, SB, ctl)
            A("s_nop 0")
        skip = g.lab("L_skip")
        A(f"""v_cvt_pk_bf16_f32 v{T}, v{SA}, v{SB}
        v_lshlrev_b32 v{SA}, 16, v{T}
        v_and_b32 v{SB}, 0xffff0000, v{T}
        v_mul_f32 v{SA}, {SCALE}, v{SA}
        v_mul_f32 v{SB}, {SCALE}, v{SB}
        v_cvt_pk_bf16_f32 v{T}, v{SA}, v{SB}
        v_lshlrev_b32 v{SA}, 16, v{T}
        v_and_b32 v{SB}, 0xffff0000, v{T}
        v_max_f32 v{T}, v{SA}, v{SB}
        v_cmp_gt_f32 vcc, v{T}, v{MM}
        s_cbranch_vccz {skip}""")
        g.dpp("v_max_f32", T, T, T, "row_ror:8")
        g.allred_16_32("v_max_f32", T, PA)
        A(f"""v_max_f32 v{MM}, v{MM}, v{T}
        v_mul_f32 v{PA}, s46, v{MM}
        v_sub_f32 v{PB}, v{MC}, v{PA}
        v_exp_f32 v{PB}, v{PB}
        v_mov_b32 v{MC}, v{PA}
        v_mul_f32 v{LL}, v{LL}, v{PB}""")
        for r in range(12):
            A(f"v_mul_f32 v{ACC+r}, v{ACC+r}, v{PB}")
        A(f"""{skip}:
        v_fma_f32 v{PA}, v{SA}, s46, -v{MC}
        v_fma_f32 v{PB}, v{SB}, s46, -v{MC}
        v_exp_f32 v{PA}, v{PA}
        v_exp_f32 v{PB}, v{PB}
        s_nop 0
        v_add_f32 v{LL}, v{LL}, v{PA}
        v_cvt_pk_bf16_f32 v{PA}, v{PA}, v{PA}
        v_add_f32 v{LL}, v{LL}, v{PB}
        v_cvt_pk_bf16_f32 v{PB}, v{PB}, v{PB}""")
        for r in range(4):
            A(f"v_and_b32 v{A0+r}, v{PA}, v{M+r}")
        for r in range(4):
            A(f"v_and_b32 v{A1+r}, v{PB}, v{M+r}")

    def consume(j, K, V):
        if j < 2:
            for r in range(12):
                A(f"v_dot2c_f32_bf16 v{SA+j}, v{K+12*j+r}, v{Q+r}")
        else:
            Ar = A0 if j == 2 else A1
            for t in range(3):
                b = V + 12 * (j - 2) + 4 * t
                A(f"v_mfma_f32_16x16x32_bf16 v[{ACC+4*t}:{ACC+4*t+3}], v[{Ar}:{Ar+3}], v[{b}:{b+3}], v[{ACC+4*t}:{ACC+4*t+3}]")

    if R:
        assert R == 2
        A("L_F:")
        A(f"v_mov_b32 v{SA}, 0\nv_mov_b32 v{SB}, 0")
        for j in range(4):
            if j == 2:
                A("s_nop 2"); softmax_part()
            A(f"s_waitcnt vmcnt({15 - 3*j})")
            consume(j, KB, VB)
        A("s_cmp_lg_u32 s45, 0\ns_cbranch_scc1 L_exit")
        A("L_loop:")
        if stamps: A("s_memrealtime s[60:61]")
        A(f"v_mov_b32 v{SA}, 0\nv_mov_b32 v{SB}, 0\ns_waitcnt vmcnt(3)")
        consume(0, KA, VA)
        loads6(VA, 32, 43, part=0)
        A("s_waitcnt vmcnt(3)")
        consume(1, KA, VA)
        loads6(VA, 32, 43, part=1)
        A(f"s_cmp_ge_u32 s99, {th}\ns_cbranch_scc1 L_early\nL_early_ret:")
        softmax_part()
        A("s_waitcnt vmcnt(3)")
        consume(2, KA, VA)
        A("s_waitcnt lgkmcnt(0)")
        if stamps:
            A("""s_mov_b32 m0, s84
            s_add_u32 s84, s84, 1
            s_min_u32 s84, s84, 63
            v_writelane_b32 v168, s60, m0""")
        A(f"""s_add_u32 s47, s85, {16*nstat}
        s_cmp_ge_u32 s47, 240
        s_cbranch_scc1 L_last
        s_mul_i32 s48, s47, 6144
        s_add_u32 s43, s40, s48""")
        loads6(KA, 28, 43, part=0)
        A(f"""s_and_b32 s99, s47, s100
        s_add_u32 s48, s47, 4
        s_and_b32 s48, s48, 15
        s_andn2_b32 s47, s47, 15
        s_add_u32 s47, s47, s48
        s_add_u32 s85, s47, {(16 - 16*nstat) & 0xffffffff}""")
        if nstat < 15:
            A(f"""s_add_u32 s41, s41, 1
            s_cmp_le_u32 s41, {nstat}
            s_cbranch_scc1 L_ret2
            s_mov_b32 s85, 1
            s_atomic_add s85, s[26:27], s83 glc
            L_ret2:""")
        A("s_waitcnt vmcnt(3)")
        consume(3, KA, VA)
        loads6(KA, 28, 43, part=1)
        A("s_branch L_loop")
        A("L_early:\ns_mov_b32 s100, 0")
        loads6(KB, 28, 44); loads6(VB, 32, 44)
        A("s_branch L_early_ret")
        A("L_last:")
        g.stamp(3)
        A("""s_mov_b32 s45, 1
        s_add_u32 s73, s72, 5120
        s_cmp_eq_u32 s100, 0
        s_cbranch_scc1 L_last2""")
        loads6(KB, 28, 44); loads6(VB, 32, 44)
        A("L_last2:")
        if wolate:
            A(f"v_mov_b32 v{GA}, 0x7ff00000")
            for j in range(6): A(f"buffer_load_dword v{GV_}, v{GA}, s[36:39], 0 offen")
        else:
            for j in range(6): wo_load(j)
        A("s_cmp_eq_u32 s100, 0\ns_cbranch_scc1 L_last3\ns_waitcnt vmcnt(18)\ns_branch L_last4\nL_last3:\ns_waitcnt vmcnt(6)\nL_last4:")
        consume(3, KA, VA)
        A("s_branch L_F")
        A("L_exit:")
        for j in range(0 if wolate else 6, 8): wo_load(j)
    else:
        unit(KB, VB, 44, 'first')
        A("L_loop:")
        unit(KA, VA, 43, 'loop')
        A("L_fin:\ns_add_u32 s73, s72, 5120\ns_mov_b32 s45, 1")
        for j in range(6 if dyn == 2 else 7): wo_load(j)
        A("s_branch L_back\nL_exit:")
        if dyn == 2: wo_load(6)
        wo_load(7)
    g.stamp(4)
    g.dpp("v_add_f32", LL, LL, LL, "row_ror:8")
    g.allred_16_32("v_add_f32", LL, T)
    A(f"""s_mul_i32 s47, s3, 3072
    v_lshl_add_u32 v{T}, v1, 4, s47
    s_lshl_b32 s47, s3, 3
    v_mov_b32 v{PA}, s47
    ds_write_b128 v{T}, v[{ACC}:{ACC+3}] offset:{L_ACC}
    ds_write_b128 v{T}, v[{ACC+4}:{ACC+7}] offset:{L_ACC+1024}
    ds_write_b128 v{T}, v[{ACC+8}:{ACC+11}] offset:{L_ACC+2048}
    ds_write_b64 v{PA}, v[{MC}:{LL}] offset:{L_ST}""")
    assert LL == MC + 1 and MC % 2 == 0
    OA, OS, BP0, BP1 = 104, 105, 106, 107
    O0, S0 = 108, 112
    TG = 92
    XR = 96
    A(f"""s_mul_i32 s47, s71, 171
    s_lshr_b32 s47, s47, 10
    s_mul_i32 s48, s47, 6
    s_sub_u32 s48, s71, s48
    s_lshl_b32 s47, s47, 13
    s_add_u32 s47, s47, {WS_O}
    v_and_b32 v{OS}, 7, v1
    v_lshl_add_u32 v{OS}, v{OS}, 10, s47
    v_lshrrev_b32 v{OA}, 3, v1
    s_lshl_b32 s48, s48, 7
    v_lshl_add_u32 v{OA}, v{OA}, 4, s48
    v_add_u32 v{OA}, v{OA}, v{OS}
    v_lshrrev_b32 v{BP0}, 4, v1
    v_lshlrev_b32 v{BP0}, 6, v{BP0}
    v_and_b32 v{BP1}, 8, v1
    v_lshl_add_u32 v{BP0}, v{BP1}, 1, v{BP0}
    v_add_u32 v{BP1}, 32, v{BP0}
    s_add_u32 s80, s80, 1
    s_and_b32 s80, s80, {TAGM}
    s_waitcnt lgkmcnt(0)
    s_barrier
    s_cmp_ge_u32 s98, 240
    s_cbranch_scc1 L_sdone
    L_pollO:
    global_load_dwordx4 v[{O0}:{O0+3}], v{OA}, s[26:27] sc1
    global_load_dwordx4 v[{S0}:{S0+3}], v{OS}, s[26:27] offset:768 sc1
    s_waitcnt vmcnt(0)""")
    g.tagcheck(list(range(O0, O0 + 8)), T)
    A("s_cbranch_vccz L_gotO")
    g.spin("L_pollO", "L_gotO")
    A("L_gotO:")
    g.stamp(5)
    A(f"v_mov_b32 v{T}, v{S0}\ns_nop 1")
    g.dpp("v_max_f32", T, T, T, "quad_perm:[1,0,3,2]")
    A("s_nop 1")
    g.dpp("v_max_f32", T, T, T, "quad_perm:[2,3,0,1]")
    A(f"""v_sub_f32 v{T}, v{S0}, v{T}
    v_exp_f32 v{T}, v{T}
    s_nop 0
    v_mul_f32 v{S0+1}, v{S0+1}, v{T}""")
    for e in range(4):
        A(f"v_mul_f32 v{O0+e}, v{O0+e}, v{T}")
    for ctl in ["quad_perm:[1,0,3,2]", "quad_perm:[2,3,0,1]"]:
        g.dpp("v_add_f32", S0 + 1, S0 + 1, S0 + 1, ctl)
        for e in range(4):
            g.dpp("v_add_f32", O0 + e, O0 + e, O0 + e, ctl)
    A(f"""v_rcp_f32 v{T}, v{S0+1}
    s_nop 0""")
    for e in range(4):
        A(f"v_mul_f32 v{O0+e}, v{O0+e}, v{T}")
    for e in range(4):
        A(f"v_cvt_pk_bf16_f32 v{O0+e}, v{O0+e}, v{O0+e}")
    for rq in range(8):
        A(f"ds_bpermute_b32 v{XR+rq}, v{BP0 if rq < 4 else BP1}, v{O0+(rq&3)}")
    D = ACC
    for rq in range(8):
        A(f"s_waitcnt lgkmcnt({7-rq})")
        Ar = A0 if rq % 2 == 0 else A1
        for r in range(4):
            A(f"v_and_b32 v{Ar+r}, v{XR+rq}, v{M+r}")
        A("s_nop 1")
        c = "0" if rq == 0 else f"v[{D}:{D+3}]"
        A(f"v_mfma_f32_16x16x32_bf16 v[{D}:{D+3}], v[{Ar}:{Ar+3}], v[{WO+4*rq}:{WO+4*rq+3}], {c}")
    A(f"""s_lshl_b32 s47, s3, 10
    v_lshl_add_u32 v{T}, v1, 4, s47
    s_nop 7
    ds_write_b128 v{T}, v[{D}:{D+3}] offset:{L_YP}
    s_waitcnt lgkmcnt(0)
    s_barrier
    L_sdone:""")
    g.stamp(6)
    g.stamp_flush()
    A("s_endpgm")

    XP = 8; AX0 = 24; AX1 = 28; W = 32; DD = 160; T0, T1, T2, T3 = 164, 165, 166, 167
    TGV = 22
    A(f"""L_aux:
    s_setprio {prio}
    s_cmp_lt_u32 s96, 144
    s_cselect_b32 s97, 255, s97
    s_cmp_lt_u32 s96, 128
    s_cselect_b32 s97, s96, s97
    s_mul_i32 s69, s97, 205
    s_lshr_b32 s69, s69, 10
    s_mul_i32 s70, s69, 5
    s_sub_u32 s70, s97, s70
    s_mov_b32 s81, {(~TAGM) & 0xffffffff}
    s_mov_b32 s64, 0x01000100
    s_mov_b32 s65, 0x03020302
    v_lshrrev_b32 v{T0}, 4, v1
    v_and_b32 v{T1}, 7, v1
    v_bfe_u32 v{T2}, v1, 3, 1
    v_mul_u32_u24 v{T2}, 1280, v{T2}
    v_lshl_add_u32 v{T3}, v{T0}, 3, v{T1}
    v_lshl_add_u32 v{DD}, v{T3}, 4, v{T2}
    v_lshl_add_u32 v{DD+1}, v{T3}, 3, v{T2}
    s_lshl_b32 s47, s70, 8
    v_add_u32 v{DD+1}, s47, v{DD+1}
    v_mov_b32 v{XP+8}, 0
    v_mov_b32 v{XP+9}, 0
    v_mov_b32 v{XP+10}, 0
    v_mov_b32 v{XP+11}, 0
    v_mov_b32 v{XP+14}, 0""")
    A(f"""v_mul_u32_u24 v2, 393216, v{T0}
    v_and_b32 v{T1}, 15, v1
    v_lshl_add_u32 v2, v{T1}, 4, v2
    s_mul_i32 s47, s70, 1572864
    s_lshl_b32 s48, s69, 8
    s_add_u32 s47, s47, s48
    v_add_u32 v2, s47, v2
    v_mov_b32 v3, 0
    s_mov_b32 s62, 12288
    s_mov_b32 s63, 0
    s_waitcnt lgkmcnt(0)""")
    if stamps:
        A("v_writelane_b32 v168, s60, 0")
    A(f"""s_mul_i32 s47, s97, {cstride}
    s_add_u32 s47, s47, {WS_C}
    v_mov_b32 v{T1}, s47
    global_load_dwordx4 v[{XP}:{XP+3}], v{DD}, s[4:5]
    global_load_dwordx4 v[{XP+4}:{XP+7}], v{DD}, s[4:5] offset:512
    global_load_dwordx2 v[{XP+12}:{XP+13}], v{DD+1}, s[4:5]
    s_bfm_b64 exec, 32, 0
    global_load_dwordx4 v[{XP+8}:{XP+11}], v{DD}, s[4:5] offset:1024
    s_mov_b64 exec, -1
    v_lshl_add_u64 v[2:3], v[2:3], 0, s[10:11]
    s_cmp_ge_u32 s97, 240
    s_cbranch_scc1 L_noq1""")

    def tile_issue():
        for i in range(32):
            A(f"global_load_dwordx4 v[{W+4*i}:{W+4*i+3}], v[2:3], off{P}")
            if i < 31:
                A("v_lshl_add_u64 v[2:3], v[2:3], 0, s[62:63]")

    tile_issue()
    A(f"""s_mov_b64 exec, 1
    global_store_dword v{T1}, v{XP+14}, s[26:27] sc1
    s_mov_b64 exec, -1
    L_noq1:""")
    if b1 >= 32: A("s_barrier")
    A(f"""s_load_dword s80, s[26:27], {WS_E}
    s_lshl_b32 s68, s66, 3
    s_lshl_b32 s47, s67, 2
    s_add_u32 s68, s68, s47
    s_and_b32 s47, s2, 7
    s_lshr_b32 s47, s47, 1
    s_add_u32 s68, s68, s47
    s_lshl_b32 s68, s68, 10
    s_add_u32 s68, s68, {WS_O}
    s_lshl_b32 s74, s98, 10
    s_add_u32 s74, s74, {WS_Y}
    s_lshl_b32 s47, s96, 10
    s_add_u32 s75, s47, {WS_G}
    s_add_u32 s48, s47, {WS_Y + 120*1024}
    s_cmp_lt_u32 s96, 120
    s_cselect_b32 s75, s75, s48
    s_waitcnt lgkmcnt(0)
    s_add_u32 s82, s80, 1
    s_and_b32 s80, s82, {TAGM}
    s_cmp_ge_u32 s97, 240
    s_cbranch_scc1 L_qskip""")
    g.stamp(1)
    SUM, VAR, MEAN = T0, T1, T2
    A(f"""s_mov_b32 s47, 0x3f803f80
    v_mov_b32 v{SUM}, 0
    s_waitcnt vmcnt(33)""")
    for r in range(12):
        A(f"v_dot2c_f32_bf16 v{SUM}, s47, v{XP+r}")
    A("s_nop 2")

    def allred_stats(v, t):
        for ctl in ["quad_perm:[1,0,3,2]", "quad_perm:[2,3,0,1]", "row_half_mirror"]:
            g.dpp("v_add_f32", v, v, v, ctl)
            A("s_nop 1")
        g.allred_16_32("v_add_f32", v, t)

    allred_stats(SUM, T3)
    A(f"""v_mul_f32 v{MEAN}, 0x3acccccd, v{SUM}
    v_mov_b32 v{VAR}, 0""")
    for r in range(12):
        if r == 8:
            A("s_bfm_b64 exec, 32, 0")
        A(f"""v_lshlrev_b32 v{AX1}, 16, v{XP+r}
        v_and_b32 v{AX1+1}, 0xffff0000, v{XP+r}
        v_sub_f32 v{AX1}, v{AX1}, v{MEAN}
        v_sub_f32 v{AX1+1}, v{AX1+1}, v{MEAN}
        v_fmac_f32 v{VAR}, v{AX1}, v{AX1}
        v_fmac_f32 v{VAR}, v{AX1+1}, v{AX1+1}""")
    A("s_mov_b64 exec, -1\ns_nop 1")
    allred_stats(VAR, T3)
    A(f"v_mul_f32 v{VAR}, 0x3acccccd, v{VAR}")
    g.rbf(VAR)
    g.rbf(MEAN)
    A(f"v_add_f32 v{VAR}, 0x3727c5ac, v{VAR}")
    g.rbf(VAR)
    A(f"v_sqrt_f32 v{VAR}, v{VAR}\ns_nop 0")
    g.rbf(VAR)
    A(f"v_rcp_f32 v{VAR}, v{VAR}")
    for k in range(2):
        r = XP + 12 + k
        A(f"""v_lshlrev_b32 v{AX1}, 16, v{r}
        v_and_b32 v{AX1+1}, 0xffff0000, v{r}
        v_sub_f32 v{AX1}, v{AX1}, v{MEAN}
        v_sub_f32 v{AX1+1}, v{AX1+1}, v{MEAN}
        v_cvt_pk_bf16_f32 v{r}, v{AX1}, v{AX1+1}
        v_lshlrev_b32 v{AX1}, 16, v{r}
        v_and_b32 v{AX1+1}, 0xffff0000, v{r}
        v_mul_f32 v{AX1}, v{AX1}, v{VAR}
        v_mul_f32 v{AX1+1}, v{AX1+1}, v{VAR}
        v_cvt_pk_bf16_f32 v{r}, v{AX1}, v{AX1+1}""")

    def xbuf_roundtrip(src):
        A(f"""v_lshrrev_b32 v{T0}, 4, v1
        v_lshlrev_b32 v{T0}, 6, v{T0}
        v_and_b32 v{T1}, 8, v1
        v_lshl_add_u32 v{T0}, v{T1}, 5, v{T0}""")
        src()
        A("s_waitcnt lgkmcnt(0)")
        for j in range(4):
            A(f"ds_read_b128 v[{XP+4*j}:{XP+4*j+3}], v{T0} offset:{L_X+16*j}")
        A("s_waitcnt lgkmcnt(0)")

    def wr_x():
        A(f"""v_and_b32 v{T1}, 7, v1
        v_lshl_add_u32 v{T1}, v{T1}, 3, v{T0}
        ds_write_b64 v{T1}, v[{XP+12}:{XP+13}] offset:{L_X}""")

    xbuf_roundtrip(wr_x)

    def tile_compute(younger, bar=-1):
        for i in range(32):
            if i == bar:
                A("s_barrier")
            Ar = AX0 if i % 2 == 0 else AX1
            A(f"v_perm_b32 v{T3}, v{XP+(i>>1)}, v{XP+(i>>1)}, s{64+(i&1)}")
            for r in range(4):
                A(f"v_and_b32 v{Ar+r}, v{T3}, v{M+r}")
            A(f"s_waitcnt vmcnt({31-i+younger})")
            A("s_nop 0")
            c = "0" if i == 0 else f"v[{DD}:{DD+3}]"
            A(f"v_mfma_f32_16x16x32_bf16 v[{DD}:{DD+3}], v[{Ar}:{Ar+3}], v[{W+4*i}:{W+4*i+3}], {c}")

    def nat_off(dst, tmp):
        A(f"""v_and_b32 v{dst}, 15, v1
        v_lshlrev_b32 v{dst}, 5, v{dst}
        v_and_b32 v{tmp}, 16, v1
        v_add_u32 v{dst}, v{dst}, v{tmp}
        v_and_b32 v{tmp}, 32, v1
        v_lshl_add_u32 v{dst}, v{tmp}, 4, v{dst}""")

    g.stamp(2)
    tile_compute(1, bar=(b1 if b1 < 32 else -1))
    nat_off(T0, T1)
    A(f"""s_lshl_b32 s47, s97, 10
    v_add_u32 v{T0}, s47, v{T0}
    v_mov_b32 v{T1}, s80""")
    g.tagput(range(DD, DD + 4), T1)
    A(f"s_waitcnt vmcnt(0)\nglobal_store_dwordx4 v{T0}, v[{DD}:{DD+3}], s[26:27] sc1")
    g.stamp(3)
    if b1 < 32:
        A("s_branch L_qflag\nL_qskip:\ns_barrier")
    else:
        A("L_qskip:")
    A(f"""L_qflag:
    s_mul_i32 s47, s66, 192
    v_lshl_add_u32 v{T2}, v1, 2, s47
    v_lshrrev_b32 v{T3}, 7, v{T2}
    v_mul_u32_u24 v{T3}, 5120, v{T3}
    v_and_b32 v{T2}, 127, v{T2}
    v_lshl_add_u32 v{T3}, v{T2}, 2, v{T3}
    s_lshl_b32 s47, s67, 9
    s_add_u32 s47, s47, {WS_Q + 2048}
    v_add_u32 v{T3}, s47, v{T3}
    s_bfm_b64 s[86:87], 48, 0
    s_mov_b64 s[88:89], s[86:87]
    s_mov_b64 s[90:91], s[86:87]
    s_mov_b64 s[92:93], s[86:87]
    s_mov_b64 s[94:95], s[86:87]
    L_pollQ:""")
    for rb in range(5):
        A(f"s_mov_b64 exec, s[{86+2*rb}:{87+2*rb}]")
        l = g.lab("L_pq")
        A(f"s_cbranch_execz {l}")
        A(f"global_load_dwordx4 v[{W+4*rb}:{W+4*rb+3}], v{T3}, s[26:27] offset:{rb*1024-2048} sc1")
        A(f"{l}:")
    A("s_waitcnt vmcnt(0)")
    for rb in range(5):
        A(f"s_mov_b64 exec, s[{86+2*rb}:{87+2*rb}]")
        g.tagcheck(list(range(W + 4*rb, W + 4*rb + 4)), T2)
        A(f"s_mov_b64 s[{86+2*rb}:{87+2*rb}], vcc")
    A("""s_or_b64 s[50:51], s[86:87], s[88:89]
    s_or_b64 s[52:53], s[90:91], s[92:93]
    s_or_b64 s[50:51], s[50:51], s[94:95]
    s_or_b64 s[50:51], s[50:51], s[52:53]
    s_cbranch_scc0 L_gotQ""")
    g.spin("L_pollQ", "L_gotQ", qsleep)
    A("L_gotQ:\ns_bfm_b64 exec, 48, 0")
    g.stamp(5)
    A(f"v_lshlrev_b32 v{T0}, 3, v1")
    for rb in range(1, 5):
        for e in range(4):
            A(f"v_add_f32 v{W+e}, v{W+e}, v{W+4*rb+e}")
    A(f"""v_cvt_pk_bf16_f32 v{W}, v{W}, v{W+1}
    v_cvt_pk_bf16_f32 v{W+1}, v{W+2}, v{W+3}
    ds_write_b64 v{T0}, v[{W}:{W+1}] offset:{L_Q}
    s_mov_b64 exec, -1
    s_waitcnt lgkmcnt(0)
    s_barrier""")
    g.stamp(6)
    if noffn >= 2: A("s_branch L_ffn_done")
    if noffn == 1: A("s_cmp_ge_u32 s96, 120\ns_cbranch_scc1 L_ffn_done")
    A(f"""s_cmp_lt_u32 s96, 120
    s_cbranch_scc1 L_gtask
    s_cmp_lt_u32 s96, 180
    s_cbranch_scc0 L_ffn_done
    s_mul_i32 s69, s96, 205
    s_lshr_b32 s69, s69, 10
    s_mul_i32 s70, s69, 5
    s_sub_u32 s70, s96, s70""")
    A(f"""s_sub_u32 s76, s69, 24
    s_mul_i32 s47, s76, 10240
    s_add_u32 s47, s47, {WS_G + 4096}
    v_lshl_add_u32 v{T0}, v1, 4, s47
    v_add_u32 v{T1}, 5120, v{T0}
    L_pollG:""")
    for j in range(5):
        A(f"global_load_dwordx4 v[{W+4*j}:{W+4*j+3}], v{T0}, s[26:27] offset:{j*1024-4096} sc1")
    for j in range(5):
        A(f"global_load_dwordx4 v[{W+20+4*j}:{W+20+4*j+3}], v{T1}, s[26:27] offset:{j*1024-4096} sc1")
    A("s_waitcnt vmcnt(0)")
    g.tagcheck(list(range(W, W + 40)), T2)
    A("s_cbranch_vccz L_gotG")
    g.spin("L_pollG", "L_gotG", lsleep)
    A("L_gotG:")
    for f in range(2):
        for j in range(1, 5):
            for e in range(4):
                A(f"v_add_f32 v{W+20*f+e}, v{W+20*f+e}, v{W+20*f+4*j+e}")
    S0_, S1_ = W, W + 20
    GG, UU = W + 4, W + 8
    for e in range(4):
        A(f"v_mov_b32 v{GG+e}, v{S0_+e}\nv_mov_b32 v{UU+e}, v{S1_+e}")
    A("s_nop 1")
    for e in range(4):
        A(f"v_mov_b32_dpp v{GG+e}, v{S1_+e} row_ror:8 row_mask:0xf bank_mask:0xc")
        A(f"v_mov_b32_dpp v{UU+e}, v{S0_+e} row_ror:8 row_mask:0xf bank_mask:0x3")
    for e in range(4):
        gg, uu = GG + e, UU + e
        g.rbf(gg); g.rbf(uu)
        A(f"""v_mul_f32 v{T2}, v{gg}, v{gg}
        v_mul_f32 v{T2}, v{T2}, v{gg}
        v_mov_b32 v{T3}, v{gg}
        v_fmac_f32 v{T3}, 0x3d372713, v{T2}
        v_mul_f32 v{T3}, 0xc0135761, v{T3}
        v_exp_f32 v{T3}, v{T3}
        s_nop 0
        v_add_f32 v{T3}, 1.0, v{T3}
        v_rcp_f32 v{T3}, v{T3}
        s_nop 0
        v_mul_f32 v{gg}, v{gg}, v{T3}""")
        g.rbf(gg)
        A(f"v_mul_f32 v{gg}, v{gg}, v{uu}")
    A(f"""v_cvt_pk_bf16_f32 v{GG}, v{GG}, v{GG+1}
    v_cvt_pk_bf16_f32 v{GG+1}, v{GG+2}, v{GG+3}""")

    def wr_h():
        A(f"""v_and_b32 v{T1}, 15, v1
        v_lshlrev_b32 v{T1}, 4, v{T1}
        v_and_b32 v{T2}, 32, v1
        v_lshl_add_u32 v{T1}, v{T2}, 3, v{T1}
        v_bfe_u32 v{T2}, v1, 4, 1
        v_lshl_add_u32 v{T1}, v{T2}, 3, v{T1}
        ds_write_b64 v{T1}, v[{GG}:{GG+1}] offset:{L_X}""")

    xbuf_roundtrip(wr_h)
    A(f"""v_lshrrev_b32 v{T0}, 4, v1
    v_mul_u32_u24 v2, 40960, v{T0}
    v_and_b32 v{T1}, 15, v1
    v_lshl_add_u32 v2, v{T1}, 4, v2
    s_mul_i32 s47, s76, 163840
    s_lshl_b32 s48, s70, 8
    s_add_u32 s47, s47, s48
    v_add_u32 v2, s47, v2
    v_mov_b32 v3, 0
    s_mov_b32 s62, 1280
    v_lshl_add_u64 v[2:3], v[2:3], 0, s[20:21]""")
    nat_off(T2, T1)
    A(f"""v_add_u32 v{T2}, s75, v{T2}
    s_branch L_tile2
    L_gtask:
    v_lshrrev_b32 v{T0}, 4, v1
    v_mul_u32_u24 v2, 98304, v{T0}
    v_and_b32 v{T1}, 7, v1
    v_lshl_add_u32 v2, v{T1}, 4, v2
    s_mul_i32 s47, s70, 393216
    s_lshl_b32 s48, s69, 7
    s_add_u32 s47, s47, s48
    v_add_u32 v2, s47, v2
    v_mov_b32 v3, 0
    s_mov_b32 s62, 3072
    v_and_b32 v{T1}, 8, v1
    v_cmp_eq_u32 vcc, 0, v{T1}
    v_mov_b32 v{T0}, s18
    v_mov_b32 v{T1}, s19
    v_mov_b32 v{T2}, s16
    v_mov_b32 v{T3}, s17
    v_cndmask_b32 v{T0}, v{T0}, v{T2}, vcc
    v_cndmask_b32 v{T1}, v{T1}, v{T3}, vcc
    v_lshl_add_u64 v[2:3], v[2:3], 0, v[{T0}:{T1}]
    v_lshl_add_u32 v{T2}, v1, 4, s75
    L_tile2:""")
    assert T0 % 2 == 0
    tile_issue()
    tile_compute(0)
    A(f"v_mov_b32 v{T1}, s80\ns_nop 7")
    g.tagput(range(DD, DD + 4), T1)
    A(f"""global_store_dwordx4 v{T2}, v[{DD}:{DD+3}], s[26:27] sc1
    L_ffn_done:""")
    g.stamp(7)
    GV, XO, YA = 8, 12, 16
    A(f"""s_cmp_lt_u32 s96, 176
    s_cbranch_scc1 L_c_done
    s_sub_u32 s77, s96, 176
    s_cmp_ge_u32 s77, 40
    s_cselect_b32 s78, 1, 0
    s_mul_i32 s47, s78, 40
    s_sub_u32 s77, s77, s47
    s_lshr_b32 s47, s77, 3
    s_lshl_b32 s47, s47, 10
    s_and_b32 s48, s77, 7
    s_lshl_b32 s48, s48, 6
    s_add_u32 s47, s47, s48
    s_lshl_b32 s48, s78, 9
    s_add_u32 s47, s47, s48
    s_add_u32 s47, s47, {WS_Y}
    v_lshrrev_b32 v{T0}, 2, v1
    v_mul_u32_u24 v{T0}, 5120, v{T0}
    v_and_b32 v{T1}, 3, v1
    v_lshl_add_u32 v{T0}, v{T1}, 4, v{T0}
    v_add_u32 v{YA}, s47, v{T0}
    v_add_u32 v{YA+1}, 81920, v{YA}
    v_add_u32 v{YA+2}, 81920, v{YA+1}
    v_add_u32 v{T0}, 81920, v{YA+2}
    s_mul_i32 s47, s78, 1280
    s_lshl_b32 s48, s77, 5
    s_add_u32 s47, s47, s48
    v_lshl_add_u32 v{YA+3}, v{T1}, 3, s47
    global_load_dwordx2 v[{XO}:{XO+1}], v{YA+3}, s[4:5]
    v_mov_b32 v{GV}, 0
    v_mov_b32 v{GV+1}, 0
    v_mov_b32 v{GV+2}, 0
    v_mov_b32 v{GV+3}, 0
    {"s_branch L_gotF" if noffn else ""}
    s_bfm_b64 exec, 48, 0
    L_pollF:
    global_load_dwordx4 v[{GV}:{GV+3}], v{T0}, s[26:27] sc1
    s_waitcnt vmcnt(0)""")
    g.tagcheck(list(range(GV, GV + 4)), T2)
    A("s_cbranch_vccz L_gotF")
    g.spin("L_pollF", "L_gotF", lsleep)
    A("L_gotF:\ns_mov_b64 exec, -1\ns_nop 1")

    def red16(base):
        for ctl in ["row_ror:4", "row_ror:8"]:
            for e in range(4):
                g.dpp("v_add_f32", base + e, base + e, base + e, ctl)
        for sw in ["v_permlane16_swap_b32", "v_permlane32_swap_b32"]:
            for e in range(4):
                A(f"v_mov_b32 v{T0+e}, v{base+e}")
            for e in range(4):
                A(f"{sw} v{base+e}, v{T0+e}")
            for e in range(4):
                A(f"v_add_f32 v{base+e}, v{base+e}, v{T0+e}")

    red16(GV)
    A(f"""v_and_b32 v{XO+3}, 0xffff0000, v{XO+1}
    v_lshlrev_b32 v{XO+2}, 16, v{XO+1}
    v_and_b32 v{XO+1}, 0xffff0000, v{XO}
    v_lshlrev_b32 v{XO}, 16, v{XO}""")
    for e in range(4):
        g.rbf(GV + e)
        A(f"""v_mul_f32 v{T3}, 0xbfb8aa3b, v{GV+e}
        v_exp_f32 v{T3}, v{T3}
        s_nop 0
        v_add_f32 v{T3}, 1.0, v{T3}
        v_rcp_f32 v{T3}, v{T3}
        s_nop 0
        v_mul_f32 v{GV+e}, v{GV+e}, v{T3}""")
        g.rbf(GV + e)
    A("L_c_done:")
    g.stamp(8)
    if atest:
        A(f"""s_mul_i32 s47, s66, 3
        s_lshr_b32 s47, s47, 1
        s_mul_i32 s47, s47, 5
        s_add_u32 s47, s47, s67
        s_lshl_b32 s47, s47, 8
        s_add_u32 s83, s47, {WS_C + 128}
        v_mov_b32 v{T0}, s83
        v_mov_b32 v{T1}, 1
        s_mov_b32 s84, 16
        L_at:
        s_memtime s[60:61]
        s_waitcnt lgkmcnt(0)""")
        if atest == 1:
            A("""s_mov_b32 s85, 1
            s_atomic_add s85, s[26:27], s83 glc
            s_waitcnt lgkmcnt(0)""")
        elif atest == 2:
            A(f"""s_mov_b64 exec, 1
            global_atomic_add v{T2}, v{T0}, v{T1}, s[26:27] sc0 sc1
            s_waitcnt vmcnt(0)
            s_mov_b64 exec, -1""")
        else:
            A(f"""s_mov_b64 exec, 1
            global_load_dword v{T2}, v{T0}, s[26:27] sc1
            s_waitcnt vmcnt(0)
            s_mov_b64 exec, -1""")
        A(f"""s_memtime s[86:87]
        s_waitcnt lgkmcnt(0)
        s_sub_u32 s86, s86, s60
        s_mov_b32 m0, s84
        s_add_u32 s84, s84, 1
        v_writelane_b32 v168, s86, m0
        s_sleep 8
        s_cmp_lt_u32 s84, 26
        s_cbranch_scc1 L_at""")
    MA = 20
    A(f"""v_lshrrev_b32 v{MA}, 4, v1
    v_lshlrev_b32 v{MA}, 10, v{MA}
    v_bfe_u32 v{T0}, v1, 1, 3
    v_lshl_add_u32 v{MA}, v{T0}, 4, v{MA}
    v_and_b32 v{T0}, 1, v1
    v_lshl_add_u32 v{MA}, v{T0}, 8, v{MA}
    v_mov_b32 v{MA+1}, 0
    v_lshl_add_u32 v{MA+2}, v1, 4, s68
    v_mov_b32 v{MA+3}, s80
    v_cmp_eq_u32 s[50:51], 48, v1
    s_barrier
    ds_read_b128 v[{AX0}:{AX0+3}], v{MA+1} offset:{L_ST}
    ds_read_b128 v[{AX1}:{AX1+3}], v{MA+1} offset:{L_ST+16}""")
    g.stamp(9)
    for w in range(4):
        A(f"ds_read_b128 v[{W+8*w}:{W+8*w+3}], v{MA} offset:{L_ACC+3072*w}")
        A(f"ds_read_b128 v[{W+8*w+4}:{W+8*w+7}], v{MA} offset:{L_ACC+3072*w+640}")
    ms = [AX0, AX0 + 2, AX1, AX1 + 2]
    A(f"""s_waitcnt lgkmcnt(8)
    v_max_f32 v{T0}, v{ms[0]}, v{ms[1]}
    v_max3_f32 v{T0}, v{T0}, v{ms[2]}, v{ms[3]}
    v_and_b32 v{T0}, s81, v{T0}""")
    for w in range(4):
        A(f"v_sub_f32 v{ms[w]}, v{ms[w]}, v{T0}")
    for w in range(4):
        A(f"v_exp_f32 v{ms[w]}, v{ms[w]}")
    A(f"s_nop 0\nv_mul_f32 v{T1}, v{ms[0]}, v{ms[0]+1}")
    for w in range(1, 4):
        A(f"v_fmac_f32 v{T1}, v{ms[w]}, v{ms[w]+1}")
    for w in range(4):
        A(f"s_waitcnt lgkmcnt({6-2*w})")
        for e in range(4):
            A(f"v_add_f32 v{W+8*w+e}, v{W+8*w+e}, v{W+8*w+4+e}")
        for e in range(4):
            if w == 0:
                A(f"v_mul_f32 v{DD+e}, v{ms[0]}, v{W+e}")
            else:
                A(f"v_fmac_f32 v{DD+e}, v{ms[w]}, v{W+8*w+e}")
    A(f"""v_cndmask_b32 v{DD}, v{DD}, v{T0}, s[50:51]
    v_cndmask_b32 v{DD+1}, v{DD+1}, v{T1}, s[50:51]""")
    g.tagput(range(DD, DD + 4), MA + 3)
    A(f"""s_bfm_b64 exec, 49, 0
    global_store_dwordx4 v{MA+2}, v[{DD}:{DD+3}], s[26:27] sc1
    s_mov_b64 exec, -1""")
    g.stamp(10)
    A(f"""s_cmp_ge_u32 s98, 240
    s_cbranch_scc1 L_noy""")
    nat_off(MA + 1, T1)
    A(f"""v_add_u32 v{MA+1}, s74, v{MA+1}
    v_lshlrev_b32 v{MA}, 4, v1
    s_barrier""")
    for w in range(4):
        A(f"ds_read_b128 v[{W+4*w}:{W+4*w+3}], v{MA} offset:{L_YP+1024*w}")
    for w in range(1, 4):
        A(f"s_waitcnt lgkmcnt({3-w})")
        for e in range(4):
            A(f"v_add_f32 v{W+e}, v{W+e}, v{W+4*w+e}")
    g.tagput(range(W, W + 4), MA + 3)
    A(f"""global_store_dwordx4 v{MA+1}, v[{W}:{W+3}], s[26:27] sc1
    L_noy:""")
    g.stamp(11)
    A(f"""s_cmp_lt_u32 s96, 176
    s_cbranch_scc1 L_adone
    L_pollY:""")
    Y0 = W + 16
    for k in range(3):
        A(f"global_load_dwordx4 v[{Y0+4*k}:{Y0+4*k+3}], v{YA+k}, s[26:27] sc1")
    A("s_waitcnt vmcnt(0)")
    g.tagcheck(list(range(Y0, Y0 + 12)), T2)
    A("s_cbranch_vccz L_gotY")
    g.spin("L_pollY", "L_gotY")
    A("L_gotY:")
    g.stamp(12)
    for k in range(1, 3):
        for e in range(4):
            A(f"v_add_f32 v{Y0+e}, v{Y0+e}, v{Y0+4*k+e}")
    A("s_nop 0")
    red16(Y0)
    for e in range(4):
        g.rbf(Y0 + e)
    for e in range(4):
        A(f"v_mul_f32 v{Y0+e}, v{Y0+e}, v{GV+e}")
    for e in range(4):
        g.rbf(Y0 + e)
    for e in range(4):
        A(f"v_add_f32 v{Y0+e}, v{Y0+e}, v{XO+e}")
    A(f"""v_cvt_pk_bf16_f32 v{Y0}, v{Y0}, v{Y0+1}
    v_cvt_pk_bf16_f32 v{Y0+1}, v{Y0+2}, v{Y0+3}
    s_mov_b64 exec, 15
    global_store_dwordx2 v{YA+3}, v[{Y0}:{Y0+1}], s[22:23]
    s_cmp_lg_u32 s96, 255
    s_cbranch_scc1 L_adone
    s_mov_b64 exec, 1
    v_mov_b32 v{T0}, {WS_E}
    v_mov_b32 v{T1}, s82
    global_store_dword v{T0}, v{T1}, s[26:27]
    L_adone:
    s_mov_b64 exec, -1""")
    g.stamp(13)
    g.stamp_flush()
    A("L_end:\ns_endpgm")

    nv = 176 if stamps else 168
    out = [HDR + f"; @launch grid=(256,1,1) block=(320,1,1) lds={LDS_BYTES}",
           '.amdgcn_target "amdgcn-amd-amdhsa--gfx950"', ".text", f".globl {KN}", ".p2align 8",
           f".type {KN},@function", f"{KN}:"] + g.L + [
        '.section .rodata,"a"', ".p2align 6", f".amdhsa_kernel {KN}",
        f"  .amdhsa_next_free_vgpr {nv}", "  .amdhsa_next_free_sgpr 102", f"  .amdhsa_accum_offset {nv}",
        "  .amdhsa_group_segment_fixed_size 0", "  .amdhsa_kernarg_size 96", "  .amdhsa_user_sgpr_count 2",
        "  .amdhsa_user_sgpr_kernarg_segment_ptr 1", "  .amdhsa_system_sgpr_workgroup_id_x 1",
        "  .amdhsa_float_denorm_mode_32 3", ".end_amdhsa_kernel"]
    return "\n".join(out) + "\n"


if __name__ == "__main__":
    kw = {}
    for kv in sys.argv[2:]:
        k, v = kv.split("=")
        kw[k] = int(v) if v.lstrip("-").isdigit() else v.replace("+", " ")
    open(sys.argv[1], "w").write(gen(**kw))
```

```python
import sys
KN = "recurrent_scan__gqa_block_cached__geglu_ffn__decode_kernel"
HEADER = open("recurrent_scan__gqa_block_cached__geglu_ffn__decode.s.ref").read().split("; Override launch")[0] if False else None

HDR = """; Kernarg layout for this problem (96 bytes, ptrs only, base s[0:1]):
"""

WS_Q = 0x00000
WS_O = 0x40000
WS_Y = 0x80000
WS_G = 0x100000
WS_E = 0x3F000
WS_C = 0x400000
TAGM = 0x3ff
WS_STAMP = 0x200000
L_X = 0
L_Q = 512
L_ST = 960
L_YP = 1024
L_ACC = 5120
LDS_BYTES = 5120 + 12288 + 2048

LOG2E = 0x3FB8AA3B
SCALE = 0x3D93CD3A


class G:
    def __init__(self, stamps=False, pol="nt", sleep=2):
        self.L = []
        self.stamps = stamps
        self.pol = (" " + pol) if pol else ""
        self.sleep = sleep
        self.nlab = 0
        self.dbg = 0

    def A(self, s):
        for x in s.split("\n"):
            x = x.strip()
            if x:
                self.L.append("    " + x if not x.endswith(":") else x)

    def lab(self, p="L"):
        self.nlab += 1
        return f"{p}_{self.nlab}"

    def stamp(self, idx):
        if not self.stamps:
            return
        self.A(f"""s_memrealtime s[60:61]
        s_waitcnt lgkmcnt(0)
        v_writelane_b32 v168, s60, {idx}""")

    def stamp_flush(self, aux=False):
        if not self.stamps:
            return
        if self.dbg:
            sel = ([(2, 1, 0), (3, 3, 0), (6, 8, 0), (7, 9, 0), (8, 9, 1), (9, 10, 0), (11, 11, 0), (12, 12, 0), (13, 13, 0), (14, 2, 0)] if aux
                   else [(0, 0, 1), (1, 0, 0), (4, 2, 0), (5, 2, 1), (10, 5, 0), (15, 1, 0)])
            self.A("s_mov_b64 exec, 1")
            for slot, idx, inv in sel:
                l = self.lab("L_dbg")
                self.A(f"v_readlane_b32 s47, v168, {idx}\ns_nop 3\ns_cmp_eq_u32 s47, 0\ns_cbranch_scc1 {l}")
                if inv: self.A("s_not_b32 s47, s47")
                self.A(f"v_mov_b32 v169, s47\nv_mov_b32 v170, {slot*4}\nglobal_atomic_umax v170, v169, s[24:25]\n{l}:")
            self.A("s_mov_b64 exec, -1")
            return
        self.A(f"""s_getreg_b32 s47, hwreg(HW_REG_HW_ID)
        s_getreg_b32 s48, hwreg(HW_REG_XCC_ID)
        s_lshl_b32 s48, s48, 24
        s_and_b32 s47, s47, 0xffffff
        s_or_b32 s47, s47, s48
        s_or_b32 s47, s47, 0x80000000
        v_writelane_b32 v168, s47, 15
        s_mul_i32 s47, s2, 5
        s_add_u32 s47, s47, s79
        s_lshl_b32 s47, s47, 8
        s_add_u32 s47, s47, {WS_STAMP}
        v_lshl_add_u32 v169, v1, 2, s47
        global_store_dword v169, v168, s[26:27]
        s_mov_b64 exec, -1""")

    def spin(self, back, out, sleep=None):
        self.A(f"""s_sleep {self.sleep if sleep is None else sleep}
        s_sub_u32 s58, s58, 1
        s_cmp_gt_i32 s58, 0
        s_cbranch_scc1 {back}
        s_branch {out}""")

    def allred_16_32(self, op, v, t):
        self.A(f"""v_mov_b32 v{t}, v{v}
        s_nop 1
        v_permlane16_swap_b32 v{v}, v{t}
        s_nop 1
        {op} v{v}, v{v}, v{t}
        v_mov_b32 v{t}, v{v}
        s_nop 1
        v_permlane32_swap_b32 v{v}, v{t}
        s_nop 1
        {op} v{v}, v{v}, v{t}""")

    def dpp(self, op, d, a, b, ctl, bank="0xf"):
        self.A(f"{op}_dpp v{d}, v{a}, v{b} {ctl} row_mask:0xf bank_mask:{bank}")

    def tagcheck(self, regs, t):
        for r in regs:
            self.A(f"v_xor_b32 v{r}, s80, v{r}")
        self.A(f"v_or_b32 v{t}, v{regs[0]}, v{regs[1]}")
        for j in range(2, len(regs), 2):
            self.A(f"v_or3_b32 v{t}, v{t}, v{regs[j]}, v{regs[j+1]}")
        self.A(f"v_and_b32 v{t}, {TAGM}, v{t}\nv_cmp_ne_u32 vcc, 0, v{t}")

    def tagput(self, regs, tg, rnd=True):
        if rnd:
            for r in regs:
                self.A(f"v_add_u32 v{r}, {(TAGM+1)//2}, v{r}")
        for r in regs:
            self.A(f"v_and_or_b32 v{r}, v{r}, s81, v{tg}")

    def rbf(self, v):
        self.A(f"""v_cvt_pk_bf16_f32 v{v}, v{v}, v{v}
        v_and_b32 v{v}, 0xffff0000, v{v}""")


def gen(stamps=0, pol="nt", sleep=2, b1=16, prio=3, pace=3, dyn=2, lsleep=16, qsleep=0, nstat=15, rot=1, atest=0, mul=1, dummy=0, cstride=4224, noffn=0, fine=0, R=2, spread=1, th=224, wolate=1, dbg=0):
    g = G(stamps, pol, sleep)
    g.dbg = dbg
    A = g.A
    P = g.pol
    M = 4
    A(f"""s_cmp_ge_u32 s2, 256
    s_cbranch_scc1 L_end
    s_load_dwordx16 s[4:19], s[0:1], 0
    s_load_dwordx8 s[20:27], s[0:1], 64
    v_lshrrev_b32 v2, 6, v0
    v_and_b32 v1, 63, v0
    v_readfirstlane_b32 s3, v2""")
    if stamps:
        A("v_mov_b32 v168, 0")
        A("s_memrealtime s[60:61]")
    A(f"""v_and_b32 v2, 1, v1
    v_lshlrev_b32 v2, 4, v2
    v_mov_b32 v3, 0xffff
    v_lshlrev_b32 v2, v2, v3
    v_bfe_u32 v3, v1, 1, 2
    v_cmp_eq_u32 s[50:51], 0, v3
    v_cmp_eq_u32 s[52:53], 1, v3
    v_cmp_eq_u32 s[54:55], 2, v3
    v_cmp_eq_u32 s[56:57], 3, v3
    s_lshr_b32 s66, s2, 3
    s_and_b32 s47, s2, 7
    v_cndmask_b32 v{M}, 0, v2, s[50:51]
    v_cndmask_b32 v{M+1}, 0, v2, s[52:53]
    v_cndmask_b32 v{M+2}, 0, v2, s[54:55]
    v_cndmask_b32 v{M+3}, 0, v2, s[56:57]
    s_bcnt1_i32_b32 s67, s47
    s_and_b32 s67, s67, 1
    s_lshr_b32 s48, s47, 1
    s_mov_b32 s46, {LOG2E}
    s_mov_b32 s58, 400000
    s_mov_b32 s79, s3""")
    if spread:
        A("""s_add_u32 s96, s48, s66
        s_and_b32 s96, s96, 3
        s_lshr_b32 s97, s66, 2
        s_add_u32 s97, s97, s67
        s_and_b32 s97, s97, 1
        s_lshl_b32 s96, s96, 6
        s_lshl_b32 s97, s97, 5
        s_add_u32 s96, s96, s97
        s_add_u32 s96, s96, s66""")
    else:
        A("s_mov_b32 s96, s2")
    A("""s_sub_u32 s97, s96, 16
    s_cmp_lt_u32 s97, 16
    s_cselect_b32 s98, 255, s97
    s_cmp_lt_u32 s96, 16
    s_cselect_b32 s98, s96, s98
    s_cmp_eq_u32 s3, 0
    s_cbranch_scc1 L_aux
    s_mul_i32 s69, s98, 205
    s_lshr_b32 s69, s69, 10
    s_mul_i32 s70, s69, 5
    s_sub_u32 s70, s98, s70
    s_sub_u32 s3, s3, 1""")
    Q = 8; ACC = 20; A0 = 32; A1 = 36
    SA, SB, T, MM, MC, LL, PA, PB = 40, 41, 42, 43, 44, 45, 46, 47
    KA, VA, KB, VB = 48, 72, 96, 120
    A(f"""s_lshl_b32 s42, s48, 2
    s_add_u32 s42, s42, s3
    s_lshl_b32 s40, s67, 5
    s_add_u32 s40, s40, s66
    s_mul_i32 s40, s40, 1572864
    s_mov_b32 s41, 0
    v_lshrrev_b32 v2, 3, v1
    v_mul_u32_u24 v2, 384, v2
    v_and_b32 v3, 7, v1
    v_lshl_add_u32 v2, v3, 4, v2
    s_waitcnt lgkmcnt(0)""")
    if stamps:
        A("v_writelane_b32 v168, s60, 0")
    A(f"""s_mov_b32 s28, s6
    s_mov_b32 s29, s7
    s_mov_b32 s30, 100663296
    s_mov_b32 s31, 0x20000
    s_mov_b32 s32, s8
    s_mov_b32 s33, s9
    s_mov_b32 s34, 100663296
    s_mov_b32 s35, 0x20000""")
    A("s_barrier")
    OFFS = [0, 128, 256, 3072, 3200, 3328]

    def loads6(base, srd, sreg, paced=False, part=None):
        for j, o in enumerate(OFFS):
            if part is not None and j // 3 != part: continue
            if paced and j % 3 == 0:
                A(f"s_waitcnt vmcnt({pace})")
            A(f"buffer_load_dwordx4 v[{base+4*j}:{base+4*j+3}], v2, s[{srd}:{srd+3}], s{sreg} offen offset:{o}{P}")

    GV_, GA, GD = 144, 145, 146
    A(f"""s_mul_i32 s44, s42, {mul}
    s_and_b32 s44, s44, 255
    s_mul_i32 s44, s44, 6144
    s_add_u32 s44, s44, s40
    s_add_u32 s47, s42, 4
    s_and_b32 s47, s47, 15
    s_add_u32 s47, s47, 16
    s_mul_i32 s47, s47, {mul}
    s_and_b32 s47, s47, 255
    s_mul_i32 s43, s47, 6144
    s_add_u32 s43, s43, s40""")
    loads6(KB, 28, 44, True); loads6(VB, 32, 44, True)
    if R:
        assert dyn == 2
        for j in range(R):
            loads6(KA if j < 2 else VA, 28 if j < 2 else 32, 43, True, part=j & 1)
    else:
        loads6(KA, 28, 43, True)
        if dyn != 2:
            A(f"buffer_load_dword v{GA}, v2, s[28:31], s43 offen{P}")
        loads6(VA, 32, 43, True)
    g.stamp(1)
    A(f"""s_add_u32 s47, s42, 8
    s_and_b32 s47, s47, 15
    s_sub_u32 s47, s47, 16
    v_mov_b32 v{GV_}, s47
    s_add_u32 s85, s47, {48 - 16*nstat}
    s_mov_b32 s41, 3
    s_add_u32 s48, s42, 12
    s_and_b32 s48, s48, 15
    s_add_u32 s48, s48, 240
    s_mul_i32 s48, s48, 6144
    s_add_u32 s44, s40, s48
    s_mov_b32 s99, 0
    s_mov_b32 s100, -1
    s_mov_b32 s45, 0
    s_mov_b32 s84, 16""")
    A(f"""s_load_dword s80, s[26:27], {WS_E}
    s_mov_b32 s36, s12
    s_mov_b32 s37, s13
    s_mov_b32 s38, 7864320
    s_mov_b32 s39, 0x20000
    s_lshl_b32 s71, s69, 2
    s_add_u32 s71, s71, s3
    s_mul_i32 s72, s71, 40960
    s_lshl_b32 s47, s70, 8
    s_add_u32 s72, s72, s47
    v_lshrrev_b32 v3, 4, v1
    v_mul_u32_u24 v3, 10240, v3
    v_and_b32 v{T}, 15, v1
    v_lshl_add_u32 v3, v{T}, 4, v3
    s_cmp_ge_u32 s98, 240
    s_cselect_b32 s47, 0x40000000, 0
    s_cselect_b32 s72, 0, s72
    v_add_u32 v3, s47, v3""")
    for r in range(12):
        A(f"v_mov_b32 v{ACC+r}, 0")
    A(f"""v_mov_b32 v{MM}, 0xff800000
    v_mov_b32 v{MC}, 0xff800000
    v_mov_b32 v{LL}, 0
    v_and_b32 v{T}, 7, v1
    v_lshlrev_b32 v{T}, 4, v{T}
    s_barrier
    ds_read_b128 v[{Q}:{Q+3}], v{T} offset:{L_Q}
    ds_read_b128 v[{Q+4}:{Q+7}], v{T} offset:{L_Q+128}
    ds_read_b128 v[{Q+8}:{Q+11}], v{T} offset:{L_Q+256}
    s_mul_i32 s47, s66, 3
    s_lshr_b32 s47, s47, 1
    s_mul_i32 s47, s47, 5
    s_add_u32 s47, s47, s67
    s_mul_i32 s47, s47, {cstride}
    s_add_u32 s83, s47, {WS_C}
    v_mov_b32 v{GD}, 1
    s_waitcnt lgkmcnt(0)""")
    g.stamp(2)

    WO = KA if R else KB

    def wo_load(j):
        dst = WO + 4 * j
        o = j * 1280
        if o < 4096:
            A(f"buffer_load_dwordx4 v[{dst}:{dst+3}], v3, s[36:39], s72 offen offset:{o}{P}")
        else:
            A(f"buffer_load_dwordx4 v[{dst}:{dst+3}], v3, s[36:39], s73 offen offset:{o-5120}{P}")

    def unit(K, V, sreg, mode):
        w = {'loop': (10, 7, 10, 7), 'first': (22, 19, 16, 13)}[mode]
        if dyn == 2:
            w = tuple(x - 1 for x in w)
            if mode == 'loop' and stamps: A("s_memrealtime s[60:61]")
        fn = fine and mode == 'loop' and dyn == 2
        if fn: w = (9, 9, 9, 9)
        A(f"""v_mov_b32 v{SA}, 0
        v_mov_b32 v{SB}, 0
        s_waitcnt vmcnt({w[0]})""")
        for r in range(12):
            A(f"v_dot2c_f32_bf16 v{SA}, v{K+r}, v{Q+r}")

        def kb_dots():
            A(f"s_waitcnt vmcnt({w[1]})")
            for r in range(12):
                A(f"v_dot2c_f32_bf16 v{SB}, v{K+12+r}, v{Q+r}")
        if not fn: kb_dots()
        if mode == 'loop' and dyn == 2:
            if stamps == 2: A("s_memtime s[86:87]")
            A("s_waitcnt lgkmcnt(0)")
            if stamps == 2:
                A("""s_memtime s[88:89]
                s_waitcnt lgkmcnt(0)
                s_sub_u32 s88, s88, s86
                s_add_u32 s86, s84, 24
                s_mov_b32 m0, s86
                s_nop 0
                v_writelane_b32 v168, s88, m0""")
            if stamps:
                A(f"""s_mov_b32 m0, s84
                s_add_u32 s84, s84, 1
                s_min_u32 s84, s84, {39 if stamps == 2 else 63}
                v_writelane_b32 v168, s60, m0""")
            A(f"""s_add_u32 s47, s85, {16*nstat}
            s_cmp_ge_u32 s47, 256
            s_cbranch_scc1 L_fin
            s_mul_i32 s48, s47, {mul}
            s_and_b32 s48, s48, 255
            s_mul_i32 s48, s48, 6144
            s_add_u32 s{sreg}, s40, s48""")
            if fn:
                loads6(K, 28, sreg, part=0); kb_dots(); loads6(K, 28, sreg, part=1)
            else:
                loads6(K, 28, sreg)
            if nstat > 3:
                if rot:
                    A(f"""s_add_u32 s48, s47, 4
                    s_and_b32 s48, s48, 15
                    s_andn2_b32 s47, s47, 15
                    s_add_u32 s47, s47, s48""")
                A(f"""s_add_u32 s85, s47, {(16 - 16*nstat) & 0xffffffff}
                s_add_u32 s41, s41, 1
                s_cmp_le_u32 s41, {nstat}""")
                if dummy == 1: A("s_mov_b32 s90, 1\ns_atomic_add s90, s[26:27], s83 glc")
                if dummy == 2: A("s_load_dword s90, s[26:27], s83 glc")
                if dummy == 3: A("s_mov_b32 s90, 1\ns_atomic_add s90, s[26:27], s83")
                A("s_cbranch_scc1 L_back")
            if nstat < 16:
                A("""s_mov_b32 s85, 1
                s_atomic_add s85, s[26:27], s83 glc""")
            A("L_back:")
        elif mode == 'loop':
            A(f"""s_waitcnt vmcnt(6)
            v_readfirstlane_b32 s47, v{GV_}
            v_mov_b32 v{GA}, s83
            s_add_u32 s47, s47, 48
            s_cmp_ge_u32 s47, 256
            s_cbranch_scc1 L_fin
            s_mul_i32 s47, s47, 6144
            s_add_u32 s{sreg}, s40, s47""")
            loads6(K, 28, sreg)
            if dyn:
                A(f"""s_mov_b64 exec, 1
                global_atomic_add v{GV_}, v{GA}, v{GD}, s[26:27] sc0 sc1
                s_mov_b64 exec, -1""")
            else:
                A(f"""buffer_load_dword v{GA}, v2, s[28:31], s43 offen{P}
                v_add_u32 v{GV_}, 16, v{GV_}""")
            A("L_back:")
            if stamps: A("s_memrealtime s[60:61]")
        else:
            A("s_nop 2")
        for ctl in ["quad_perm:[1,0,3,2]", "quad_perm:[2,3,0,1]", "row_half_mirror"]:
            g.dpp("v_add_f32", SA, SA, SA, ctl)
            g.dpp("v_add_f32", SB, SB, SB, ctl)
            A("s_nop 0")
        skip = g.lab("L_skip")
        A(f"""v_cvt_pk_bf16_f32 v{T}, v{SA}, v{SB}
        v_lshlrev_b32 v{SA}, 16, v{T}
        v_and_b32 v{SB}, 0xffff0000, v{T}
        v_mul_f32 v{SA}, {SCALE}, v{SA}
        v_mul_f32 v{SB}, {SCALE}, v{SB}
        v_cvt_pk_bf16_f32 v{T}, v{SA}, v{SB}
        v_lshlrev_b32 v{SA}, 16, v{T}
        v_and_b32 v{SB}, 0xffff0000, v{T}
        v_max_f32 v{T}, v{SA}, v{SB}
        v_cmp_gt_f32 vcc, v{T}, v{MM}
        s_cbranch_vccz {skip}""")
        g.dpp("v_max_f32", T, T, T, "row_ror:8")
        g.allred_16_32("v_max_f32", T, PA)
        A(f"""v_max_f32 v{MM}, v{MM}, v{T}
        v_mul_f32 v{PA}, s46, v{MM}
        v_sub_f32 v{PB}, v{MC}, v{PA}
        v_exp_f32 v{PB}, v{PB}
        v_mov_b32 v{MC}, v{PA}
        v_mul_f32 v{LL}, v{LL}, v{PB}""")
        for r in range(12):
            A(f"v_mul_f32 v{ACC+r}, v{ACC+r}, v{PB}")
        A(f"""{skip}:
        v_fma_f32 v{PA}, v{SA}, s46, -v{MC}
        v_fma_f32 v{PB}, v{SB}, s46, -v{MC}
        v_exp_f32 v{PA}, v{PA}
        v_exp_f32 v{PB}, v{PB}
        s_nop 0
        v_add_f32 v{LL}, v{LL}, v{PA}
        v_cvt_pk_bf16_f32 v{PA}, v{PA}, v{PA}
        v_add_f32 v{LL}, v{LL}, v{PB}
        v_cvt_pk_bf16_f32 v{PB}, v{PB}, v{PB}""")
        for r in range(4):
            A(f"v_and_b32 v{A0+r}, v{PA}, v{M+r}")
        for r in range(4):
            A(f"v_and_b32 v{A1+r}, v{PB}, v{M+r}")
        A(f"s_waitcnt vmcnt({w[2]})")
        for t in range(3):
            A(f"v_mfma_f32_16x16x32_bf16 v[{ACC+4*t}:{ACC+4*t+3}], v[{A0}:{A0+3}], v[{V+4*t}:{V+4*t+3}], v[{ACC+4*t}:{ACC+4*t+3}]")
        if fn:
            A("s_cmp_lg_u32 s45, 0\ns_cbranch_scc1 L_exit0")
            loads6(V, 32, sreg, part=0)
            A("L_back2:")
        A(f"s_waitcnt vmcnt({w[3]})")
        for t in range(3):
            A(f"v_mfma_f32_16x16x32_bf16 v[{ACC+4*t}:{ACC+4*t+3}], v[{A1}:{A1+3}], v[{V+12+4*t}:{V+12+4*t+3}], v[{ACC+4*t}:{ACC+4*t+3}]")
        if mode == 'loop':
            if stamps and dyn != 2:
                A("""s_waitcnt lgkmcnt(0)
                s_mov_b32 m0, s84
                s_add_u32 s84, s84, 1
                s_min_u32 s84, s84, 63
                v_writelane_b32 v168, s60, m0""")
            A("""s_cmp_lg_u32 s45, 0
            s_cbranch_scc1 L_exit""")
            loads6(V, 32, sreg, part=(1 if fn else None))
            A("s_branch L_loop")

    def softmax_part():
        for ctl in ["quad_perm:[1,0,3,2]", "quad_perm:[2,3,0,1]", "row_half_mirror"]:
            g.dpp("v_add_f32", SA, SA, SA, ctl)
            g.dpp("v_add_f32", SB, SB, SB, ctl)
            A("s_nop 0")
        skip = g.lab("L_skip")
        A(f"""v_cvt_pk_bf16_f32 v{T}, v{SA}, v{SB}
        v_lshlrev_b32 v{SA}, 16, v{T}
        v_and_b32 v{SB}, 0xffff0000, v{T}
        v_mul_f32 v{SA}, {SCALE}, v{SA}
        v_mul_f32 v{SB}, {SCALE}, v{SB}
        v_cvt_pk_bf16_f32 v{T}, v{SA}, v{SB}
        v_lshlrev_b32 v{SA}, 16, v{T}
        v_and_b32 v{SB}, 0xffff0000, v{T}
        v_max_f32 v{T}, v{SA}, v{SB}
        v_cmp_gt_f32 vcc, v{T}, v{MM}
        s_cbranch_vccz {skip}""")
        g.dpp("v_max_f32", T, T, T, "row_ror:8")
        g.allred_16_32("v_max_f32", T, PA)
        A(f"""v_max_f32 v{MM}, v{MM}, v{T}
        v_mul_f32 v{PA}, s46, v{MM}
        v_sub_f32 v{PB}, v{MC}, v{PA}
        v_exp_f32 v{PB}, v{PB}
        v_mov_b32 v{MC}, v{PA}
        v_mul_f32 v{LL}, v{LL}, v{PB}""")
        for r in range(12):
            A(f"v_mul_f32 v{ACC+r}, v{ACC+r}, v{PB}")
        A(f"""{skip}:
        v_fma_f32 v{PA}, v{SA}, s46, -v{MC}
        v_fma_f32 v{PB}, v{SB}, s46, -v{MC}
        v_exp_f32 v{PA}, v{PA}
        v_exp_f32 v{PB}, v{PB}
        s_nop 0
        v_add_f32 v{LL}, v{LL}, v{PA}
        v_cvt_pk_bf16_f32 v{PA}, v{PA}, v{PA}
        v_add_f32 v{LL}, v{LL}, v{PB}
        v_cvt_pk_bf16_f32 v{PB}, v{PB}, v{PB}""")
        for r in range(4):
            A(f"v_and_b32 v{A0+r}, v{PA}, v{M+r}")
        for r in range(4):
            A(f"v_and_b32 v{A1+r}, v{PB}, v{M+r}")

    def consume(j, K, V):
        if j < 2:
            for r in range(12):
                A(f"v_dot2c_f32_bf16 v{SA+j}, v{K+12*j+r}, v{Q+r}")
        else:
            Ar = A0 if j == 2 else A1
            for t in range(3):
                b = V + 12 * (j - 2) + 4 * t
                A(f"v_mfma_f32_16x16x32_bf16 v[{ACC+4*t}:{ACC+4*t+3}], v[{Ar}:{Ar+3}], v[{b}:{b+3}], v[{ACC+4*t}:{ACC+4*t+3}]")

    if R:
        assert R == 2
        A("L_F:")
        A(f"v_mov_b32 v{SA}, 0\nv_mov_b32 v{SB}, 0")
        for j in range(4):
            if j == 2:
                A("s_nop 2"); softmax_part()
            A(f"s_waitcnt vmcnt({15 - 3*j})")
            consume(j, KB, VB)
        A("s_cmp_lg_u32 s45, 0\ns_cbranch_scc1 L_exit")
        A("L_loop:")
        if stamps: A("s_memrealtime s[60:61]")
        A(f"v_mov_b32 v{SA}, 0\nv_mov_b32 v{SB}, 0\ns_waitcnt vmcnt(3)")
        consume(0, KA, VA)
        loads6(VA, 32, 43, part=0)
        A("s_waitcnt vmcnt(3)")
        consume(1, KA, VA)
        loads6(VA, 32, 43, part=1)
        A(f"s_cmp_ge_u32 s99, {th}\ns_cbranch_scc1 L_early\nL_early_ret:")
        softmax_part()
        A("s_waitcnt vmcnt(3)")
        consume(2, KA, VA)
        A("s_waitcnt lgkmcnt(0)")
        if stamps:
            A("""s_mov_b32 m0, s84
            s_add_u32 s84, s84, 1
            s_min_u32 s84, s84, 63
            v_writelane_b32 v168, s60, m0""")
        A(f"""s_add_u32 s47, s85, {16*nstat}
        s_cmp_ge_u32 s47, 240
        s_cbranch_scc1 L_last
        s_mul_i32 s48, s47, 6144
        s_add_u32 s43, s40, s48""")
        loads6(KA, 28, 43, part=0)
        A(f"""s_and_b32 s99, s47, s100
        s_add_u32 s48, s47, 4
        s_and_b32 s48, s48, 15
        s_andn2_b32 s47, s47, 15
        s_add_u32 s47, s47, s48
        s_add_u32 s85, s47, {(16 - 16*nstat) & 0xffffffff}""")
        if nstat < 15:
            A(f"""s_add_u32 s41, s41, 1
            s_cmp_le_u32 s41, {nstat}
            s_cbranch_scc1 L_ret2
            s_mov_b32 s85, 1
            s_atomic_add s85, s[26:27], s83 glc
            L_ret2:""")
        A("s_waitcnt vmcnt(3)")
        consume(3, KA, VA)
        loads6(KA, 28, 43, part=1)
        A("s_branch L_loop")
        A("L_early:\ns_mov_b32 s100, 0")
        loads6(KB, 28, 44); loads6(VB, 32, 44)
        A("s_branch L_early_ret")
        A("L_last:")
        g.stamp(3)
        A("""s_mov_b32 s45, 1
        s_add_u32 s73, s72, 5120
        s_cmp_eq_u32 s100, 0
        s_cbranch_scc1 L_last2""")
        loads6(KB, 28, 44); loads6(VB, 32, 44)
        A("L_last2:")
        if wolate:
            A(f"v_mov_b32 v{GA}, 0x7ff00000")
            for j in range(6): A(f"buffer_load_dword v{GV_}, v{GA}, s[36:39], 0 offen")
        else:
            for j in range(6): wo_load(j)
        A("s_cmp_eq_u32 s100, 0\ns_cbranch_scc1 L_last3\ns_waitcnt vmcnt(18)\ns_branch L_last4\nL_last3:\ns_waitcnt vmcnt(6)\nL_last4:")
        consume(3, KA, VA)
        A("s_branch L_F")
        A("L_exit:")
        for j in range(0 if wolate else 6, 8): wo_load(j)
    else:
        unit(KB, VB, 44, 'first')
        A("L_loop:")
        unit(KA, VA, 43, 'loop')
        A("L_fin:\ns_add_u32 s73, s72, 5120\ns_mov_b32 s45, 1")
        for j in range(6 if dyn == 2 else 7): wo_load(j)
        A("s_branch L_back\nL_exit:")
        if dyn == 2: wo_load(6)
        wo_load(7)
    g.stamp(4)
    g.dpp("v_add_f32", LL, LL, LL, "row_ror:8")
    g.allred_16_32("v_add_f32", LL, T)
    A(f"""s_mul_i32 s47, s3, 3072
    v_lshl_add_u32 v{T}, v1, 4, s47
    s_lshl_b32 s47, s3, 3
    v_mov_b32 v{PA}, s47
    ds_write_b128 v{T}, v[{ACC}:{ACC+3}] offset:{L_ACC}
    ds_write_b128 v{T}, v[{ACC+4}:{ACC+7}] offset:{L_ACC+1024}
    ds_write_b128 v{T}, v[{ACC+8}:{ACC+11}] offset:{L_ACC+2048}
    ds_write_b64 v{PA}, v[{MC}:{LL}] offset:{L_ST}""")
    assert LL == MC + 1 and MC % 2 == 0
    OA, OS, BP0, BP1 = 104, 105, 106, 107
    O0, S0 = 108, 112
    TG = 92
    XR = 96
    A(f"""s_mul_i32 s47, s71, 171
    s_lshr_b32 s47, s47, 10
    s_mul_i32 s48, s47, 6
    s_sub_u32 s48, s71, s48
    s_lshl_b32 s47, s47, 13
    s_add_u32 s47, s47, {WS_O}
    v_and_b32 v{OS}, 7, v1
    v_lshl_add_u32 v{OS}, v{OS}, 10, s47
    v_lshrrev_b32 v{OA}, 3, v1
    s_lshl_b32 s48, s48, 7
    v_lshl_add_u32 v{OA}, v{OA}, 4, s48
    v_add_u32 v{OA}, v{OA}, v{OS}
    v_lshrrev_b32 v{BP0}, 4, v1
    v_lshlrev_b32 v{BP0}, 6, v{BP0}
    v_and_b32 v{BP1}, 8, v1
    v_lshl_add_u32 v{BP0}, v{BP1}, 1, v{BP0}
    v_add_u32 v{BP1}, 32, v{BP0}
    s_add_u32 s80, s80, 1
    s_and_b32 s80, s80, {TAGM}
    s_waitcnt lgkmcnt(0)
    s_barrier
    s_cmp_ge_u32 s98, 240
    s_cbranch_scc1 L_sdone
    L_pollO:
    global_load_dwordx4 v[{O0}:{O0+3}], v{OA}, s[26:27] sc1
    global_load_dwordx4 v[{S0}:{S0+3}], v{OS}, s[26:27] offset:768 sc1
    s_waitcnt vmcnt(0)""")
    g.tagcheck(list(range(O0, O0 + 8)), T)
    A("s_cbranch_vccz L_gotO")
    g.spin("L_pollO", "L_gotO")
    A("L_gotO:")
    g.stamp(5)
    A(f"v_mov_b32 v{T}, v{S0}\ns_nop 1")
    g.dpp("v_max_f32", T, T, T, "quad_perm:[1,0,3,2]")
    A("s_nop 1")
    g.dpp("v_max_f32", T, T, T, "quad_perm:[2,3,0,1]")
    A(f"""v_sub_f32 v{T}, v{S0}, v{T}
    v_exp_f32 v{T}, v{T}
    s_nop 0
    v_mul_f32 v{S0+1}, v{S0+1}, v{T}""")
    for e in range(4):
        A(f"v_mul_f32 v{O0+e}, v{O0+e}, v{T}")
    for ctl in ["quad_perm:[1,0,3,2]", "quad_perm:[2,3,0,1]"]:
        g.dpp("v_add_f32", S0 + 1, S0 + 1, S0 + 1, ctl)
        for e in range(4):
            g.dpp("v_add_f32", O0 + e, O0 + e, O0 + e, ctl)
    A(f"""v_rcp_f32 v{T}, v{S0+1}
    s_nop 0""")
    for e in range(4):
        A(f"v_mul_f32 v{O0+e}, v{O0+e}, v{T}")
    for e in range(4):
        A(f"v_cvt_pk_bf16_f32 v{O0+e}, v{O0+e}, v{O0+e}")
    for rq in range(8):
        A(f"ds_bpermute_b32 v{XR+rq}, v{BP0 if rq < 4 else BP1}, v{O0+(rq&3)}")
    D = ACC
    for rq in range(8):
        A(f"s_waitcnt lgkmcnt({7-rq})")
        Ar = A0 if rq % 2 == 0 else A1
        for r in range(4):
            A(f"v_and_b32 v{Ar+r}, v{XR+rq}, v{M+r}")
        A("s_nop 1")
        c = "0" if rq == 0 else f"v[{D}:{D+3}]"
        A(f"v_mfma_f32_16x16x32_bf16 v[{D}:{D+3}], v[{Ar}:{Ar+3}], v[{WO+4*rq}:{WO+4*rq+3}], {c}")
    A(f"""s_lshl_b32 s47, s3, 10
    v_lshl_add_u32 v{T}, v1, 4, s47
    s_nop 7
    ds_write_b128 v{T}, v[{D}:{D+3}] offset:{L_YP}
    s_waitcnt lgkmcnt(0)
    s_barrier
    L_sdone:""")
    g.stamp(6)
    g.stamp_flush()
    A("s_endpgm")

    XP = 8; AX0 = 24; AX1 = 28; W = 32; DD = 160; T0, T1, T2, T3 = 164, 165, 166, 167
    TGV = 22
    A(f"""L_aux:
    s_setprio {prio}
    s_cmp_lt_u32 s96, 144
    s_cselect_b32 s97, 255, s97
    s_cmp_lt_u32 s96, 128
    s_cselect_b32 s97, s96, s97
    s_mul_i32 s69, s97, 205
    s_lshr_b32 s69, s69, 10
    s_mul_i32 s70, s69, 5
    s_sub_u32 s70, s97, s70
    s_mov_b32 s81, {(~TAGM) & 0xffffffff}
    s_mov_b32 s64, 0x01000100
    s_mov_b32 s65, 0x03020302
    v_lshrrev_b32 v{T0}, 4, v1
    v_and_b32 v{T1}, 7, v1
    v_bfe_u32 v{T2}, v1, 3, 1
    v_mul_u32_u24 v{T2}, 1280, v{T2}
    v_lshl_add_u32 v{T3}, v{T0}, 3, v{T1}
    v_lshl_add_u32 v{DD}, v{T3}, 4, v{T2}
    v_lshl_add_u32 v{DD+1}, v{T3}, 3, v{T2}
    s_lshl_b32 s47, s70, 8
    v_add_u32 v{DD+1}, s47, v{DD+1}
    v_mov_b32 v{XP+8}, 0
    v_mov_b32 v{XP+9}, 0
    v_mov_b32 v{XP+10}, 0
    v_mov_b32 v{XP+11}, 0
    v_mov_b32 v{XP+14}, 0""")
    A(f"""v_mul_u32_u24 v2, 393216, v{T0}
    v_and_b32 v{T1}, 15, v1
    v_lshl_add_u32 v2, v{T1}, 4, v2
    s_mul_i32 s47, s70, 1572864
    s_lshl_b32 s48, s69, 8
    s_add_u32 s47, s47, s48
    v_add_u32 v2, s47, v2
    v_mov_b32 v3, 0
    s_mov_b32 s62, 12288
    s_mov_b32 s63, 0
    s_waitcnt lgkmcnt(0)""")
    if stamps:
        A("v_writelane_b32 v168, s60, 0")
    A(f"""s_mul_i32 s47, s97, {cstride}
    s_add_u32 s47, s47, {WS_C}
    v_mov_b32 v{T1}, s47
    global_load_dwordx4 v[{XP}:{XP+3}], v{DD}, s[4:5]
    global_load_dwordx4 v[{XP+4}:{XP+7}], v{DD}, s[4:5] offset:512
    global_load_dwordx2 v[{XP+12}:{XP+13}], v{DD+1}, s[4:5]
    s_bfm_b64 exec, 32, 0
    global_load_dwordx4 v[{XP+8}:{XP+11}], v{DD}, s[4:5] offset:1024
    s_mov_b64 exec, -1
    v_lshl_add_u64 v[2:3], v[2:3], 0, s[10:11]
    s_cmp_ge_u32 s97, 240
    s_cbranch_scc1 L_noq1""")

    def tile_issue():
        for i in range(32):
            A(f"global_load_dwordx4 v[{W+4*i}:{W+4*i+3}], v[2:3], off{P}")
            if i < 31:
                A("v_lshl_add_u64 v[2:3], v[2:3], 0, s[62:63]")

    tile_issue()
    A(f"""s_mov_b64 exec, 1
    global_store_dword v{T1}, v{XP+14}, s[26:27] sc1
    s_mov_b64 exec, -1
    L_noq1:""")
    if b1 >= 32: A("s_barrier")
    A(f"""s_load_dword s80, s[26:27], {WS_E}
    s_lshl_b32 s68, s66, 3
    s_lshl_b32 s47, s67, 2
    s_add_u32 s68, s68, s47
    s_and_b32 s47, s2, 7
    s_lshr_b32 s47, s47, 1
    s_add_u32 s68, s68, s47
    s_lshl_b32 s68, s68, 10
    s_add_u32 s68, s68, {WS_O}
    s_lshl_b32 s74, s98, 10
    s_add_u32 s74, s74, {WS_Y}
    s_lshl_b32 s47, s96, 10
    s_add_u32 s75, s47, {WS_G}
    s_add_u32 s48, s47, {WS_Y + 120*1024}
    s_cmp_lt_u32 s96, 120
    s_cselect_b32 s75, s75, s48
    s_waitcnt lgkmcnt(0)
    s_add_u32 s82, s80, 1
    s_and_b32 s80, s82, {TAGM}
    s_cmp_ge_u32 s97, 240
    s_cbranch_scc1 L_qskip""")
    g.stamp(1)
    SUM, VAR, MEAN = T0, T1, T2
    A(f"""s_mov_b32 s47, 0x3f803f80
    v_mov_b32 v{SUM}, 0
    s_waitcnt vmcnt(33)""")
    for r in range(12):
        A(f"v_dot2c_f32_bf16 v{SUM}, s47, v{XP+r}")
    A("s_nop 2")

    def allred_stats(v, t):
        for ctl in ["quad_perm:[1,0,3,2]", "quad_perm:[2,3,0,1]", "row_half_mirror"]:
            g.dpp("v_add_f32", v, v, v, ctl)
            A("s_nop 1")
        g.allred_16_32("v_add_f32", v, t)

    allred_stats(SUM, T3)
    A(f"""v_mul_f32 v{MEAN}, 0x3acccccd, v{SUM}
    v_mov_b32 v{VAR}, 0""")
    for r in range(12):
        if r == 8:
            A("s_bfm_b64 exec, 32, 0")
        A(f"""v_lshlrev_b32 v{AX1}, 16, v{XP+r}
        v_and_b32 v{AX1+1}, 0xffff0000, v{XP+r}
        v_sub_f32 v{AX1}, v{AX1}, v{MEAN}
        v_sub_f32 v{AX1+1}, v{AX1+1}, v{MEAN}
        v_fmac_f32 v{VAR}, v{AX1}, v{AX1}
        v_fmac_f32 v{VAR}, v{AX1+1}, v{AX1+1}""")
    A("s_mov_b64 exec, -1\ns_nop 1")
    allred_stats(VAR, T3)
    A(f"v_mul_f32 v{VAR}, 0x3acccccd, v{VAR}")
    g.rbf(VAR)
    g.rbf(MEAN)
    A(f"v_add_f32 v{VAR}, 0x3727c5ac, v{VAR}")
    g.rbf(VAR)
    A(f"v_sqrt_f32 v{VAR}, v{VAR}\ns_nop 0")
    g.rbf(VAR)
    A(f"v_rcp_f32 v{VAR}, v{VAR}")
    for k in range(2):
        r = XP + 12 + k
        A(f"""v_lshlrev_b32 v{AX1}, 16, v{r}
        v_and_b32 v{AX1+1}, 0xffff0000, v{r}
        v_sub_f32 v{AX1}, v{AX1}, v{MEAN}
        v_sub_f32 v{AX1+1}, v{AX1+1}, v{MEAN}
        v_cvt_pk_bf16_f32 v{r}, v{AX1}, v{AX1+1}
        v_lshlrev_b32 v{AX1}, 16, v{r}
        v_and_b32 v{AX1+1}, 0xffff0000, v{r}
        v_mul_f32 v{AX1}, v{AX1}, v{VAR}
        v_mul_f32 v{AX1+1}, v{AX1+1}, v{VAR}
        v_cvt_pk_bf16_f32 v{r}, v{AX1}, v{AX1+1}""")

    def xbuf_roundtrip(src):
        A(f"""v_lshrrev_b32 v{T0}, 4, v1
        v_lshlrev_b32 v{T0}, 6, v{T0}
        v_and_b32 v{T1}, 8, v1
        v_lshl_add_u32 v{T0}, v{T1}, 5, v{T0}""")
        src()
        A("s_waitcnt lgkmcnt(0)")
        for j in range(4):
            A(f"ds_read_b128 v[{XP+4*j}:{XP+4*j+3}], v{T0} offset:{L_X+16*j}")
        A("s_waitcnt lgkmcnt(0)")

    def wr_x():
        A(f"""v_and_b32 v{T1}, 7, v1
        v_lshl_add_u32 v{T1}, v{T1}, 3, v{T0}
        ds_write_b64 v{T1}, v[{XP+12}:{XP+13}] offset:{L_X}""")

    xbuf_roundtrip(wr_x)

    def tile_compute(younger, bar=-1):
        for i in range(32):
            if i == bar:
                A("s_barrier")
            Ar = AX0 if i % 2 == 0 else AX1
            A(f"v_perm_b32 v{T3}, v{XP+(i>>1)}, v{XP+(i>>1)}, s{64+(i&1)}")
            for r in range(4):
                A(f"v_and_b32 v{Ar+r}, v{T3}, v{M+r}")
            A(f"s_waitcnt vmcnt({31-i+younger})")
            A("s_nop 0")
            c = "0" if i == 0 else f"v[{DD}:{DD+3}]"
            A(f"v_mfma_f32_16x16x32_bf16 v[{DD}:{DD+3}], v[{Ar}:{Ar+3}], v[{W+4*i}:{W+4*i+3}], {c}")

    def nat_off(dst, tmp):
        A(f"""v_and_b32 v{dst}, 15, v1
        v_lshlrev_b32 v{dst}, 5, v{dst}
        v_and_b32 v{tmp}, 16, v1
        v_add_u32 v{dst}, v{dst}, v{tmp}
        v_and_b32 v{tmp}, 32, v1
        v_lshl_add_u32 v{dst}, v{tmp}, 4, v{dst}""")

    g.stamp(2)
    tile_compute(1, bar=(b1 if b1 < 32 else -1))
    nat_off(T0, T1)
    A(f"""s_lshl_b32 s47, s97, 10
    v_add_u32 v{T0}, s47, v{T0}
    v_mov_b32 v{T1}, s80""")
    g.tagput(range(DD, DD + 4), T1)
    A(f"s_waitcnt vmcnt(0)\nglobal_store_dwordx4 v{T0}, v[{DD}:{DD+3}], s[26:27] sc1")
    g.stamp(3)
    if b1 < 32:
        A("s_branch L_qflag\nL_qskip:\ns_barrier")
    else:
        A("L_qskip:")
    A(f"""L_qflag:
    s_mul_i32 s47, s66, 192
    v_lshl_add_u32 v{T2}, v1, 2, s47
    v_lshrrev_b32 v{T3}, 7, v{T2}
    v_mul_u32_u24 v{T3}, 5120, v{T3}
    v_and_b32 v{T2}, 127, v{T2}
    v_lshl_add_u32 v{T3}, v{T2}, 2, v{T3}
    s_lshl_b32 s47, s67, 9
    s_add_u32 s47, s47, {WS_Q + 2048}
    v_add_u32 v{T3}, s47, v{T3}
    s_bfm_b64 s[86:87], 48, 0
    s_mov_b64 s[88:89], s[86:87]
    s_mov_b64 s[90:91], s[86:87]
    s_mov_b64 s[92:93], s[86:87]
    s_mov_b64 s[94:95], s[86:87]
    L_pollQ:""")
    for rb in range(5):
        A(f"s_mov_b64 exec, s[{86+2*rb}:{87+2*rb}]")
        l = g.lab("L_pq")
        A(f"s_cbranch_execz {l}")
        A(f"global_load_dwordx4 v[{W+4*rb}:{W+4*rb+3}], v{T3}, s[26:27] offset:{rb*1024-2048} sc1")
        A(f"{l}:")
    A("s_waitcnt vmcnt(0)")
    for rb in range(5):
        A(f"s_mov_b64 exec, s[{86+2*rb}:{87+2*rb}]")
        g.tagcheck(list(range(W + 4*rb, W + 4*rb + 4)), T2)
        A(f"s_mov_b64 s[{86+2*rb}:{87+2*rb}], vcc")
    A("""s_or_b64 s[50:51], s[86:87], s[88:89]
    s_or_b64 s[52:53], s[90:91], s[92:93]
    s_or_b64 s[50:51], s[50:51], s[94:95]
    s_or_b64 s[50:51], s[50:51], s[52:53]
    s_cbranch_scc0 L_gotQ""")
    g.spin("L_pollQ", "L_gotQ", qsleep)
    A("L_gotQ:\ns_bfm_b64 exec, 48, 0")
    g.stamp(5)
    A(f"v_lshlrev_b32 v{T0}, 3, v1")
    for rb in range(1, 5):
        for e in range(4):
            A(f"v_add_f32 v{W+e}, v{W+e}, v{W+4*rb+e}")
    A(f"""v_cvt_pk_bf16_f32 v{W}, v{W}, v{W+1}
    v_cvt_pk_bf16_f32 v{W+1}, v{W+2}, v{W+3}
    ds_write_b64 v{T0}, v[{W}:{W+1}] offset:{L_Q}
    s_mov_b64 exec, -1
    s_waitcnt lgkmcnt(0)
    s_barrier""")
    g.stamp(6)
    if noffn >= 2: A("s_branch L_ffn_done")
    if noffn == 1: A("s_cmp_ge_u32 s96, 120\ns_cbranch_scc1 L_ffn_done")
    A(f"""s_cmp_lt_u32 s96, 120
    s_cbranch_scc1 L_gtask
    s_cmp_lt_u32 s96, 180
    s_cbranch_scc0 L_ffn_done
    s_mul_i32 s69, s96, 205
    s_lshr_b32 s69, s69, 10
    s_mul_i32 s70, s69, 5
    s_sub_u32 s70, s96, s70""")
    A(f"""s_sub_u32 s76, s69, 24
    s_mul_i32 s47, s76, 10240
    s_add_u32 s47, s47, {WS_G + 4096}
    v_lshl_add_u32 v{T0}, v1, 4, s47
    v_add_u32 v{T1}, 5120, v{T0}
    L_pollG:""")
    for j in range(5):
        A(f"global_load_dwordx4 v[{W+4*j}:{W+4*j+3}], v{T0}, s[26:27] offset:{j*1024-4096} sc1")
    for j in range(5):
        A(f"global_load_dwordx4 v[{W+20+4*j}:{W+20+4*j+3}], v{T1}, s[26:27] offset:{j*1024-4096} sc1")
    A("s_waitcnt vmcnt(0)")
    g.tagcheck(list(range(W, W + 40)), T2)
    A("s_cbranch_vccz L_gotG")
    g.spin("L_pollG", "L_gotG", lsleep)
    A("L_gotG:")
    for f in range(2):
        for j in range(1, 5):
            for e in range(4):
                A(f"v_add_f32 v{W+20*f+e}, v{W+20*f+e}, v{W+20*f+4*j+e}")
    S0_, S1_ = W, W + 20
    GG, UU = W + 4, W + 8
    for e in range(4):
        A(f"v_mov_b32 v{GG+e}, v{S0_+e}\nv_mov_b32 v{UU+e}, v{S1_+e}")
    A("s_nop 1")
    for e in range(4):
        A(f"v_mov_b32_dpp v{GG+e}, v{S1_+e} row_ror:8 row_mask:0xf bank_mask:0xc")
        A(f"v_mov_b32_dpp v{UU+e}, v{S0_+e} row_ror:8 row_mask:0xf bank_mask:0x3")
    for e in range(4):
        gg, uu = GG + e, UU + e
        g.rbf(gg); g.rbf(uu)
        A(f"""v_mul_f32 v{T2}, v{gg}, v{gg}
        v_mul_f32 v{T2}, v{T2}, v{gg}
        v_mov_b32 v{T3}, v{gg}
        v_fmac_f32 v{T3}, 0x3d372713, v{T2}
        v_mul_f32 v{T3}, 0xc0135761, v{T3}
        v_exp_f32 v{T3}, v{T3}
        s_nop 0
        v_add_f32 v{T3}, 1.0, v{T3}
        v_rcp_f32 v{T3}, v{T3}
        s_nop 0
        v_mul_f32 v{gg}, v{gg}, v{T3}""")
        g.rbf(gg)
        A(f"v_mul_f32 v{gg}, v{gg}, v{uu}")
    A(f"""v_cvt_pk_bf16_f32 v{GG}, v{GG}, v{GG+1}
    v_cvt_pk_bf16_f32 v{GG+1}, v{GG+2}, v{GG+3}""")

    def wr_h():
        A(f"""v_and_b32 v{T1}, 15, v1
        v_lshlrev_b32 v{T1}, 4, v{T1}
        v_and_b32 v{T2}, 32, v1
        v_lshl_add_u32 v{T1}, v{T2}, 3, v{T1}
        v_bfe_u32 v{T2}, v1, 4, 1
        v_lshl_add_u32 v{T1}, v{T2}, 3, v{T1}
        ds_write_b64 v{T1}, v[{GG}:{GG+1}] offset:{L_X}""")

    xbuf_roundtrip(wr_h)
    A(f"""v_lshrrev_b32 v{T0}, 4, v1
    v_mul_u32_u24 v2, 40960, v{T0}
    v_and_b32 v{T1}, 15, v1
    v_lshl_add_u32 v2, v{T1}, 4, v2
    s_mul_i32 s47, s76, 163840
    s_lshl_b32 s48, s70, 8
    s_add_u32 s47, s47, s48
    v_add_u32 v2, s47, v2
    v_mov_b32 v3, 0
    s_mov_b32 s62, 1280
    v_lshl_add_u64 v[2:3], v[2:3], 0, s[20:21]""")
    nat_off(T2, T1)
    A(f"""v_add_u32 v{T2}, s75, v{T2}
    s_branch L_tile2
    L_gtask:
    v_lshrrev_b32 v{T0}, 4, v1
    v_mul_u32_u24 v2, 98304, v{T0}
    v_and_b32 v{T1}, 7, v1
    v_lshl_add_u32 v2, v{T1}, 4, v2
    s_mul_i32 s47, s70, 393216
    s_lshl_b32 s48, s69, 7
    s_add_u32 s47, s47, s48
    v_add_u32 v2, s47, v2
    v_mov_b32 v3, 0
    s_mov_b32 s62, 3072
    v_and_b32 v{T1}, 8, v1
    v_cmp_eq_u32 vcc, 0, v{T1}
    v_mov_b32 v{T0}, s18
    v_mov_b32 v{T1}, s19
    v_mov_b32 v{T2}, s16
    v_mov_b32 v{T3}, s17
    v_cndmask_b32 v{T0}, v{T0}, v{T2}, vcc
    v_cndmask_b32 v{T1}, v{T1}, v{T3}, vcc
    v_lshl_add_u64 v[2:3], v[2:3], 0, v[{T0}:{T1}]
    v_lshl_add_u32 v{T2}, v1, 4, s75
    L_tile2:""")
    assert T0 % 2 == 0
    tile_issue()
    tile_compute(0)
    A(f"v_mov_b32 v{T1}, s80\ns_nop 7")
    g.tagput(range(DD, DD + 4), T1)
    A(f"""global_store_dwordx4 v{T2}, v[{DD}:{DD+3}], s[26:27] sc1
    L_ffn_done:""")
    g.stamp(7)
    GV, XO, YA = 8, 12, 16
    A(f"""s_cmp_lt_u32 s96, 176
    s_cbranch_scc1 L_c_done
    s_sub_u32 s77, s96, 176
    s_cmp_ge_u32 s77, 40
    s_cselect_b32 s78, 1, 0
    s_mul_i32 s47, s78, 40
    s_sub_u32 s77, s77, s47
    s_lshr_b32 s47, s77, 3
    s_lshl_b32 s47, s47, 10
    s_and_b32 s48, s77, 7
    s_lshl_b32 s48, s48, 6
    s_add_u32 s47, s47, s48
    s_lshl_b32 s48, s78, 9
    s_add_u32 s47, s47, s48
    s_add_u32 s47, s47, {WS_Y}
    v_lshrrev_b32 v{T0}, 2, v1
    v_mul_u32_u24 v{T0}, 5120, v{T0}
    v_and_b32 v{T1}, 3, v1
    v_lshl_add_u32 v{T0}, v{T1}, 4, v{T0}
    v_add_u32 v{YA}, s47, v{T0}
    v_add_u32 v{YA+1}, 81920, v{YA}
    v_add_u32 v{YA+2}, 81920, v{YA+1}
    v_add_u32 v{T0}, 81920, v{YA+2}
    s_mul_i32 s47, s78, 1280
    s_lshl_b32 s48, s77, 5
    s_add_u32 s47, s47, s48
    v_lshl_add_u32 v{YA+3}, v{T1}, 3, s47
    global_load_dwordx2 v[{XO}:{XO+1}], v{YA+3}, s[4:5]
    v_mov_b32 v{GV}, 0
    v_mov_b32 v{GV+1}, 0
    v_mov_b32 v{GV+2}, 0
    v_mov_b32 v{GV+3}, 0
    {"s_branch L_gotF" if noffn else ""}
    s_bfm_b64 exec, 48, 0
    L_pollF:
    global_load_dwordx4 v[{GV}:{GV+3}], v{T0}, s[26:27] sc1
    s_waitcnt vmcnt(0)""")
    g.tagcheck(list(range(GV, GV + 4)), T2)
    A("s_cbranch_vccz L_gotF")
    g.spin("L_pollF", "L_gotF", lsleep)
    A("L_gotF:\ns_mov_b64 exec, -1\ns_nop 1")

    def red16(base):
        for ctl in ["row_ror:4", "row_ror:8"]:
            for e in range(4):
                g.dpp("v_add_f32", base + e, base + e, base + e, ctl)
        for sw in ["v_permlane16_swap_b32", "v_permlane32_swap_b32"]:
            for e in range(4):
                A(f"v_mov_b32 v{T0+e}, v{base+e}")
            for e in range(4):
                A(f"{sw} v{base+e}, v{T0+e}")
            for e in range(4):
                A(f"v_add_f32 v{base+e}, v{base+e}, v{T0+e}")

    red16(GV)
    A(f"""v_and_b32 v{XO+3}, 0xffff0000, v{XO+1}
    v_lshlrev_b32 v{XO+2}, 16, v{XO+1}
    v_and_b32 v{XO+1}, 0xffff0000, v{XO}
    v_lshlrev_b32 v{XO}, 16, v{XO}""")
    for e in range(4):
        g.rbf(GV + e)
        A(f"""v_mul_f32 v{T3}, 0xbfb8aa3b, v{GV+e}
        v_exp_f32 v{T3}, v{T3}
        s_nop 0
        v_add_f32 v{T3}, 1.0, v{T3}
        v_rcp_f32 v{T3}, v{T3}
        s_nop 0
        v_mul_f32 v{GV+e}, v{GV+e}, v{T3}""")
        g.rbf(GV + e)
    A("L_c_done:")
    g.stamp(8)
    if atest:
        A(f"""s_mul_i32 s47, s66, 3
        s_lshr_b32 s47, s47, 1
        s_mul_i32 s47, s47, 5
        s_add_u32 s47, s47, s67
        s_lshl_b32 s47, s47, 8
        s_add_u32 s83, s47, {WS_C + 128}
        v_mov_b32 v{T0}, s83
        v_mov_b32 v{T1}, 1
        s_mov_b32 s84, 16
        L_at:
        s_memtime s[60:61]
        s_waitcnt lgkmcnt(0)""")
        if atest == 1:
            A("""s_mov_b32 s85, 1
            s_atomic_add s85, s[26:27], s83 glc
            s_waitcnt lgkmcnt(0)""")
        elif atest == 2:
            A(f"""s_mov_b64 exec, 1
            global_atomic_add v{T2}, v{T0}, v{T1}, s[26:27] sc0 sc1
            s_waitcnt vmcnt(0)
            s_mov_b64 exec, -1""")
        else:
            A(f"""s_mov_b64 exec, 1
            global_load_dword v{T2}, v{T0}, s[26:27] sc1
            s_waitcnt vmcnt(0)
            s_mov_b64 exec, -1""")
        A(f"""s_memtime s[86:87]
        s_waitcnt lgkmcnt(0)
        s_sub_u32 s86, s86, s60
        s_mov_b32 m0, s84
        s_add_u32 s84, s84, 1
        v_writelane_b32 v168, s86, m0
        s_sleep 8
        s_cmp_lt_u32 s84, 26
        s_cbranch_scc1 L_at""")
    MA = 20
    A(f"""v_lshrrev_b32 v{MA}, 4, v1
    v_lshlrev_b32 v{MA}, 10, v{MA}
    v_bfe_u32 v{T0}, v1, 1, 3
    v_lshl_add_u32 v{MA}, v{T0}, 4, v{MA}
    v_and_b32 v{T0}, 1, v1
    v_lshl_add_u32 v{MA}, v{T0}, 8, v{MA}
    v_mov_b32 v{MA+1}, 0
    v_lshl_add_u32 v{MA+2}, v1, 4, s68
    v_mov_b32 v{MA+3}, s80
    v_cmp_eq_u32 s[50:51], 48, v1
    s_barrier
    ds_read_b128 v[{AX0}:{AX0+3}], v{MA+1} offset:{L_ST}
    ds_read_b128 v[{AX1}:{AX1+3}], v{MA+1} offset:{L_ST+16}""")
    g.stamp(9)
    for w in range(4):
        A(f"ds_read_b128 v[{W+8*w}:{W+8*w+3}], v{MA} offset:{L_ACC+3072*w}")
        A(f"ds_read_b128 v[{W+8*w+4}:{W+8*w+7}], v{MA} offset:{L_ACC+3072*w+640}")
    ms = [AX0, AX0 + 2, AX1, AX1 + 2]
    A(f"""s_waitcnt lgkmcnt(8)
    v_max_f32 v{T0}, v{ms[0]}, v{ms[1]}
    v_max3_f32 v{T0}, v{T0}, v{ms[2]}, v{ms[3]}
    v_and_b32 v{T0}, s81, v{T0}""")
    for w in range(4):
        A(f"v_sub_f32 v{ms[w]}, v{ms[w]}, v{T0}")
    for w in range(4):
        A(f"v_exp_f32 v{ms[w]}, v{ms[w]}")
    A(f"s_nop 0\nv_mul_f32 v{T1}, v{ms[0]}, v{ms[0]+1}")
    for w in range(1, 4):
        A(f"v_fmac_f32 v{T1}, v{ms[w]}, v{ms[w]+1}")
    for w in range(4):
        A(f"s_waitcnt lgkmcnt({6-2*w})")
        for e in range(4):
            A(f"v_add_f32 v{W+8*w+e}, v{W+8*w+e}, v{W+8*w+4+e}")
        for e in range(4):
            if w == 0:
                A(f"v_mul_f32 v{DD+e}, v{ms[0]}, v{W+e}")
            else:
                A(f"v_fmac_f32 v{DD+e}, v{ms[w]}, v{W+8*w+e}")
    A(f"""v_cndmask_b32 v{DD}, v{DD}, v{T0}, s[50:51]
    v_cndmask_b32 v{DD+1}, v{DD+1}, v{T1}, s[50:51]""")
    g.tagput(range(DD, DD + 4), MA + 3)
    A(f"""s_bfm_b64 exec, 49, 0
    global_store_dwordx4 v{MA+2}, v[{DD}:{DD+3}], s[26:27] sc1
    s_mov_b64 exec, -1""")
    g.stamp(10)
    A(f"""s_cmp_ge_u32 s98, 240
    s_cbranch_scc1 L_noy""")
    nat_off(MA + 1, T1)
    A(f"""v_add_u32 v{MA+1}, s74, v{MA+1}
    v_lshlrev_b32 v{MA}, 4, v1
    s_barrier""")
    for w in range(4):
        A(f"ds_read_b128 v[{W+4*w}:{W+4*w+3}], v{MA} offset:{L_YP+1024*w}")
    for w in range(1, 4):
        A(f"s_waitcnt lgkmcnt({3-w})")
        for e in range(4):
            A(f"v_add_f32 v{W+e}, v{W+e}, v{W+4*w+e}")
    g.tagput(range(W, W + 4), MA + 3)
    A(f"""global_store_dwordx4 v{MA+1}, v[{W}:{W+3}], s[26:27] sc1
    L_noy:""")
    g.stamp(11)
    A(f"""s_cmp_lt_u32 s96, 176
    s_cbranch_scc1 L_adone
    L_pollY:""")
    Y0 = W + 16
    for k in range(3):
        A(f"global_load_dwordx4 v[{Y0+4*k}:{Y0+4*k+3}], v{YA+k}, s[26:27] sc1")
    A("s_waitcnt vmcnt(0)")
    g.tagcheck(list(range(Y0, Y0 + 12)), T2)
    A("s_cbranch_vccz L_gotY")
    g.spin("L_pollY", "L_gotY")
    A("L_gotY:")
    g.stamp(12)
    for k in range(1, 3):
        for e in range(4):
            A(f"v_add_f32 v{Y0+e}, v{Y0+e}, v{Y0+4*k+e}")
    A("s_nop 0")
    red16(Y0)
    for e in range(4):
        g.rbf(Y0 + e)
    for e in range(4):
        A(f"v_mul_f32 v{Y0+e}, v{Y0+e}, v{GV+e}")
    for e in range(4):
        g.rbf(Y0 + e)
    for e in range(4):
        A(f"v_add_f32 v{Y0+e}, v{Y0+e}, v{XO+e}")
    A(f"""v_cvt_pk_bf16_f32 v{Y0}, v{Y0}, v{Y0+1}
    v_cvt_pk_bf16_f32 v{Y0+1}, v{Y0+2}, v{Y0+3}
    s_mov_b64 exec, 15
    global_store_dwordx2 v{YA+3}, v[{Y0}:{Y0+1}], s[22:23]
    s_cmp_lg_u32 s96, 255
    s_cbranch_scc1 L_adone
    s_mov_b64 exec, 1
    v_mov_b32 v{T0}, {WS_E}
    v_mov_b32 v{T1}, s82
    global_store_dword v{T0}, v{T1}, s[26:27]
    L_adone:
    s_mov_b64 exec, -1""")
    g.stamp(13)
    g.stamp_flush(True)
    A("L_end:\ns_endpgm")

    nv = 176 if stamps else 168
    out = [HDR + f"; @launch grid=(256,1,1) block=(320,1,1) lds={LDS_BYTES}",
           '.amdgcn_target "amdgcn-amd-amdhsa--gfx950"', ".text", f".globl {KN}", ".p2align 8",
           f".type {KN},@function", f"{KN}:"] + g.L + [
        '.section .rodata,"a"', ".p2align 6", f".amdhsa_kernel {KN}",
        f"  .amdhsa_next_free_vgpr {nv}", "  .amdhsa_next_free_sgpr 102", f"  .amdhsa_accum_offset {nv}",
        "  .amdhsa_group_segment_fixed_size 0", "  .amdhsa_kernarg_size 96", "  .amdhsa_user_sgpr_count 2",
        "  .amdhsa_user_sgpr_kernarg_segment_ptr 1", "  .amdhsa_system_sgpr_workgroup_id_x 1",
        "  .amdhsa_float_denorm_mode_32 3", ".end_amdhsa_kernel"]
    return "\n".join(out) + "\n"


if __name__ == "__main__":
    kw = {}
    for kv in sys.argv[2:]:
        k, v = kv.split("=")
        kw[k] = int(v) if v.lstrip("-").isdigit() else v.replace("+", " ")
    open(sys.argv[1], "w").write(gen(**kw))
```

```python
import sys
KN = "recurrent_scan__gqa_block_cached__geglu_ffn__decode_kernel"
HEADER = open("recurrent_scan__gqa_block_cached__geglu_ffn__decode.s.ref").read().split("; Override launch")[0] if False else None

HDR = """; Kernarg layout for this problem (96 bytes, ptrs only, base s[0:1]):
"""

WS_Q = 0x00000
WS_O = 0x40000
WS_Y = 0x80000
WS_G = 0x100000
WS_E = 0x3F000
WS_C = 0x400000
TAGM = 0x3ff
WS_STAMP = 0x200000
L_X = 0
L_Q = 512
L_ST = 960
L_YP = 1024
L_ACC = 5120
LDS_BYTES = 5120 + 12288 + 2048

LOG2E = 0x3FB8AA3B
SCALE = 0x3D93CD3A


class G:
    def __init__(self, stamps=False, pol="nt", sleep=2):
        self.L = []
        self.stamps = stamps
        self.pol = (" " + pol) if pol else ""
        self.sleep = sleep
        self.nlab = 0
        self.dbg = 0

    def A(self, s):
        for x in s.split("\n"):
            x = x.strip()
            if x:
                self.L.append("    " + x if not x.endswith(":") else x)

    def lab(self, p="L"):
        self.nlab += 1
        return f"{p}_{self.nlab}"

    def stamp(self, idx):
        if not self.stamps:
            return
        self.A(f"""s_memrealtime s[60:61]
        s_waitcnt lgkmcnt(0)
        v_writelane_b32 v168, s60, {idx}""")

    def stamp_flush(self, aux=False):
        if not self.stamps:
            return
        if self.dbg:
            sel = ([(2, 1, 0), (3, 3, 0), (6, 8, 0), (7, 9, 0), (8, 9, 1), (9, 10, 0), (11, 11, 0), (12, 12, 0), (13, 13, 0), (14, 2, 0)] if aux
                   else [(0, 0, 1), (1, 0, 0), (4, 2, 0), (5, 2, 1), (10, 5, 0), (15, 1, 0)])
            self.A("s_mov_b64 exec, 1")
            lw = self.lab("L_dw"); lo = self.lab("L_dwo")
            self.A(f"""v_mov_b32 v170, {WS_E}
            s_mov_b32 s58, 20000
            {lw}:
            s_sleep 64
            global_load_dword v169, v170, s[26:27] sc1
            s_waitcnt vmcnt(0)
            v_and_b32 v169, {TAGM}, v169
            v_cmp_eq_u32 vcc, s80, v169
            s_cbranch_vccnz {lo}
            s_sub_u32 s58, s58, 1
            s_cmp_gt_i32 s58, 0
            s_cbranch_scc1 {lw}
            {lo}:
            s_sleep 64""")
            for slot, idx, inv in sel:
                l = self.lab("L_dbg")
                self.A(f"v_readlane_b32 s47, v168, {idx}\ns_nop 3\ns_cmp_eq_u32 s47, 0\ns_cbranch_scc1 {l}")
                if inv: self.A("s_not_b32 s47, s47")
                self.A(f"v_mov_b32 v169, s47\nv_mov_b32 v170, {slot*4}\nglobal_atomic_umax v170, v169, s[24:25]\n{l}:")
            self.A("s_mov_b64 exec, -1")
            return
        self.A(f"""s_getreg_b32 s47, hwreg(HW_REG_HW_ID)
        s_getreg_b32 s48, hwreg(HW_REG_XCC_ID)
        s_lshl_b32 s48, s48, 24
        s_and_b32 s47, s47, 0xffffff
        s_or_b32 s47, s47, s48
        s_or_b32 s47, s47, 0x80000000
        v_writelane_b32 v168, s47, 15
        s_mul_i32 s47, s2, 5
        s_add_u32 s47, s47, s79
        s_lshl_b32 s47, s47, 8
        s_add_u32 s47, s47, {WS_STAMP}
        v_lshl_add_u32 v169, v1, 2, s47
        global_store_dword v169, v168, s[26:27]
        s_mov_b64 exec, -1""")

    def spin(self, back, out, sleep=None):
        self.A(f"""s_sleep {self.sleep if sleep is None else sleep}
        s_sub_u32 s58, s58, 1
        s_cmp_gt_i32 s58, 0
        s_cbranch_scc1 {back}
        s_branch {out}""")

    def allred_16_32(self, op, v, t):
        self.A(f"""v_mov_b32 v{t}, v{v}
        s_nop 1
        v_permlane16_swap_b32 v{v}, v{t}
        s_nop 1
        {op} v{v}, v{v}, v{t}
        v_mov_b32 v{t}, v{v}
        s_nop 1
        v_permlane32_swap_b32 v{v}, v{t}
        s_nop 1
        {op} v{v}, v{v}, v{t}""")

    def dpp(self, op, d, a, b, ctl, bank="0xf"):
        self.A(f"{op}_dpp v{d}, v{a}, v{b} {ctl} row_mask:0xf bank_mask:{bank}")

    def tagcheck(self, regs, t):
        for r in regs:
            self.A(f"v_xor_b32 v{r}, s80, v{r}")
        self.A(f"v_or_b32 v{t}, v{regs[0]}, v{regs[1]}")
        for j in range(2, len(regs), 2):
            self.A(f"v_or3_b32 v{t}, v{t}, v{regs[j]}, v{regs[j+1]}")
        self.A(f"v_and_b32 v{t}, {TAGM}, v{t}\nv_cmp_ne_u32 vcc, 0, v{t}")

    def tagput(self, regs, tg, rnd=True):
        if rnd:
            for r in regs:
                self.A(f"v_add_u32 v{r}, {(TAGM+1)//2}, v{r}")
        for r in regs:
            self.A(f"v_and_or_b32 v{r}, v{r}, s81, v{tg}")

    def rbf(self, v):
        self.A(f"""v_cvt_pk_bf16_f32 v{v}, v{v}, v{v}
        v_and_b32 v{v}, 0xffff0000, v{v}""")


def gen(stamps=0, pol="nt", sleep=2, b1=16, prio=3, pace=3, dyn=2, lsleep=16, qsleep=0, nstat=15, rot=1, atest=0, mul=1, dummy=0, cstride=4224, noffn=0, fine=0, R=2, spread=1, th=224, wolate=1, dbg=0):
    g = G(stamps, pol, sleep)
    g.dbg = dbg
    A = g.A
    P = g.pol
    M = 4
    A(f"""s_cmp_ge_u32 s2, 256
    s_cbranch_scc1 L_end
    s_load_dwordx16 s[4:19], s[0:1], 0
    s_load_dwordx8 s[20:27], s[0:1], 64
    v_lshrrev_b32 v2, 6, v0
    v_and_b32 v1, 63, v0
    v_readfirstlane_b32 s3, v2""")
    if stamps:
        A("v_mov_b32 v168, 0")
        A("s_memrealtime s[60:61]")
    A(f"""v_and_b32 v2, 1, v1
    v_lshlrev_b32 v2, 4, v2
    v_mov_b32 v3, 0xffff
    v_lshlrev_b32 v2, v2, v3
    v_bfe_u32 v3, v1, 1, 2
    v_cmp_eq_u32 s[50:51], 0, v3
    v_cmp_eq_u32 s[52:53], 1, v3
    v_cmp_eq_u32 s[54:55], 2, v3
    v_cmp_eq_u32 s[56:57], 3, v3
    s_lshr_b32 s66, s2, 3
    s_and_b32 s47, s2, 7
    v_cndmask_b32 v{M}, 0, v2, s[50:51]
    v_cndmask_b32 v{M+1}, 0, v2, s[52:53]
    v_cndmask_b32 v{M+2}, 0, v2, s[54:55]
    v_cndmask_b32 v{M+3}, 0, v2, s[56:57]
    s_bcnt1_i32_b32 s67, s47
    s_and_b32 s67, s67, 1
    s_lshr_b32 s48, s47, 1
    s_mov_b32 s46, {LOG2E}
    s_mov_b32 s58, 400000
    s_mov_b32 s79, s3""")
    if spread:
        A("""s_add_u32 s96, s48, s66
        s_and_b32 s96, s96, 3
        s_lshr_b32 s97, s66, 2
        s_add_u32 s97, s97, s67
        s_and_b32 s97, s97, 1
        s_lshl_b32 s96, s96, 6
        s_lshl_b32 s97, s97, 5
        s_add_u32 s96, s96, s97
        s_add_u32 s96, s96, s66""")
    else:
        A("s_mov_b32 s96, s2")
    A("""s_sub_u32 s97, s96, 16
    s_cmp_lt_u32 s97, 16
    s_cselect_b32 s98, 255, s97
    s_cmp_lt_u32 s96, 16
    s_cselect_b32 s98, s96, s98
    s_cmp_eq_u32 s3, 0
    s_cbranch_scc1 L_aux
    s_mul_i32 s69, s98, 205
    s_lshr_b32 s69, s69, 10
    s_mul_i32 s70, s69, 5
    s_sub_u32 s70, s98, s70
    s_sub_u32 s3, s3, 1""")
    Q = 8; ACC = 20; A0 = 32; A1 = 36
    SA, SB, T, MM, MC, LL, PA, PB = 40, 41, 42, 43, 44, 45, 46, 47
    KA, VA, KB, VB = 48, 72, 96, 120
    A(f"""s_lshl_b32 s42, s48, 2
    s_add_u32 s42, s42, s3
    s_lshl_b32 s40, s67, 5
    s_add_u32 s40, s40, s66
    s_mul_i32 s40, s40, 1572864
    s_mov_b32 s41, 0
    v_lshrrev_b32 v2, 3, v1
    v_mul_u32_u24 v2, 384, v2
    v_and_b32 v3, 7, v1
    v_lshl_add_u32 v2, v3, 4, v2
    s_waitcnt lgkmcnt(0)""")
    if stamps:
        A("v_writelane_b32 v168, s60, 0")
    A(f"""s_mov_b32 s28, s6
    s_mov_b32 s29, s7
    s_mov_b32 s30, 100663296
    s_mov_b32 s31, 0x20000
    s_mov_b32 s32, s8
    s_mov_b32 s33, s9
    s_mov_b32 s34, 100663296
    s_mov_b32 s35, 0x20000""")
    A("s_barrier")
    OFFS = [0, 128, 256, 3072, 3200, 3328]

    def loads6(base, srd, sreg, paced=False, part=None):
        for j, o in enumerate(OFFS):
            if part is not None and j // 3 != part: continue
            if paced and j % 3 == 0:
                A(f"s_waitcnt vmcnt({pace})")
            A(f"buffer_load_dwordx4 v[{base+4*j}:{base+4*j+3}], v2, s[{srd}:{srd+3}], s{sreg} offen offset:{o}{P}")

    GV_, GA, GD = 144, 145, 146
    A(f"""s_mul_i32 s44, s42, {mul}
    s_and_b32 s44, s44, 255
    s_mul_i32 s44, s44, 6144
    s_add_u32 s44, s44, s40
    s_add_u32 s47, s42, 4
    s_and_b32 s47, s47, 15
    s_add_u32 s47, s47, 16
    s_mul_i32 s47, s47, {mul}
    s_and_b32 s47, s47, 255
    s_mul_i32 s43, s47, 6144
    s_add_u32 s43, s43, s40""")
    loads6(KB, 28, 44, True); loads6(VB, 32, 44, True)
    if R:
        assert dyn == 2
        for j in range(R):
            loads6(KA if j < 2 else VA, 28 if j < 2 else 32, 43, True, part=j & 1)
    else:
        loads6(KA, 28, 43, True)
        if dyn != 2:
            A(f"buffer_load_dword v{GA}, v2, s[28:31], s43 offen{P}")
        loads6(VA, 32, 43, True)
    g.stamp(1)
    A(f"""s_add_u32 s47, s42, 8
    s_and_b32 s47, s47, 15
    s_sub_u32 s47, s47, 16
    v_mov_b32 v{GV_}, s47
    s_add_u32 s85, s47, {48 - 16*nstat}
    s_mov_b32 s41, 3
    s_add_u32 s48, s42, 12
    s_and_b32 s48, s48, 15
    s_add_u32 s48, s48, 240
    s_mul_i32 s48, s48, 6144
    s_add_u32 s44, s40, s48
    s_mov_b32 s99, 0
    s_mov_b32 s100, -1
    s_mov_b32 s45, 0
    s_mov_b32 s84, 16""")
    A(f"""s_load_dword s80, s[26:27], {WS_E}
    s_mov_b32 s36, s12
    s_mov_b32 s37, s13
    s_mov_b32 s38, 7864320
    s_mov_b32 s39, 0x20000
    s_lshl_b32 s71, s69, 2
    s_add_u32 s71, s71, s3
    s_mul_i32 s72, s71, 40960
    s_lshl_b32 s47, s70, 8
    s_add_u32 s72, s72, s47
    v_lshrrev_b32 v3, 4, v1
    v_mul_u32_u24 v3, 10240, v3
    v_and_b32 v{T}, 15, v1
    v_lshl_add_u32 v3, v{T}, 4, v3
    s_cmp_ge_u32 s98, 240
    s_cselect_b32 s47, 0x40000000, 0
    s_cselect_b32 s72, 0, s72
    v_add_u32 v3, s47, v3""")
    for r in range(12):
        A(f"v_mov_b32 v{ACC+r}, 0")
    A(f"""v_mov_b32 v{MM}, 0xff800000
    v_mov_b32 v{MC}, 0xff800000
    v_mov_b32 v{LL}, 0
    v_and_b32 v{T}, 7, v1
    v_lshlrev_b32 v{T}, 4, v{T}
    s_barrier
    ds_read_b128 v[{Q}:{Q+3}], v{T} offset:{L_Q}
    ds_read_b128 v[{Q+4}:{Q+7}], v{T} offset:{L_Q+128}
    ds_read_b128 v[{Q+8}:{Q+11}], v{T} offset:{L_Q+256}
    s_mul_i32 s47, s66, 3
    s_lshr_b32 s47, s47, 1
    s_mul_i32 s47, s47, 5
    s_add_u32 s47, s47, s67
    s_mul_i32 s47, s47, {cstride}
    s_add_u32 s83, s47, {WS_C}
    v_mov_b32 v{GD}, 1
    s_waitcnt lgkmcnt(0)""")
    g.stamp(2)

    WO = KA if R else KB

    def wo_load(j):
        dst = WO + 4 * j
        o = j * 1280
        if o < 4096:
            A(f"buffer_load_dwordx4 v[{dst}:{dst+3}], v3, s[36:39], s72 offen offset:{o}{P}")
        else:
            A(f"buffer_load_dwordx4 v[{dst}:{dst+3}], v3, s[36:39], s73 offen offset:{o-5120}{P}")

    def unit(K, V, sreg, mode):
        w = {'loop': (10, 7, 10, 7), 'first': (22, 19, 16, 13)}[mode]
        if dyn == 2:
            w = tuple(x - 1 for x in w)
            if mode == 'loop' and stamps: A("s_memrealtime s[60:61]")
        fn = fine and mode == 'loop' and dyn == 2
        if fn: w = (9, 9, 9, 9)
        A(f"""v_mov_b32 v{SA}, 0
        v_mov_b32 v{SB}, 0
        s_waitcnt vmcnt({w[0]})""")
        for r in range(12):
            A(f"v_dot2c_f32_bf16 v{SA}, v{K+r}, v{Q+r}")

        def kb_dots():
            A(f"s_waitcnt vmcnt({w[1]})")
            for r in range(12):
                A(f"v_dot2c_f32_bf16 v{SB}, v{K+12+r}, v{Q+r}")
        if not fn: kb_dots()
        if mode == 'loop' and dyn == 2:
            if stamps == 2: A("s_memtime s[86:87]")
            A("s_waitcnt lgkmcnt(0)")
            if stamps == 2:
                A("""s_memtime s[88:89]
                s_waitcnt lgkmcnt(0)
                s_sub_u32 s88, s88, s86
                s_add_u32 s86, s84, 24
                s_mov_b32 m0, s86
                s_nop 0
                v_writelane_b32 v168, s88, m0""")
            if stamps:
                A(f"""s_mov_b32 m0, s84
                s_add_u32 s84, s84, 1
                s_min_u32 s84, s84, {39 if stamps == 2 else 63}
                v_writelane_b32 v168, s60, m0""")
            A(f"""s_add_u32 s47, s85, {16*nstat}
            s_cmp_ge_u32 s47, 256
            s_cbranch_scc1 L_fin
            s_mul_i32 s48, s47, {mul}
            s_and_b32 s48, s48, 255
            s_mul_i32 s48, s48, 6144
            s_add_u32 s{sreg}, s40, s48""")
            if fn:
                loads6(K, 28, sreg, part=0); kb_dots(); loads6(K, 28, sreg, part=1)
            else:
                loads6(K, 28, sreg)
            if nstat > 3:
                if rot:
                    A(f"""s_add_u32 s48, s47, 4
                    s_and_b32 s48, s48, 15
                    s_andn2_b32 s47, s47, 15
                    s_add_u32 s47, s47, s48""")
                A(f"""s_add_u32 s85, s47, {(16 - 16*nstat) & 0xffffffff}
                s_add_u32 s41, s41, 1
                s_cmp_le_u32 s41, {nstat}""")
                if dummy == 1: A("s_mov_b32 s90, 1\ns_atomic_add s90, s[26:27], s83 glc")
                if dummy == 2: A("s_load_dword s90, s[26:27], s83 glc")
                if dummy == 3: A("s_mov_b32 s90, 1\ns_atomic_add s90, s[26:27], s83")
                A("s_cbranch_scc1 L_back")
            if nstat < 16:
                A("""s_mov_b32 s85, 1
                s_atomic_add s85, s[26:27], s83 glc""")
            A("L_back:")
        elif mode == 'loop':
            A(f"""s_waitcnt vmcnt(6)
            v_readfirstlane_b32 s47, v{GV_}
            v_mov_b32 v{GA}, s83
            s_add_u32 s47, s47, 48
            s_cmp_ge_u32 s47, 256
            s_cbranch_scc1 L_fin
            s_mul_i32 s47, s47, 6144
            s_add_u32 s{sreg}, s40, s47""")
            loads6(K, 28, sreg)
            if dyn:
                A(f"""s_mov_b64 exec, 1
                global_atomic_add v{GV_}, v{GA}, v{GD}, s[26:27] sc0 sc1
                s_mov_b64 exec, -1""")
            else:
                A(f"""buffer_load_dword v{GA}, v2, s[28:31], s43 offen{P}
                v_add_u32 v{GV_}, 16, v{GV_}""")
            A("L_back:")
            if stamps: A("s_memrealtime s[60:61]")
        else:
            A("s_nop 2")
        for ctl in ["quad_perm:[1,0,3,2]", "quad_perm:[2,3,0,1]", "row_half_mirror"]:
            g.dpp("v_add_f32", SA, SA, SA, ctl)
            g.dpp("v_add_f32", SB, SB, SB, ctl)
            A("s_nop 0")
        skip = g.lab("L_skip")
        A(f"""v_cvt_pk_bf16_f32 v{T}, v{SA}, v{SB}
        v_lshlrev_b32 v{SA}, 16, v{T}
        v_and_b32 v{SB}, 0xffff0000, v{T}
        v_mul_f32 v{SA}, {SCALE}, v{SA}
        v_mul_f32 v{SB}, {SCALE}, v{SB}
        v_cvt_pk_bf16_f32 v{T}, v{SA}, v{SB}
        v_lshlrev_b32 v{SA}, 16, v{T}
        v_and_b32 v{SB}, 0xffff0000, v{T}
        v_max_f32 v{T}, v{SA}, v{SB}
        v_cmp_gt_f32 vcc, v{T}, v{MM}
        s_cbranch_vccz {skip}""")
        g.dpp("v_max_f32", T, T, T, "row_ror:8")
        g.allred_16_32("v_max_f32", T, PA)
        A(f"""v_max_f32 v{MM}, v{MM}, v{T}
        v_mul_f32 v{PA}, s46, v{MM}
        v_sub_f32 v{PB}, v{MC}, v{PA}
        v_exp_f32 v{PB}, v{PB}
        v_mov_b32 v{MC}, v{PA}
        v_mul_f32 v{LL}, v{LL}, v{PB}""")
        for r in range(12):
            A(f"v_mul_f32 v{ACC+r}, v{ACC+r}, v{PB}")
        A(f"""{skip}:
        v_fma_f32 v{PA}, v{SA}, s46, -v{MC}
        v_fma_f32 v{PB}, v{SB}, s46, -v{MC}
        v_exp_f32 v{PA}, v{PA}
        v_exp_f32 v{PB}, v{PB}
        s_nop 0
        v_add_f32 v{LL}, v{LL}, v{PA}
        v_cvt_pk_bf16_f32 v{PA}, v{PA}, v{PA}
        v_add_f32 v{LL}, v{LL}, v{PB}
        v_cvt_pk_bf16_f32 v{PB}, v{PB}, v{PB}""")
        for r in range(4):
            A(f"v_and_b32 v{A0+r}, v{PA}, v{M+r}")
        for r in range(4):
            A(f"v_and_b32 v{A1+r}, v{PB}, v{M+r}")
        A(f"s_waitcnt vmcnt({w[2]})")
        for t in range(3):
            A(f"v_mfma_f32_16x16x32_bf16 v[{ACC+4*t}:{ACC+4*t+3}], v[{A0}:{A0+3}], v[{V+4*t}:{V+4*t+3}], v[{ACC+4*t}:{ACC+4*t+3}]")
        if fn:
            A("s_cmp_lg_u32 s45, 0\ns_cbranch_scc1 L_exit0")
            loads6(V, 32, sreg, part=0)
            A("L_back2:")
        A(f"s_waitcnt vmcnt({w[3]})")
        for t in range(3):
            A(f"v_mfma_f32_16x16x32_bf16 v[{ACC+4*t}:{ACC+4*t+3}], v[{A1}:{A1+3}], v[{V+12+4*t}:{V+12+4*t+3}], v[{ACC+4*t}:{ACC+4*t+3}]")
        if mode == 'loop':
            if stamps and dyn != 2:
                A("""s_waitcnt lgkmcnt(0)
                s_mov_b32 m0, s84
                s_add_u32 s84, s84, 1
                s_min_u32 s84, s84, 63
                v_writelane_b32 v168, s60, m0""")
            A("""s_cmp_lg_u32 s45, 0
            s_cbranch_scc1 L_exit""")
            loads6(V, 32, sreg, part=(1 if fn else None))
            A("s_branch L_loop")

    def softmax_part():
        for ctl in ["quad_perm:[1,0,3,2]", "quad_perm:[2,3,0,1]", "row_half_mirror"]:
            g.dpp("v_add_f32", SA, SA, SA, ctl)
            g.dpp("v_add_f32", SB, SB, SB, ctl)
            A("s_nop 0")
        skip = g.lab("L_skip")
        A(f"""v_cvt_pk_bf16_f32 v{T}, v{SA}, v{SB}
        v_lshlrev_b32 v{SA}, 16, v{T}
        v_and_b32 v{SB}, 0xffff0000, v{T}
        v_mul_f32 v{SA}, {SCALE}, v{SA}
        v_mul_f32 v{SB}, {SCALE}, v{SB}
        v_cvt_pk_bf16_f32 v{T}, v{SA}, v{SB}
        v_lshlrev_b32 v{SA}, 16, v{T}
        v_and_b32 v{SB}, 0xffff0000, v{T}
        v_max_f32 v{T}, v{SA}, v{SB}
        v_cmp_gt_f32 vcc, v{T}, v{MM}
        s_cbranch_vccz {skip}""")
        g.dpp("v_max_f32", T, T, T, "row_ror:8")
        g.allred_16_32("v_max_f32", T, PA)
        A(f"""v_max_f32 v{MM}, v{MM}, v{T}
        v_mul_f32 v{PA}, s46, v{MM}
        v_sub_f32 v{PB}, v{MC}, v{PA}
        v_exp_f32 v{PB}, v{PB}
        v_mov_b32 v{MC}, v{PA}
        v_mul_f32 v{LL}, v{LL}, v{PB}""")
        for r in range(12):
            A(f"v_mul_f32 v{ACC+r}, v{ACC+r}, v{PB}")
        A(f"""{skip}:
        v_fma_f32 v{PA}, v{SA}, s46, -v{MC}
        v_fma_f32 v{PB}, v{SB}, s46, -v{MC}
        v_exp_f32 v{PA}, v{PA}
        v_exp_f32 v{PB}, v{PB}
        s_nop 0
        v_add_f32 v{LL}, v{LL}, v{PA}
        v_cvt_pk_bf16_f32 v{PA}, v{PA}, v{PA}
        v_add_f32 v{LL}, v{LL}, v{PB}
        v_cvt_pk_bf16_f32 v{PB}, v{PB}, v{PB}""")
        for r in range(4):
            A(f"v_and_b32 v{A0+r}, v{PA}, v{M+r}")
        for r in range(4):
            A(f"v_and_b32 v{A1+r}, v{PB}, v{M+r}")

    def consume(j, K, V):
        if j < 2:
            for r in range(12):
                A(f"v_dot2c_f32_bf16 v{SA+j}, v{K+12*j+r}, v{Q+r}")
        else:
            Ar = A0 if j == 2 else A1
            for t in range(3):
                b = V + 12 * (j - 2) + 4 * t
                A(f"v_mfma_f32_16x16x32_bf16 v[{ACC+4*t}:{ACC+4*t+3}], v[{Ar}:{Ar+3}], v[{b}:{b+3}], v[{ACC+4*t}:{ACC+4*t+3}]")

    if R:
        assert R == 2
        A("L_F:")
        A(f"v_mov_b32 v{SA}, 0\nv_mov_b32 v{SB}, 0")
        for j in range(4):
            if j == 2:
                A("s_nop 2"); softmax_part()
            A(f"s_waitcnt vmcnt({15 - 3*j})")
            consume(j, KB, VB)
        A("s_cmp_lg_u32 s45, 0\ns_cbranch_scc1 L_exit")
        A("L_loop:")
        if stamps: A("s_memrealtime s[60:61]")
        A(f"v_mov_b32 v{SA}, 0\nv_mov_b32 v{SB}, 0\ns_waitcnt vmcnt(3)")
        consume(0, KA, VA)
        loads6(VA, 32, 43, part=0)
        A("s_waitcnt vmcnt(3)")
        consume(1, KA, VA)
        loads6(VA, 32, 43, part=1)
        A(f"s_cmp_ge_u32 s99, {th}\ns_cbranch_scc1 L_early\nL_early_ret:")
        softmax_part()
        A("s_waitcnt vmcnt(3)")
        consume(2, KA, VA)
        A("s_waitcnt lgkmcnt(0)")
        if stamps:
            A("""s_mov_b32 m0, s84
            s_add_u32 s84, s84, 1
            s_min_u32 s84, s84, 63
            v_writelane_b32 v168, s60, m0""")
        A(f"""s_add_u32 s47, s85, {16*nstat}
        s_cmp_ge_u32 s47, 240
        s_cbranch_scc1 L_last
        s_mul_i32 s48, s47, 6144
        s_add_u32 s43, s40, s48""")
        loads6(KA, 28, 43, part=0)
        A(f"""s_and_b32 s99, s47, s100
        s_add_u32 s48, s47, 4
        s_and_b32 s48, s48, 15
        s_andn2_b32 s47, s47, 15
        s_add_u32 s47, s47, s48
        s_add_u32 s85, s47, {(16 - 16*nstat) & 0xffffffff}""")
        if nstat < 15:
            A(f"""s_add_u32 s41, s41, 1
            s_cmp_le_u32 s41, {nstat}
            s_cbranch_scc1 L_ret2
            s_mov_b32 s85, 1
            s_atomic_add s85, s[26:27], s83 glc
            L_ret2:""")
        A("s_waitcnt vmcnt(3)")
        consume(3, KA, VA)
        loads6(KA, 28, 43, part=1)
        A("s_branch L_loop")
        A("L_early:\ns_mov_b32 s100, 0")
        loads6(KB, 28, 44); loads6(VB, 32, 44)
        A("s_branch L_early_ret")
        A("L_last:")
        g.stamp(3)
        A("""s_mov_b32 s45, 1
        s_add_u32 s73, s72, 5120
        s_cmp_eq_u32 s100, 0
        s_cbranch_scc1 L_last2""")
        loads6(KB, 28, 44); loads6(VB, 32, 44)
        A("L_last2:")
        if wolate:
            A(f"v_mov_b32 v{GA}, 0x7ff00000")
            for j in range(6): A(f"buffer_load_dword v{GV_}, v{GA}, s[36:39], 0 offen")
        else:
            for j in range(6): wo_load(j)
        A("s_cmp_eq_u32 s100, 0\ns_cbranch_scc1 L_last3\ns_waitcnt vmcnt(18)\ns_branch L_last4\nL_last3:\ns_waitcnt vmcnt(6)\nL_last4:")
        consume(3, KA, VA)
        A("s_branch L_F")
        A("L_exit:")
        for j in range(0 if wolate else 6, 8): wo_load(j)
    else:
        unit(KB, VB, 44, 'first')
        A("L_loop:")
        unit(KA, VA, 43, 'loop')
        A("L_fin:\ns_add_u32 s73, s72, 5120\ns_mov_b32 s45, 1")
        for j in range(6 if dyn == 2 else 7): wo_load(j)
        A("s_branch L_back\nL_exit:")
        if dyn == 2: wo_load(6)
        wo_load(7)
    g.stamp(4)
    g.dpp("v_add_f32", LL, LL, LL, "row_ror:8")
    g.allred_16_32("v_add_f32", LL, T)
    A(f"""s_mul_i32 s47, s3, 3072
    v_lshl_add_u32 v{T}, v1, 4, s47
    s_lshl_b32 s47, s3, 3
    v_mov_b32 v{PA}, s47
    ds_write_b128 v{T}, v[{ACC}:{ACC+3}] offset:{L_ACC}
    ds_write_b128 v{T}, v[{ACC+4}:{ACC+7}] offset:{L_ACC+1024}
    ds_write_b128 v{T}, v[{ACC+8}:{ACC+11}] offset:{L_ACC+2048}
    ds_write_b64 v{PA}, v[{MC}:{LL}] offset:{L_ST}""")
    assert LL == MC + 1 and MC % 2 == 0
    OA, OS, BP0, BP1 = 104, 105, 106, 107
    O0, S0 = 108, 112
    TG = 92
    XR = 96
    A(f"""s_mul_i32 s47, s71, 171
    s_lshr_b32 s47, s47, 10
    s_mul_i32 s48, s47, 6
    s_sub_u32 s48, s71, s48
    s_lshl_b32 s47, s47, 13
    s_add_u32 s47, s47, {WS_O}
    v_and_b32 v{OS}, 7, v1
    v_lshl_add_u32 v{OS}, v{OS}, 10, s47
    v_lshrrev_b32 v{OA}, 3, v1
    s_lshl_b32 s48, s48, 7
    v_lshl_add_u32 v{OA}, v{OA}, 4, s48
    v_add_u32 v{OA}, v{OA}, v{OS}
    v_lshrrev_b32 v{BP0}, 4, v1
    v_lshlrev_b32 v{BP0}, 6, v{BP0}
    v_and_b32 v{BP1}, 8, v1
    v_lshl_add_u32 v{BP0}, v{BP1}, 1, v{BP0}
    v_add_u32 v{BP1}, 32, v{BP0}
    s_add_u32 s80, s80, 1
    s_and_b32 s80, s80, {TAGM}
    s_waitcnt lgkmcnt(0)
    s_barrier
    s_cmp_ge_u32 s98, 240
    s_cbranch_scc1 L_sdone
    L_pollO:
    global_load_dwordx4 v[{O0}:{O0+3}], v{OA}, s[26:27] sc1
    global_load_dwordx4 v[{S0}:{S0+3}], v{OS}, s[26:27] offset:768 sc1
    s_waitcnt vmcnt(0)""")
    g.tagcheck(list(range(O0, O0 + 8)), T)
    A("s_cbranch_vccz L_gotO")
    g.spin("L_pollO", "L_gotO")
    A("L_gotO:")
    g.stamp(5)
    A(f"v_mov_b32 v{T}, v{S0}\ns_nop 1")
    g.dpp("v_max_f32", T, T, T, "quad_perm:[1,0,3,2]")
    A("s_nop 1")
    g.dpp("v_max_f32", T, T, T, "quad_perm:[2,3,0,1]")
    A(f"""v_sub_f32 v{T}, v{S0}, v{T}
    v_exp_f32 v{T}, v{T}
    s_nop 0
    v_mul_f32 v{S0+1}, v{S0+1}, v{T}""")
    for e in range(4):
        A(f"v_mul_f32 v{O0+e}, v{O0+e}, v{T}")
    for ctl in ["quad_perm:[1,0,3,2]", "quad_perm:[2,3,0,1]"]:
        g.dpp("v_add_f32", S0 + 1, S0 + 1, S0 + 1, ctl)
        for e in range(4):
            g.dpp("v_add_f32", O0 + e, O0 + e, O0 + e, ctl)
    A(f"""v_rcp_f32 v{T}, v{S0+1}
    s_nop 0""")
    for e in range(4):
        A(f"v_mul_f32 v{O0+e}, v{O0+e}, v{T}")
    for e in range(4):
        A(f"v_cvt_pk_bf16_f32 v{O0+e}, v{O0+e}, v{O0+e}")
    for rq in range(8):
        A(f"ds_bpermute_b32 v{XR+rq}, v{BP0 if rq < 4 else BP1}, v{O0+(rq&3)}")
    D = ACC
    for rq in range(8):
        A(f"s_waitcnt lgkmcnt({7-rq})")
        Ar = A0 if rq % 2 == 0 else A1
        for r in range(4):
            A(f"v_and_b32 v{Ar+r}, v{XR+rq}, v{M+r}")
        A("s_nop 1")
        c = "0" if rq == 0 else f"v[{D}:{D+3}]"
        A(f"v_mfma_f32_16x16x32_bf16 v[{D}:{D+3}], v[{Ar}:{Ar+3}], v[{WO+4*rq}:{WO+4*rq+3}], {c}")
    A(f"""s_lshl_b32 s47, s3, 10
    v_lshl_add_u32 v{T}, v1, 4, s47
    s_nop 7
    ds_write_b128 v{T}, v[{D}:{D+3}] offset:{L_YP}
    s_waitcnt lgkmcnt(0)
    s_barrier
    L_sdone:""")
    g.stamp(6)
    g.stamp_flush()
    A("s_endpgm")

    XP = 8; AX0 = 24; AX1 = 28; W = 32; DD = 160; T0, T1, T2, T3 = 164, 165, 166, 167
    TGV = 22
    A(f"""L_aux:
    s_setprio {prio}
    s_cmp_lt_u32 s96, 144
    s_cselect_b32 s97, 255, s97
    s_cmp_lt_u32 s96, 128
    s_cselect_b32 s97, s96, s97
    s_mul_i32 s69, s97, 205
    s_lshr_b32 s69, s69, 10
    s_mul_i32 s70, s69, 5
    s_sub_u32 s70, s97, s70
    s_mov_b32 s81, {(~TAGM) & 0xffffffff}
    s_mov_b32 s64, 0x01000100
    s_mov_b32 s65, 0x03020302
    v_lshrrev_b32 v{T0}, 4, v1
    v_and_b32 v{T1}, 7, v1
    v_bfe_u32 v{T2}, v1, 3, 1
    v_mul_u32_u24 v{T2}, 1280, v{T2}
    v_lshl_add_u32 v{T3}, v{T0}, 3, v{T1}
    v_lshl_add_u32 v{DD}, v{T3}, 4, v{T2}
    v_lshl_add_u32 v{DD+1}, v{T3}, 3, v{T2}
    s_lshl_b32 s47, s70, 8
    v_add_u32 v{DD+1}, s47, v{DD+1}
    v_mov_b32 v{XP+8}, 0
    v_mov_b32 v{XP+9}, 0
    v_mov_b32 v{XP+10}, 0
    v_mov_b32 v{XP+11}, 0
    v_mov_b32 v{XP+14}, 0""")
    A(f"""v_mul_u32_u24 v2, 393216, v{T0}
    v_and_b32 v{T1}, 15, v1
    v_lshl_add_u32 v2, v{T1}, 4, v2
    s_mul_i32 s47, s70, 1572864
    s_lshl_b32 s48, s69, 8
    s_add_u32 s47, s47, s48
    v_add_u32 v2, s47, v2
    v_mov_b32 v3, 0
    s_mov_b32 s62, 12288
    s_mov_b32 s63, 0
    s_waitcnt lgkmcnt(0)""")
    if stamps:
        A("v_writelane_b32 v168, s60, 0")
    A(f"""s_mul_i32 s47, s97, {cstride}
    s_add_u32 s47, s47, {WS_C}
    v_mov_b32 v{T1}, s47
    global_load_dwordx4 v[{XP}:{XP+3}], v{DD}, s[4:5]
    global_load_dwordx4 v[{XP+4}:{XP+7}], v{DD}, s[4:5] offset:512
    global_load_dwordx2 v[{XP+12}:{XP+13}], v{DD+1}, s[4:5]
    s_bfm_b64 exec, 32, 0
    global_load_dwordx4 v[{XP+8}:{XP+11}], v{DD}, s[4:5] offset:1024
    s_mov_b64 exec, -1
    v_lshl_add_u64 v[2:3], v[2:3], 0, s[10:11]
    s_cmp_ge_u32 s97, 240
    s_cbranch_scc1 L_noq1""")

    def tile_issue():
        for i in range(32):
            A(f"global_load_dwordx4 v[{W+4*i}:{W+4*i+3}], v[2:3], off{P}")
            if i < 31:
                A("v_lshl_add_u64 v[2:3], v[2:3], 0, s[62:63]")

    tile_issue()
    A(f"""s_mov_b64 exec, 1
    global_store_dword v{T1}, v{XP+14}, s[26:27] sc1
    s_mov_b64 exec, -1
    L_noq1:""")
    if b1 >= 32: A("s_barrier")
    A(f"""s_load_dword s80, s[26:27], {WS_E}
    s_lshl_b32 s68, s66, 3
    s_lshl_b32 s47, s67, 2
    s_add_u32 s68, s68, s47
    s_and_b32 s47, s2, 7
    s_lshr_b32 s47, s47, 1
    s_add_u32 s68, s68, s47
    s_lshl_b32 s68, s68, 10
    s_add_u32 s68, s68, {WS_O}
    s_lshl_b32 s74, s98, 10
    s_add_u32 s74, s74, {WS_Y}
    s_lshl_b32 s47, s96, 10
    s_add_u32 s75, s47, {WS_G}
    s_add_u32 s48, s47, {WS_Y + 120*1024}
    s_cmp_lt_u32 s96, 120
    s_cselect_b32 s75, s75, s48
    s_waitcnt lgkmcnt(0)
    s_add_u32 s82, s80, 1
    s_and_b32 s80, s82, {TAGM}
    s_cmp_ge_u32 s97, 240
    s_cbranch_scc1 L_qskip""")
    g.stamp(1)
    SUM, VAR, MEAN = T0, T1, T2
    A(f"""s_mov_b32 s47, 0x3f803f80
    v_mov_b32 v{SUM}, 0
    s_waitcnt vmcnt(33)""")
    for r in range(12):
        A(f"v_dot2c_f32_bf16 v{SUM}, s47, v{XP+r}")
    A("s_nop 2")

    def allred_stats(v, t):
        for ctl in ["quad_perm:[1,0,3,2]", "quad_perm:[2,3,0,1]", "row_half_mirror"]:
            g.dpp("v_add_f32", v, v, v, ctl)
            A("s_nop 1")
        g.allred_16_32("v_add_f32", v, t)

    allred_stats(SUM, T3)
    A(f"""v_mul_f32 v{MEAN}, 0x3acccccd, v{SUM}
    v_mov_b32 v{VAR}, 0""")
    for r in range(12):
        if r == 8:
            A("s_bfm_b64 exec, 32, 0")
        A(f"""v_lshlrev_b32 v{AX1}, 16, v{XP+r}
        v_and_b32 v{AX1+1}, 0xffff0000, v{XP+r}
        v_sub_f32 v{AX1}, v{AX1}, v{MEAN}
        v_sub_f32 v{AX1+1}, v{AX1+1}, v{MEAN}
        v_fmac_f32 v{VAR}, v{AX1}, v{AX1}
        v_fmac_f32 v{VAR}, v{AX1+1}, v{AX1+1}""")
    A("s_mov_b64 exec, -1\ns_nop 1")
    allred_stats(VAR, T3)
    A(f"v_mul_f32 v{VAR}, 0x3acccccd, v{VAR}")
    g.rbf(VAR)
    g.rbf(MEAN)
    A(f"v_add_f32 v{VAR}, 0x3727c5ac, v{VAR}")
    g.rbf(VAR)
    A(f"v_sqrt_f32 v{VAR}, v{VAR}\ns_nop 0")
    g.rbf(VAR)
    A(f"v_rcp_f32 v{VAR}, v{VAR}")
    for k in range(2):
        r = XP + 12 + k
        A(f"""v_lshlrev_b32 v{AX1}, 16, v{r}
        v_and_b32 v{AX1+1}, 0xffff0000, v{r}
        v_sub_f32 v{AX1}, v{AX1}, v{MEAN}
        v_sub_f32 v{AX1+1}, v{AX1+1}, v{MEAN}
        v_cvt_pk_bf16_f32 v{r}, v{AX1}, v{AX1+1}
        v_lshlrev_b32 v{AX1}, 16, v{r}
        v_and_b32 v{AX1+1}, 0xffff0000, v{r}
        v_mul_f32 v{AX1}, v{AX1}, v{VAR}
        v_mul_f32 v{AX1+1}, v{AX1+1}, v{VAR}
        v_cvt_pk_bf16_f32 v{r}, v{AX1}, v{AX1+1}""")

    def xbuf_roundtrip(src):
        A(f"""v_lshrrev_b32 v{T0}, 4, v1
        v_lshlrev_b32 v{T0}, 6, v{T0}
        v_and_b32 v{T1}, 8, v1
        v_lshl_add_u32 v{T0}, v{T1}, 5, v{T0}""")
        src()
        A("s_waitcnt lgkmcnt(0)")
        for j in range(4):
            A(f"ds_read_b128 v[{XP+4*j}:{XP+4*j+3}], v{T0} offset:{L_X+16*j}")
        A("s_waitcnt lgkmcnt(0)")

    def wr_x():
        A(f"""v_and_b32 v{T1}, 7, v1
        v_lshl_add_u32 v{T1}, v{T1}, 3, v{T0}
        ds_write_b64 v{T1}, v[{XP+12}:{XP+13}] offset:{L_X}""")

    xbuf_roundtrip(wr_x)

    def tile_compute(younger, bar=-1):
        for i in range(32):
            if i == bar:
                A("s_barrier")
            Ar = AX0 if i % 2 == 0 else AX1
            A(f"v_perm_b32 v{T3}, v{XP+(i>>1)}, v{XP+(i>>1)}, s{64+(i&1)}")
            for r in range(4):
                A(f"v_and_b32 v{Ar+r}, v{T3}, v{M+r}")
            A(f"s_waitcnt vmcnt({31-i+younger})")
            A("s_nop 0")
            c = "0" if i == 0 else f"v[{DD}:{DD+3}]"
            A(f"v_mfma_f32_16x16x32_bf16 v[{DD}:{DD+3}], v[{Ar}:{Ar+3}], v[{W+4*i}:{W+4*i+3}], {c}")

    def nat_off(dst, tmp):
        A(f"""v_and_b32 v{dst}, 15, v1
        v_lshlrev_b32 v{dst}, 5, v{dst}
        v_and_b32 v{tmp}, 16, v1
        v_add_u32 v{dst}, v{dst}, v{tmp}
        v_and_b32 v{tmp}, 32, v1
        v_lshl_add_u32 v{dst}, v{tmp}, 4, v{dst}""")

    g.stamp(2)
    tile_compute(1, bar=(b1 if b1 < 32 else -1))
    nat_off(T0, T1)
    A(f"""s_lshl_b32 s47, s97, 10
    v_add_u32 v{T0}, s47, v{T0}
    v_mov_b32 v{T1}, s80""")
    g.tagput(range(DD, DD + 4), T1)
    A(f"s_waitcnt vmcnt(0)\nglobal_store_dwordx4 v{T0}, v[{DD}:{DD+3}], s[26:27] sc1")
    g.stamp(3)
    if b1 < 32:
        A("s_branch L_qflag\nL_qskip:\ns_barrier")
    else:
        A("L_qskip:")
    A(f"""L_qflag:
    s_mul_i32 s47, s66, 192
    v_lshl_add_u32 v{T2}, v1, 2, s47
    v_lshrrev_b32 v{T3}, 7, v{T2}
    v_mul_u32_u24 v{T3}, 5120, v{T3}
    v_and_b32 v{T2}, 127, v{T2}
    v_lshl_add_u32 v{T3}, v{T2}, 2, v{T3}
    s_lshl_b32 s47, s67, 9
    s_add_u32 s47, s47, {WS_Q + 2048}
    v_add_u32 v{T3}, s47, v{T3}
    s_bfm_b64 s[86:87], 48, 0
    s_mov_b64 s[88:89], s[86:87]
    s_mov_b64 s[90:91], s[86:87]
    s_mov_b64 s[92:93], s[86:87]
    s_mov_b64 s[94:95], s[86:87]
    L_pollQ:""")
    for rb in range(5):
        A(f"s_mov_b64 exec, s[{86+2*rb}:{87+2*rb}]")
        l = g.lab("L_pq")
        A(f"s_cbranch_execz {l}")
        A(f"global_load_dwordx4 v[{W+4*rb}:{W+4*rb+3}], v{T3}, s[26:27] offset:{rb*1024-2048} sc1")
        A(f"{l}:")
    A("s_waitcnt vmcnt(0)")
    for rb in range(5):
        A(f"s_mov_b64 exec, s[{86+2*rb}:{87+2*rb}]")
        g.tagcheck(list(range(W + 4*rb, W + 4*rb + 4)), T2)
        A(f"s_mov_b64 s[{86+2*rb}:{87+2*rb}], vcc")
    A("""s_or_b64 s[50:51], s[86:87], s[88:89]
    s_or_b64 s[52:53], s[90:91], s[92:93]
    s_or_b64 s[50:51], s[50:51], s[94:95]
    s_or_b64 s[50:51], s[50:51], s[52:53]
    s_cbranch_scc0 L_gotQ""")
    g.spin("L_pollQ", "L_gotQ", qsleep)
    A("L_gotQ:\ns_bfm_b64 exec, 48, 0")
    g.stamp(5)
    A(f"v_lshlrev_b32 v{T0}, 3, v1")
    for rb in range(1, 5):
        for e in range(4):
            A(f"v_add_f32 v{W+e}, v{W+e}, v{W+4*rb+e}")
    A(f"""v_cvt_pk_bf16_f32 v{W}, v{W}, v{W+1}
    v_cvt_pk_bf16_f32 v{W+1}, v{W+2}, v{W+3}
    ds_write_b64 v{T0}, v[{W}:{W+1}] offset:{L_Q}
    s_mov_b64 exec, -1
    s_waitcnt lgkmcnt(0)
    s_barrier""")
    g.stamp(6)
    if noffn >= 2: A("s_branch L_ffn_done")
    if noffn == 1: A("s_cmp_ge_u32 s96, 120\ns_cbranch_scc1 L_ffn_done")
    A(f"""s_cmp_lt_u32 s96, 120
    s_cbranch_scc1 L_gtask
    s_cmp_lt_u32 s96, 180
    s_cbranch_scc0 L_ffn_done
    s_mul_i32 s69, s96, 205
    s_lshr_b32 s69, s69, 10
    s_mul_i32 s70, s69, 5
    s_sub_u32 s70, s96, s70""")
    A(f"""s_sub_u32 s76, s69, 24
    s_mul_i32 s47, s76, 10240
    s_add_u32 s47, s47, {WS_G + 4096}
    v_lshl_add_u32 v{T0}, v1, 4, s47
    v_add_u32 v{T1}, 5120, v{T0}
    L_pollG:""")
    for j in range(5):
        A(f"global_load_dwordx4 v[{W+4*j}:{W+4*j+3}], v{T0}, s[26:27] offset:{j*1024-4096} sc1")
    for j in range(5):
        A(f"global_load_dwordx4 v[{W+20+4*j}:{W+20+4*j+3}], v{T1}, s[26:27] offset:{j*1024-4096} sc1")
    A("s_waitcnt vmcnt(0)")
    g.tagcheck(list(range(W, W + 40)), T2)
    A("s_cbranch_vccz L_gotG")
    g.spin("L_pollG", "L_gotG", lsleep)
    A("L_gotG:")
    for f in range(2):
        for j in range(1, 5):
            for e in range(4):
                A(f"v_add_f32 v{W+20*f+e}, v{W+20*f+e}, v{W+20*f+4*j+e}")
    S0_, S1_ = W, W + 20
    GG, UU = W + 4, W + 8
    for e in range(4):
        A(f"v_mov_b32 v{GG+e}, v{S0_+e}\nv_mov_b32 v{UU+e}, v{S1_+e}")
    A("s_nop 1")
    for e in range(4):
        A(f"v_mov_b32_dpp v{GG+e}, v{S1_+e} row_ror:8 row_mask:0xf bank_mask:0xc")
        A(f"v_mov_b32_dpp v{UU+e}, v{S0_+e} row_ror:8 row_mask:0xf bank_mask:0x3")
    for e in range(4):
        gg, uu = GG + e, UU + e
        g.rbf(gg); g.rbf(uu)
        A(f"""v_mul_f32 v{T2}, v{gg}, v{gg}
        v_mul_f32 v{T2}, v{T2}, v{gg}
        v_mov_b32 v{T3}, v{gg}
        v_fmac_f32 v{T3}, 0x3d372713, v{T2}
        v_mul_f32 v{T3}, 0xc0135761, v{T3}
        v_exp_f32 v{T3}, v{T3}
        s_nop 0
        v_add_f32 v{T3}, 1.0, v{T3}
        v_rcp_f32 v{T3}, v{T3}
        s_nop 0
        v_mul_f32 v{gg}, v{gg}, v{T3}""")
        g.rbf(gg)
        A(f"v_mul_f32 v{gg}, v{gg}, v{uu}")
    A(f"""v_cvt_pk_bf16_f32 v{GG}, v{GG}, v{GG+1}
    v_cvt_pk_bf16_f32 v{GG+1}, v{GG+2}, v{GG+3}""")

    def wr_h():
        A(f"""v_and_b32 v{T1}, 15, v1
        v_lshlrev_b32 v{T1}, 4, v{T1}
        v_and_b32 v{T2}, 32, v1
        v_lshl_add_u32 v{T1}, v{T2}, 3, v{T1}
        v_bfe_u32 v{T2}, v1, 4, 1
        v_lshl_add_u32 v{T1}, v{T2}, 3, v{T1}
        ds_write_b64 v{T1}, v[{GG}:{GG+1}] offset:{L_X}""")

    xbuf_roundtrip(wr_h)
    A(f"""v_lshrrev_b32 v{T0}, 4, v1
    v_mul_u32_u24 v2, 40960, v{T0}
    v_and_b32 v{T1}, 15, v1
    v_lshl_add_u32 v2, v{T1}, 4, v2
    s_mul_i32 s47, s76, 163840
    s_lshl_b32 s48, s70, 8
    s_add_u32 s47, s47, s48
    v_add_u32 v2, s47, v2
    v_mov_b32 v3, 0
    s_mov_b32 s62, 1280
    v_lshl_add_u64 v[2:3], v[2:3], 0, s[20:21]""")
    nat_off(T2, T1)
    A(f"""v_add_u32 v{T2}, s75, v{T2}
    s_branch L_tile2
    L_gtask:
    v_lshrrev_b32 v{T0}, 4, v1
    v_mul_u32_u24 v2, 98304, v{T0}
    v_and_b32 v{T1}, 7, v1
    v_lshl_add_u32 v2, v{T1}, 4, v2
    s_mul_i32 s47, s70, 393216
    s_lshl_b32 s48, s69, 7
    s_add_u32 s47, s47, s48
    v_add_u32 v2, s47, v2
    v_mov_b32 v3, 0
    s_mov_b32 s62, 3072
    v_and_b32 v{T1}, 8, v1
    v_cmp_eq_u32 vcc, 0, v{T1}
    v_mov_b32 v{T0}, s18
    v_mov_b32 v{T1}, s19
    v_mov_b32 v{T2}, s16
    v_mov_b32 v{T3}, s17
    v_cndmask_b32 v{T0}, v{T0}, v{T2}, vcc
    v_cndmask_b32 v{T1}, v{T1}, v{T3}, vcc
    v_lshl_add_u64 v[2:3], v[2:3], 0, v[{T0}:{T1}]
    v_lshl_add_u32 v{T2}, v1, 4, s75
    L_tile2:""")
    assert T0 % 2 == 0
    tile_issue()
    tile_compute(0)
    A(f"v_mov_b32 v{T1}, s80\ns_nop 7")
    g.tagput(range(DD, DD + 4), T1)
    A(f"""global_store_dwordx4 v{T2}, v[{DD}:{DD+3}], s[26:27] sc1
    L_ffn_done:""")
    g.stamp(7)
    GV, XO, YA = 8, 12, 16
    A(f"""s_cmp_lt_u32 s96, 176
    s_cbranch_scc1 L_c_done
    s_sub_u32 s77, s96, 176
    s_cmp_ge_u32 s77, 40
    s_cselect_b32 s78, 1, 0
    s_mul_i32 s47, s78, 40
    s_sub_u32 s77, s77, s47
    s_lshr_b32 s47, s77, 3
    s_lshl_b32 s47, s47, 10
    s_and_b32 s48, s77, 7
    s_lshl_b32 s48, s48, 6
    s_add_u32 s47, s47, s48
    s_lshl_b32 s48, s78, 9
    s_add_u32 s47, s47, s48
    s_add_u32 s47, s47, {WS_Y}
    v_lshrrev_b32 v{T0}, 2, v1
    v_mul_u32_u24 v{T0}, 5120, v{T0}
    v_and_b32 v{T1}, 3, v1
    v_lshl_add_u32 v{T0}, v{T1}, 4, v{T0}
    v_add_u32 v{YA}, s47, v{T0}
    v_add_u32 v{YA+1}, 81920, v{YA}
    v_add_u32 v{YA+2}, 81920, v{YA+1}
    v_add_u32 v{T0}, 81920, v{YA+2}
    s_mul_i32 s47, s78, 1280
    s_lshl_b32 s48, s77, 5
    s_add_u32 s47, s47, s48
    v_lshl_add_u32 v{YA+3}, v{T1}, 3, s47
    global_load_dwordx2 v[{XO}:{XO+1}], v{YA+3}, s[4:5]
    v_mov_b32 v{GV}, 0
    v_mov_b32 v{GV+1}, 0
    v_mov_b32 v{GV+2}, 0
    v_mov_b32 v{GV+3}, 0
    {"s_branch L_gotF" if noffn else ""}
    s_bfm_b64 exec, 48, 0
    L_pollF:
    global_load_dwordx4 v[{GV}:{GV+3}], v{T0}, s[26:27] sc1
    s_waitcnt vmcnt(0)""")
    g.tagcheck(list(range(GV, GV + 4)), T2)
    A("s_cbranch_vccz L_gotF")
    g.spin("L_pollF", "L_gotF", lsleep)
    A("L_gotF:\ns_mov_b64 exec, -1\ns_nop 1")

    def red16(base):
        for ctl in ["row_ror:4", "row_ror:8"]:
            for e in range(4):
                g.dpp("v_add_f32", base + e, base + e, base + e, ctl)
        for sw in ["v_permlane16_swap_b32", "v_permlane32_swap_b32"]:
            for e in range(4):
                A(f"v_mov_b32 v{T0+e}, v{base+e}")
            for e in range(4):
                A(f"{sw} v{base+e}, v{T0+e}")
            for e in range(4):
                A(f"v_add_f32 v{base+e}, v{base+e}, v{T0+e}")

    red16(GV)
    A(f"""v_and_b32 v{XO+3}, 0xffff0000, v{XO+1}
    v_lshlrev_b32 v{XO+2}, 16, v{XO+1}
    v_and_b32 v{XO+1}, 0xffff0000, v{XO}
    v_lshlrev_b32 v{XO}, 16, v{XO}""")
    for e in range(4):
        g.rbf(GV + e)
        A(f"""v_mul_f32 v{T3}, 0xbfb8aa3b, v{GV+e}
        v_exp_f32 v{T3}, v{T3}
        s_nop 0
        v_add_f32 v{T3}, 1.0, v{T3}
        v_rcp_f32 v{T3}, v{T3}
        s_nop 0
        v_mul_f32 v{GV+e}, v{GV+e}, v{T3}""")
        g.rbf(GV + e)
    A("L_c_done:")
    g.stamp(8)
    if atest:
        A(f"""s_mul_i32 s47, s66, 3
        s_lshr_b32 s47, s47, 1
        s_mul_i32 s47, s47, 5
        s_add_u32 s47, s47, s67
        s_lshl_b32 s47, s47, 8
        s_add_u32 s83, s47, {WS_C + 128}
        v_mov_b32 v{T0}, s83
        v_mov_b32 v{T1}, 1
        s_mov_b32 s84, 16
        L_at:
        s_memtime s[60:61]
        s_waitcnt lgkmcnt(0)""")
        if atest == 1:
            A("""s_mov_b32 s85, 1
            s_atomic_add s85, s[26:27], s83 glc
            s_waitcnt lgkmcnt(0)""")
        elif atest == 2:
            A(f"""s_mov_b64 exec, 1
            global_atomic_add v{T2}, v{T0}, v{T1}, s[26:27] sc0 sc1
            s_waitcnt vmcnt(0)
            s_mov_b64 exec, -1""")
        else:
            A(f"""s_mov_b64 exec, 1
            global_load_dword v{T2}, v{T0}, s[26:27] sc1
            s_waitcnt vmcnt(0)
            s_mov_b64 exec, -1""")
        A(f"""s_memtime s[86:87]
        s_waitcnt lgkmcnt(0)
        s_sub_u32 s86, s86, s60
        s_mov_b32 m0, s84
        s_add_u32 s84, s84, 1
        v_writelane_b32 v168, s86, m0
        s_sleep 8
        s_cmp_lt_u32 s84, 26
        s_cbranch_scc1 L_at""")
    MA = 20
    A(f"""v_lshrrev_b32 v{MA}, 4, v1
    v_lshlrev_b32 v{MA}, 10, v{MA}
    v_bfe_u32 v{T0}, v1, 1, 3
    v_lshl_add_u32 v{MA}, v{T0}, 4, v{MA}
    v_and_b32 v{T0}, 1, v1
    v_lshl_add_u32 v{MA}, v{T0}, 8, v{MA}
    v_mov_b32 v{MA+1}, 0
    v_lshl_add_u32 v{MA+2}, v1, 4, s68
    v_mov_b32 v{MA+3}, s80
    v_cmp_eq_u32 s[50:51], 48, v1
    s_barrier
    ds_read_b128 v[{AX0}:{AX0+3}], v{MA+1} offset:{L_ST}
    ds_read_b128 v[{AX1}:{AX1+3}], v{MA+1} offset:{L_ST+16}""")
    g.stamp(9)
    for w in range(4):
        A(f"ds_read_b128 v[{W+8*w}:{W+8*w+3}], v{MA} offset:{L_ACC+3072*w}")
        A(f"ds_read_b128 v[{W+8*w+4}:{W+8*w+7}], v{MA} offset:{L_ACC+3072*w+640}")
    ms = [AX0, AX0 + 2, AX1, AX1 + 2]
    A(f"""s_waitcnt lgkmcnt(8)
    v_max_f32 v{T0}, v{ms[0]}, v{ms[1]}
    v_max3_f32 v{T0}, v{T0}, v{ms[2]}, v{ms[3]}
    v_and_b32 v{T0}, s81, v{T0}""")
    for w in range(4):
        A(f"v_sub_f32 v{ms[w]}, v{ms[w]}, v{T0}")
    for w in range(4):
        A(f"v_exp_f32 v{ms[w]}, v{ms[w]}")
    A(f"s_nop 0\nv_mul_f32 v{T1}, v{ms[0]}, v{ms[0]+1}")
    for w in range(1, 4):
        A(f"v_fmac_f32 v{T1}, v{ms[w]}, v{ms[w]+1}")
    for w in range(4):
        A(f"s_waitcnt lgkmcnt({6-2*w})")
        for e in range(4):
            A(f"v_add_f32 v{W+8*w+e}, v{W+8*w+e}, v{W+8*w+4+e}")
        for e in range(4):
            if w == 0:
                A(f"v_mul_f32 v{DD+e}, v{ms[0]}, v{W+e}")
            else:
                A(f"v_fmac_f32 v{DD+e}, v{ms[w]}, v{W+8*w+e}")
    A(f"""v_cndmask_b32 v{DD}, v{DD}, v{T0}, s[50:51]
    v_cndmask_b32 v{DD+1}, v{DD+1}, v{T1}, s[50:51]""")
    g.tagput(range(DD, DD + 4), MA + 3)
    A(f"""s_bfm_b64 exec, 49, 0
    global_store_dwordx4 v{MA+2}, v[{DD}:{DD+3}], s[26:27] sc1
    s_mov_b64 exec, -1""")
    g.stamp(10)
    A(f"""s_cmp_ge_u32 s98, 240
    s_cbranch_scc1 L_noy""")
    nat_off(MA + 1, T1)
    A(f"""v_add_u32 v{MA+1}, s74, v{MA+1}
    v_lshlrev_b32 v{MA}, 4, v1
    s_barrier""")
    for w in range(4):
        A(f"ds_read_b128 v[{W+4*w}:{W+4*w+3}], v{MA} offset:{L_YP+1024*w}")
    for w in range(1, 4):
        A(f"s_waitcnt lgkmcnt({3-w})")
        for e in range(4):
            A(f"v_add_f32 v{W+e}, v{W+e}, v{W+4*w+e}")
    g.tagput(range(W, W + 4), MA + 3)
    A(f"""global_store_dwordx4 v{MA+1}, v[{W}:{W+3}], s[26:27] sc1
    L_noy:""")
    g.stamp(11)
    A(f"""s_cmp_lt_u32 s96, 176
    s_cbranch_scc1 L_adone
    L_pollY:""")
    Y0 = W + 16
    for k in range(3):
        A(f"global_load_dwordx4 v[{Y0+4*k}:{Y0+4*k+3}], v{YA+k}, s[26:27] sc1")
    A("s_waitcnt vmcnt(0)")
    g.tagcheck(list(range(Y0, Y0 + 12)), T2)
    A("s_cbranch_vccz L_gotY")
    g.spin("L_pollY", "L_gotY")
    A("L_gotY:")
    g.stamp(12)
    for k in range(1, 3):
        for e in range(4):
            A(f"v_add_f32 v{Y0+e}, v{Y0+e}, v{Y0+4*k+e}")
    A("s_nop 0")
    red16(Y0)
    for e in range(4):
        g.rbf(Y0 + e)
    for e in range(4):
        A(f"v_mul_f32 v{Y0+e}, v{Y0+e}, v{GV+e}")
    for e in range(4):
        g.rbf(Y0 + e)
    for e in range(4):
        A(f"v_add_f32 v{Y0+e}, v{Y0+e}, v{XO+e}")
    A(f"""v_cvt_pk_bf16_f32 v{Y0}, v{Y0}, v{Y0+1}
    v_cvt_pk_bf16_f32 v{Y0+1}, v{Y0+2}, v{Y0+3}
    s_mov_b64 exec, 15
    global_store_dwordx2 v{YA+3}, v[{Y0}:{Y0+1}], s[22:23]
    s_cmp_lg_u32 s96, 255
    s_cbranch_scc1 L_adone
    s_mov_b64 exec, 1
    v_mov_b32 v{T0}, {WS_E}
    v_mov_b32 v{T1}, s82
    global_store_dword v{T0}, v{T1}, s[26:27]{' sc1' if dbg else ''}
    L_adone:
    s_mov_b64 exec, -1""")
    g.stamp(13)
    g.stamp_flush(True)
    A("L_end:\ns_endpgm")

    nv = 176 if stamps else 168
    out = [HDR + f"; @launch grid=(256,1,1) block=(320,1,1) lds={LDS_BYTES}",
           '.amdgcn_target "amdgcn-amd-amdhsa--gfx950"', ".text", f".globl {KN}", ".p2align 8",
           f".type {KN},@function", f"{KN}:"] + g.L + [
        '.section .rodata,"a"', ".p2align 6", f".amdhsa_kernel {KN}",
        f"  .amdhsa_next_free_vgpr {nv}", "  .amdhsa_next_free_sgpr 102", f"  .amdhsa_accum_offset {nv}",
        "  .amdhsa_group_segment_fixed_size 0", "  .amdhsa_kernarg_size 96", "  .amdhsa_user_sgpr_count 2",
        "  .amdhsa_user_sgpr_kernarg_segment_ptr 1", "  .amdhsa_system_sgpr_workgroup_id_x 1",
        "  .amdhsa_float_denorm_mode_32 3", ".end_amdhsa_kernel"]
    return "\n".join(out) + "\n"


if __name__ == "__main__":
    kw = {}
    for kv in sys.argv[2:]:
        k, v = kv.split("=")
        kw[k] = int(v) if v.lstrip("-").isdigit() else v.replace("+", " ")
    open(sys.argv[1], "w").write(gen(**kw))
```

```python
import sys
KN = "recurrent_scan__gqa_block_cached__geglu_ffn__decode_kernel"

HDR = """; Kernarg layout for this problem (96 bytes, ptrs only, base s[0:1]):
;
"""

WS_Q = 0x00000
WS_E = 0x3F000
WS_O = 0x40000
WS_Y = 0x80000
WS_G = 0x100000
WS_D = 0x140000
WS_B = 0x180000
WS_STAMP = 0x200000
TAGM = 0x3ff
L_X = 0
L_Q = 512
L_FLAG = 896
L_DONE = 900
L_ST = 960
L_YP = 1024
L_ACC = 5120
LDS_BYTES = 5120 + 12288 + 2048

LOG2E = 0x3FB8AA3B
SCALE = 0x3D93CD3A


class G:
    def __init__(self, stamps, dbg):
        self.L = []
        self.stamps = stamps
        self.dbg = dbg
        self.nlab = 0

    def A(self, s):
        for x in s.split("\n"):
            x = x.strip()
            if x:
                self.L.append("    " + x if not x.endswith(":") else x)

    def lab(self, p="L"):
        self.nlab += 1
        return f"{p}_{self.nlab}"

    def stamp(self, idx):
        if not self.stamps:
            return
        self.A(f"""s_memrealtime s[60:61]
        s_waitcnt lgkmcnt(0)
        v_writelane_b32 v168, s60, {idx}""")

    def stamp_flush(self, aux=False):
        if not self.stamps:
            return
        if self.dbg:
            sel = ([(2, 1, 0), (3, 3, 0), (6, 8, 0), (7, 9, 0), (8, 9, 1), (9, 10, 0), (11, 11, 0), (12, 12, 0), (13, 13, 0), (14, 2, 0)] if aux
                   else [(0, 0, 1), (1, 0, 0), (4, 2, 0), (5, 2, 1), (10, 5, 0), (15, 1, 0)])
            self.A("s_mov_b64 exec, 1")
            lw = self.lab("L_dw"); lo = self.lab("L_dwo")
            self.A(f"""v_mov_b32 v170, {WS_E}
            s_mov_b32 s58, 20000
            {lw}:
            s_sleep 64
            global_load_dword v169, v170, s[26:27] sc1
            s_waitcnt vmcnt(0)
            v_and_b32 v169, {TAGM}, v169
            v_cmp_eq_u32 vcc, s80, v169
            s_cbranch_vccnz {lo}
            s_sub_u32 s58, s58, 1
            s_cmp_gt_i32 s58, 0
            s_cbranch_scc1 {lw}
            {lo}:
            s_sleep 64""")
            for slot, idx, inv in sel:
                l = self.lab("L_dbg")
                self.A(f"v_readlane_b32 s47, v168, {idx}\ns_nop 3\ns_cmp_eq_u32 s47, 0\ns_cbranch_scc1 {l}")
                if inv: self.A("s_not_b32 s47, s47")
                self.A(f"v_mov_b32 v169, s47\nv_mov_b32 v170, {slot*4}\nglobal_atomic_umax v170, v169, s[24:25]\n{l}:")
            self.A("s_mov_b64 exec, -1")
            return
        self.A(f"""s_mul_i32 s47, s2, 5
        s_add_u32 s47, s47, s79
        s_lshl_b32 s47, s47, 8
        s_add_u32 s47, s47, {WS_STAMP}
        v_lshl_add_u32 v169, v1, 2, s47
        global_store_dword v169, v168, s[26:27]""")

    def spin(self, back, sleep):
        if sleep: self.A(f"s_sleep {sleep}")
        self.A(f"""s_sub_u32 s58, s58, 1
        s_cmp_gt_i32 s58, 0
        s_cbranch_scc1 {back}""")

    def pick(self):
        self.A("""s_and_b32 s47, s58, 63
        s_cmp_eq_u32 s47, 0
        s_cselect_b64 s[92:93], s[90:91], s[26:27]""")

    def allred_16_32(self, op, v, t):
        self.A(f"""v_mov_b32 v{t}, v{v}
        s_nop 1
        v_permlane16_swap_b32 v{v}, v{t}
        s_nop 0
        {op} v{v}, v{v}, v{t}
        v_mov_b32 v{t}, v{v}
        s_nop 1
        v_permlane32_swap_b32 v{v}, v{t}
        s_nop 0
        {op} v{v}, v{v}, v{t}""")

    def dpp(self, op, d, a, b, ctl, bank="0xf"):
        self.A(f"{op}_dpp v{d}, v{a}, v{b} {ctl} row_mask:0xf bank_mask:{bank}")

    def tagcheck(self, regs, t):
        for r in regs:
            self.A(f"v_xor_b32 v{r}, s80, v{r}")
        self.A(f"v_or_b32 v{t}, v{regs[0]}, v{regs[1]}")
        for j in range(2, len(regs), 2):
            self.A(f"v_or3_b32 v{t}, v{t}, v{regs[j]}, v{regs[j+1]}")
        self.A(f"v_and_b32 v{t}, {TAGM}, v{t}\nv_cmp_ne_u32 vcc, 0, v{t}")

    def tagput(self, regs, tg):
        for r in regs:
            self.A(f"v_add_u32 v{r}, {(TAGM+1)//2}, v{r}")
        for r in regs:
            self.A(f"v_and_or_b32 v{r}, v{r}, s81, v{tg}")

    def rbf(self, v):
        self.A(f"""v_cvt_pk_bf16_f32 v{v}, v{v}, v{v}
        v_and_b32 v{v}, 0xffff0000, v{v}""")

    def masks(self, M, t0, t1):
        self.A(f"""v_and_b32 v{t0}, 1, v1
        v_lshlrev_b32 v{t0}, 4, v{t0}
        v_mov_b32 v{t1}, 0xffff
        v_lshlrev_b32 v{t0}, v{t0}, v{t1}
        v_bfe_u32 v{t1}, v1, 1, 2
        v_cmp_eq_u32 s[50:51], 0, v{t1}
        v_cmp_eq_u32 s[52:53], 1, v{t1}
        v_cmp_eq_u32 s[54:55], 2, v{t1}
        v_cmp_eq_u32 s[56:57], 3, v{t1}
        s_nop 0
        v_cndmask_b32 v{M}, 0, v{t0}, s[50:51]
        v_cndmask_b32 v{M+1}, 0, v{t0}, s[52:53]
        v_cndmask_b32 v{M+2}, 0, v{t0}, s[54:55]
        v_cndmask_b32 v{M+3}, 0, v{t0}, s[56:57]""")


def gen(stamps=0, pol="nt", sleep=1, lsleep=16, prio=3, pace=3, pre=0, ph=113, deep=0, ndone=6, dsleep=16,
        th=999, dbg=0, cpf=0, dual=1, fill4=1, wolate=0):
    g = G(stamps, dbg)
    A = g.A
    P = (" " + pol) if pol else ""
    M = 4
    A(f"""s_cmp_ge_u32 s2, 256
    s_cbranch_scc1 L_end
    s_load_dwordx16 s[4:19], s[0:1], 0
    s_load_dwordx8 s[20:27], s[0:1], 64
    v_lshrrev_b32 v2, 6, v0
    v_and_b32 v1, 63, v0
    v_readfirstlane_b32 s3, v2""")
    if stamps:
        A("v_mov_b32 v168, 0\ns_memrealtime s[60:61]\ns_mov_b32 s79, s3")
    A("""s_lshr_b32 s101, s2, 3
    s_and_b32 s95, s2, 7
    s_and_b32 s66, s101, 3
    s_lshl_b32 s47, s95, 2
    s_add_u32 s66, s66, s47
    s_bfe_u32 s67, s101, 0x10002
    s_lshr_b32 s49, s101, 3
    s_mul_i32 s96, s95, 30
    s_cmp_lg_u32 s3, 0
    s_cbranch_scc1 L_stream""")

    XP = 8; AX0 = 24; AX1 = 28; W = 32; DD = 160; T0, T1, T2, T3 = 164, 165, 166, 167
    A(f"""s_setprio {prio}
    s_add_u32 s97, s96, s101
    s_mul_i32 s69, s97, 205
    s_lshr_b32 s69, s69, 10
    s_mul_i32 s70, s69, 5
    s_sub_u32 s70, s97, s70
    v_lshrrev_b32 v{T0}, 4, v1
    v_and_b32 v{T1}, 7, v1
    v_bfe_u32 v{T2}, v1, 3, 1
    v_mul_u32_u24 v{T2}, 1280, v{T2}
    v_lshl_add_u32 v{T3}, v{T0}, 3, v{T1}
    v_lshl_add_u32 v{DD}, v{T3}, 4, v{T2}
    v_lshl_add_u32 v{DD+1}, v{T3}, 3, v{T2}
    s_lshl_b32 s47, s70, 8
    v_add_u32 v{DD+1}, s47, v{DD+1}
    v_mul_u32_u24 v2, 393216, v{T0}
    v_and_b32 v{T1}, 15, v1
    v_lshl_add_u32 v2, v{T1}, 4, v2
    s_mul_i32 s62, s70, 1572864
    s_lshl_b32 s48, s69, 8
    s_add_u32 s62, s62, s48
    v_mov_b32 v{XP+8}, 0
    v_mov_b32 v{XP+9}, 0
    v_mov_b32 v{XP+10}, 0
    v_mov_b32 v{XP+11}, 0
    s_mov_b32 s38, 7864320
    s_mov_b32 s39, 0x20000
    s_waitcnt lgkmcnt(0)""")
    if stamps:
        A("v_writelane_b32 v168, s60, 0")
    A(f"""s_mov_b32 s36, s10
    s_mov_b32 s37, s11
    global_load_dwordx4 v[{XP}:{XP+3}], v{DD}, s[4:5]
    global_load_dwordx4 v[{XP+4}:{XP+7}], v{DD}, s[4:5] offset:512
    global_load_dwordx2 v[{XP+12}:{XP+13}], v{DD+1}, s[4:5]
    s_bfm_b64 exec, 32, 0
    global_load_dwordx4 v[{XP+8}:{XP+11}], v{DD}, s[4:5] offset:1024
    s_mov_b64 exec, -1
    s_load_dword s80, s[26:27], {WS_E}
    s_cmp_ge_u32 s101, 30
    s_cbranch_scc1 L_noq1""")
    for i in range(32):
        A(f"buffer_load_dwordx4 v[{W+4*i}:{W+4*i+3}], v2, s[36:39], s62 offen{P}")
        if i < 31:
            A("s_add_u32 s62, s62, 12288")
    A(f"""L_noq1:
    s_barrier""")
    g.stamp(1)
    g.masks(M, T0, T1)
    A(f"""s_mov_b32 s81, {(~TAGM) & 0xffffffff}
    s_mov_b32 s64, 0x01000100
    s_mov_b32 s65, 0x03020302
    s_mov_b32 s58, 399999
    s_add_u32 s90, s26, {WS_B}
    s_addc_u32 s91, s27, 0
    v_mov_b32 v{T0}, 0
    v_mov_b32 v{T1}, 0
    ds_write_b64 v{T0}, v[{T0}:{T1}] offset:{L_FLAG}
    s_waitcnt lgkmcnt(0)
    s_add_u32 s82, s80, 1
    s_and_b32 s80, s82, {TAGM}
    s_mov_b32 s84, 1
    s_cmp_ge_u32 s101, 30
    s_cbranch_scc1 L_qgather""")
    SUM, VAR, MEAN = T0, T1, T2
    A(f"""s_mov_b32 s47, 0x3f803f80
    s_waitcnt vmcnt(32)""")
    for r in range(12):
        A(f"v_dot2c_f32_bf16 v{SUM}, s47, v{XP+r}")
    A("s_nop 2")

    def allred_stats(v, t):
        for ctl in ["quad_perm:[1,0,3,2]", "quad_perm:[2,3,0,1]", "row_half_mirror"]:
            g.dpp("v_add_f32", v, v, v, ctl)
            A("s_nop 1")
        g.allred_16_32("v_add_f32", v, t)

    allred_stats(SUM, T3)
    A(f"v_mul_f32 v{MEAN}, 0x3acccccd, v{SUM}")
    for r in range(12):
        if r == 8:
            A("s_bfm_b64 exec, 32, 0")
        A(f"""v_lshlrev_b32 v{AX1}, 16, v{XP+r}
        v_and_b32 v{AX1+1}, 0xffff0000, v{XP+r}
        v_sub_f32 v{AX1}, v{AX1}, v{MEAN}
        v_sub_f32 v{AX1+1}, v{AX1+1}, v{MEAN}
        v_fmac_f32 v{VAR}, v{AX1}, v{AX1}
        v_fmac_f32 v{VAR}, v{AX1+1}, v{AX1+1}""")
    A("s_mov_b64 exec, -1\ns_nop 1")
    allred_stats(VAR, T3)
    A(f"v_mul_f32 v{VAR}, 0x3acccccd, v{VAR}")
    g.rbf(VAR)
    g.rbf(MEAN)
    A(f"v_add_f32 v{VAR}, 0x3727c5ac, v{VAR}")
    g.rbf(VAR)
    A(f"v_sqrt_f32 v{VAR}, v{VAR}\ns_nop 0")
    g.rbf(VAR)
    A(f"v_rcp_f32 v{VAR}, v{VAR}")
    for k in range(2):
        r = XP + 12 + k
        A(f"""v_lshlrev_b32 v{AX1}, 16, v{r}
        v_and_b32 v{AX1+1}, 0xffff0000, v{r}
        v_sub_f32 v{AX1}, v{AX1}, v{MEAN}
        v_sub_f32 v{AX1+1}, v{AX1+1}, v{MEAN}
        v_cvt_pk_bf16_f32 v{r}, v{AX1}, v{AX1+1}
        v_lshlrev_b32 v{AX1}, 16, v{r}
        v_and_b32 v{AX1+1}, 0xffff0000, v{r}
        v_mul_f32 v{AX1}, v{AX1}, v{VAR}
        v_mul_f32 v{AX1+1}, v{AX1+1}, v{VAR}
        v_cvt_pk_bf16_f32 v{r}, v{AX1}, v{AX1+1}""")

    def xbuf_roundtrip(src):
        A(f"""v_lshrrev_b32 v{T0}, 4, v1
        v_lshlrev_b32 v{T0}, 6, v{T0}
        v_and_b32 v{T1}, 8, v1
        v_lshl_add_u32 v{T0}, v{T1}, 5, v{T0}""")
        src()
        A("s_waitcnt lgkmcnt(0)")
        for j in range(4):
            A(f"ds_read_b128 v[{XP+4*j}:{XP+4*j+3}], v{T0} offset:{L_X+16*j}")

    def wr_x():
        A(f"""v_and_b32 v{T1}, 7, v1
        v_lshl_add_u32 v{T1}, v{T1}, 3, v{T0}
        ds_write_b64 v{T1}, v[{XP+12}:{XP+13}] offset:{L_X}""")

    def tile_compute():
        for i in range(32):
            Ar = AX0 if i % 2 == 0 else AX1
            A(f"v_perm_b32 v{T3}, v{XP+(i>>1)}, v{XP+(i>>1)}, s{64+(i&1)}")
            for r in range(4):
                A(f"v_and_b32 v{Ar+r}, v{T3}, v{M+r}")
            A(f"s_waitcnt vmcnt({31-i})")
            A("s_nop 0")
            c = "0" if i == 0 else f"v[{DD}:{DD+3}]"
            A(f"v_mfma_f32_16x16x32_bf16 v[{DD}:{DD+3}], v[{Ar}:{Ar+3}], v[{W+4*i}:{W+4*i+3}], {c}")

    def nat_off(dst, tmp):
        A(f"""v_and_b32 v{dst}, 15, v1
        v_lshlrev_b32 v{dst}, 5, v{dst}
        v_and_b32 v{tmp}, 16, v1
        v_add_u32 v{dst}, v{dst}, v{tmp}
        v_and_b32 v{tmp}, 32, v1
        v_lshl_add_u32 v{dst}, v{tmp}, 4, v{dst}""")

    xbuf_roundtrip(wr_x)
    nat_off(T2, T1)
    A(f"""s_lshl_b32 s47, s97, 10
    v_add_u32 v{T2}, s47, v{T2}
    v_mov_b32 v{T1}, s80
    s_mov_b32 s84, 0
    s_waitcnt lgkmcnt(0)""")
    g.stamp(2)
    tile_compute()
    A("s_nop 7")
    g.tagput(range(DD, DD + 4), T1)
    A(f"global_store_dwordx4 v{T2}, v[{DD}:{DD+3}], s[26:27]{'' if dual else ' sc1'}")
    g.stamp(3)
    A(f"""L_qgather:
    s_mul_i32 s47, s66, 192
    v_lshl_add_u32 v{T0}, v1, 2, s47
    v_lshrrev_b32 v{T3}, 7, v{T0}
    v_mul_u32_u24 v{T3}, 5120, v{T3}
    v_and_b32 v{T0}, 127, v{T0}
    v_lshl_add_u32 v{T3}, v{T0}, 2, v{T3}
    s_lshl_b32 s47, s67, 9
    s_add_u32 s47, s47, {WS_Q + 2048}
    v_add_u32 v{T3}, s47, v{T3}
    s_bfm_b64 s[86:87], 48, 0
    s_mov_b64 s[88:89], s[86:87]
    s_mov_b64 s[98:99], s[86:87]
    s_mov_b64 s[76:77], s[86:87]
    s_mov_b64 s[74:75], s[86:87]
    s_mov_b64 s[92:93], s[26:27]
    L_pollQ:""")
    QM = [86, 88, 98, 76, 74]
    for rb in range(5):
        A(f"s_mov_b64 exec, s[{QM[rb]}:{QM[rb]+1}]")
        l = g.lab("L_pq")
        A(f"s_cbranch_execz {l}")
        A(f"global_load_dwordx4 v[{W+4*rb}:{W+4*rb+3}], v{T3}, s[92:93] offset:{rb*1024-2048} sc1")
        A(f"{l}:")
    if dual:
        A(f"""s_cmp_lg_u32 s84, 0
        s_cbranch_scc1 L_pq_w0
        s_mov_b32 s84, 1
        s_mov_b64 exec, -1
        global_store_dwordx4 v{T2}, v[{DD}:{DD+3}], s[90:91] sc1
        s_waitcnt vmcnt(1)
        s_branch L_pq_w1
        L_pq_w0:""")
    A("s_waitcnt vmcnt(0)\nL_pq_w1:")
    for rb in range(5):
        A(f"s_mov_b64 exec, s[{QM[rb]}:{QM[rb]+1}]")
        g.tagcheck(list(range(W + 4*rb, W + 4*rb + 4)), T0)
        A(f"s_mov_b64 s[{QM[rb]}:{QM[rb]+1}], vcc")
    A(f"""s_or_b64 s[50:51], s[{QM[0]}:{QM[0]+1}], s[{QM[1]}:{QM[1]+1}]
    s_or_b64 s[52:53], s[{QM[2]}:{QM[2]+1}], s[{QM[3]}:{QM[3]+1}]
    s_or_b64 s[50:51], s[50:51], s[{QM[4]}:{QM[4]+1}]
    s_or_b64 s[50:51], s[50:51], s[52:53]
    s_cbranch_scc0 L_gotQ""")
    if dual: g.pick()
    g.spin("L_pollQ", 0)
    A("L_gotQ:\ns_bfm_b64 exec, 48, 0")
    g.stamp(5)
    A(f"v_lshlrev_b32 v{T0}, 3, v1")
    for rb in range(1, 5):
        for e in range(4):
            A(f"v_add_f32 v{W+e}, v{W+e}, v{W+4*rb+e}")
    A(f"""v_cvt_pk_bf16_f32 v{W}, v{W}, v{W+1}
    v_cvt_pk_bf16_f32 v{W+1}, v{W+2}, v{W+3}
    ds_write_b64 v{T0}, v[{W}:{W+1}] offset:{L_Q}
    s_mov_b64 exec, -1
    s_waitcnt lgkmcnt(0)
    s_barrier
    s_branch L_aux2""")

    Q = 8; ACC = 20; A0 = 32; A1 = 36
    SA, SB, T, MM, MC, LL, PA, PB = 40, 41, 42, 43, 44, 45, 46, 47
    KA, VA, KB, VB = 48, 72, 96, 120
    FL, OOB, ZERO = 144, 145, 146
    OA, OS, BP0, BP1, LA, LS, LY = 148, 149, 150, 151, 152, 153, 154
    CP = 156
    OFFS = [0, 128, 256, 3072, 3200, 3328]

    def group(j, K, V, sreg):
        base = (K if j < 2 else V) + 12 * (j & 1)
        srd = 28 if j < 2 else 32
        for t in range(3):
            A(f"buffer_load_dwordx4 v[{base+4*t}:{base+4*t+3}], v2, s[{srd}:{srd+3}], s{sreg} offen offset:{OFFS[3*(j&1)+t]}{P}")

    def uoff(dst, src):
        A(f"""s_add_u32 s48, s{src}, s94
        s_and_b32 s48, s48, 255
        s_mul_i32 s48, s48, 6144
        s_add_u32 s{dst}, s40, s48""")

    A(f"""L_stream:
    s_sub_u32 s3, s3, 1
    s_lshl_b32 s42, s49, 2
    s_add_u32 s42, s42, s3
    s_lshl_b32 s40, s67, 5
    s_add_u32 s40, s40, s66
    s_mul_i32 s94, s40, {ph}
    s_mul_i32 s40, s40, 1572864
    v_lshrrev_b32 v2, 3, v1
    v_mul_u32_u24 v2, 384, v2
    v_and_b32 v3, 7, v1
    v_lshl_add_u32 v2, v3, 4, v2""")
    uoff(44, 42)
    A("""s_add_u32 s47, s42, 4
    s_and_b32 s47, s47, 15
    s_add_u32 s47, s47, 16""")
    uoff(43, 47)
    if cpf:
        A(f"""s_getpc_b64 s[50:51]
        L_pc:
        s_lshl_b32 s47, s3, 12
        s_sub_u32 s47, s47, L_pc-{KN}
        s_ashr_i32 s48, s47, 31
        s_add_u32 s50, s50, s47
        s_addc_u32 s51, s51, s48
        v_lshlrev_b32 v{CP}, 4, v1
        v_mov_b32 v{CP+1}, 0
        v_lshl_add_u64 v[{CP}:{CP+1}], v[{CP}:{CP+1}], 0, s[50:51]""")
        for j in range(4):
            A(f"global_load_dwordx4 v[{CP+4}:{CP+7}], v[{CP}:{CP+1}], off offset:{j*1024}")
    A("""s_mov_b32 s30, 100663296
    s_mov_b32 s31, 0x20000
    s_mov_b32 s34, 100663296
    s_mov_b32 s35, 0x20000
    s_waitcnt lgkmcnt(0)""")
    if stamps:
        A("v_writelane_b32 v168, s60, 0")
    A("""s_mov_b32 s28, s6
    s_mov_b32 s29, s7
    s_mov_b32 s32, s8
    s_mov_b32 s33, s9""")
    seq = [(0, KB, VB, 44), (1, KB, VB, 44), (2, KB, VB, 44), (3, KB, VB, 44), (0, KA, VA, 43), (1, KA, VA, 43)]
    if fill4: seq += [(2, KA, VA, 43), (3, KA, VA, 43)]
    for n, (j, K, V, sr) in enumerate(seq):
        if n == pre:
            A("s_barrier")
        if n == 2:
            A(f"s_load_dword s80, s[26:27], {WS_E}")
            g.masks(M, T, PA)
            A(f"""s_add_u32 s98, s101, 17
            s_and_b32 s98, s98, 31
            s_cmp_ge_u32 s98, 30
            s_cselect_b32 s83, 1, 0
            s_add_u32 s98, s98, s96
            s_mul_i32 s69, s98, 205
            s_lshr_b32 s69, s69, 10
            s_mul_i32 s70, s69, 5
            s_sub_u32 s70, s98, s70
            s_mov_b32 s36, s12
            s_mov_b32 s37, s13
            s_mov_b32 s38, 7864320
            s_mov_b32 s39, 0x20000
            s_lshl_b32 s71, s69, 2
            s_add_u32 s71, s71, s3
            s_mul_i32 s72, s71, 40960
            s_lshl_b32 s47, s70, 8
            s_add_u32 s72, s72, s47
            s_add_u32 s73, s72, 5120
            v_lshrrev_b32 v3, 4, v1
            v_mul_u32_u24 v3, 10240, v3
            v_and_b32 v{T}, 15, v1
            v_lshl_add_u32 v3, v{T}, 4, v3
            s_lshl_b32 s47, s83, 30
            v_add_u32 v3, s47, v3
            s_mov_b32 s41, 1
            s_mov_b32 s46, {LOG2E}
            s_mov_b32 s58, 399999
            s_add_u32 s90, s26, {WS_B}
            s_addc_u32 s91, s27, 0
            s_mov_b64 s[92:93], s[26:27]""")
        if n == 3:
            for r in range(12):
                A(f"v_mov_b32 v{ACC+r}, 0")
            A(f"""v_mov_b32 v{MM}, 0xff800000
            v_mov_b32 v{MC}, 0xff800000
            v_mov_b32 v{LL}, 0
            v_mov_b32 v{OOB}, 0x7ff00000
            v_mov_b32 v{ZERO}, 0
            s_mul_i32 s47, s71, 171
            s_lshr_b32 s47, s47, 10
            s_mul_i32 s48, s47, 6
            s_sub_u32 s48, s71, s48
            s_lshl_b32 s47, s47, 13
            s_add_u32 s47, s47, {WS_O}
            v_and_b32 v{OS}, 7, v1
            v_lshl_add_u32 v{OS}, v{OS}, 10, s47
            v_lshrrev_b32 v{OA}, 3, v1
            s_lshl_b32 s48, s48, 7
            v_lshl_add_u32 v{OA}, v{OA}, 4, s48
            v_add_u32 v{OA}, v{OA}, v{OS}
            v_lshrrev_b32 v{BP0}, 4, v1
            v_lshlrev_b32 v{BP0}, 6, v{BP0}
            v_and_b32 v{BP1}, 8, v1
            v_lshl_add_u32 v{BP0}, v{BP1}, 1, v{BP0}
            v_add_u32 v{BP1}, 32, v{BP0}
            s_mul_i32 s47, s3, 3072
            v_lshl_add_u32 v{LA}, v1, 4, s47
            s_lshl_b32 s47, s3, 3
            v_mov_b32 v{LS}, s47
            s_lshl_b32 s47, s3, 10
            v_lshl_add_u32 v{LY}, v1, 4, s47""")
        if n >= 2:
            A(f"s_waitcnt vmcnt({pace})")
        group(j, K, V, sr)
    g.stamp(1)
    A(f"""s_add_u32 s85, s42, 8
    s_and_b32 s85, s85, 15
    s_add_u32 s85, s85, 32
    s_add_u32 s47, s42, 12
    s_and_b32 s47, s47, 15
    s_add_u32 s47, s47, 240""")
    uoff(44, 47)
    A(f"""s_mov_b32 s45, 0
    s_mov_b32 s100, 1
    s_mov_b32 s84, 16
    v_and_b32 v{T}, 7, v1
    v_lshlrev_b32 v{T}, 4, v{T}
    s_waitcnt lgkmcnt(0)
    s_add_u32 s80, s80, 1
    s_and_b32 s80, s80, {TAGM}
    s_barrier
    ds_read_b128 v[{Q}:{Q+3}], v{T} offset:{L_Q}
    ds_read_b128 v[{Q+4}:{Q+7}], v{T} offset:{L_Q+128}
    ds_read_b128 v[{Q+8}:{Q+11}], v{T} offset:{L_Q+256}
    s_waitcnt lgkmcnt(0)""")
    g.stamp(2)

    def softmax_part():
        for ctl in ["quad_perm:[1,0,3,2]", "quad_perm:[2,3,0,1]", "row_half_mirror"]:
            g.dpp("v_add_f32", SA, SA, SA, ctl)
            g.dpp("v_add_f32", SB, SB, SB, ctl)
            A("s_nop 0")
        skip = g.lab("L_skip")
        A(f"""v_cvt_pk_bf16_f32 v{T}, v{SA}, v{SB}
        v_lshlrev_b32 v{SA}, 16, v{T}
        v_and_b32 v{SB}, 0xffff0000, v{T}
        v_mul_f32 v{SA}, {SCALE}, v{SA}
        v_mul_f32 v{SB}, {SCALE}, v{SB}
        v_cvt_pk_bf16_f32 v{T}, v{SA}, v{SB}
        v_lshlrev_b32 v{SA}, 16, v{T}
        v_and_b32 v{SB}, 0xffff0000, v{T}
        v_max_f32 v{T}, v{SA}, v{SB}
        v_cmp_gt_f32 vcc, v{T}, v{MM}
        s_cbranch_vccz {skip}""")
        g.dpp("v_max_f32", T, T, T, "row_ror:8")
        g.allred_16_32("v_max_f32", T, PA)
        A(f"""v_max_f32 v{MM}, v{MM}, v{T}
        v_mul_f32 v{PA}, s46, v{MM}
        v_sub_f32 v{PB}, v{MC}, v{PA}
        v_exp_f32 v{PB}, v{PB}
        v_mov_b32 v{MC}, v{PA}
        v_mul_f32 v{LL}, v{LL}, v{PB}""")
        for r in range(12):
            A(f"v_mul_f32 v{ACC+r}, v{ACC+r}, v{PB}")
        A(f"""{skip}:
        v_fma_f32 v{PA}, v{SA}, s46, -v{MC}
        v_fma_f32 v{PB}, v{SB}, s46, -v{MC}
        v_exp_f32 v{PA}, v{PA}
        v_exp_f32 v{PB}, v{PB}
        s_nop 0
        v_add_f32 v{LL}, v{LL}, v{PA}
        v_cvt_pk_bf16_f32 v{PA}, v{PA}, v{PA}
        v_add_f32 v{LL}, v{LL}, v{PB}
        v_cvt_pk_bf16_f32 v{PB}, v{PB}, v{PB}""")
        for r in range(4):
            A(f"v_and_b32 v{A0+r}, v{PA}, v{M+r}")
        for r in range(4):
            A(f"v_and_b32 v{A1+r}, v{PB}, v{M+r}")

    def consume(j, K, V):
        if j < 2:
            for r in range(12):
                A(f"v_dot2c_f32_bf16 v{SA+j}, v{K+12*j+r}, v{Q+r}")
        else:
            Ar = A0 if j == 2 else A1
            for t in range(3):
                b = V + 12 * (j - 2) + 4 * t
                A(f"v_mfma_f32_16x16x32_bf16 v[{ACC+4*t}:{ACC+4*t+3}], v[{Ar}:{Ar+3}], v[{b}:{b+3}], v[{ACC+4*t}:{ACC+4*t+3}]")

    def dummies(n):
        for j in range(n):
            A(f"buffer_load_dword v{FL}, v{OOB}, s[36:39], 0 offen")

    def advance():
        A("""s_add_u32 s48, s85, 4
        s_and_b32 s48, s48, 15
        s_andn2_b32 s85, s85, 15
        s_add_u32 s85, s85, s48
        s_add_u32 s85, s85, 16""")

    def prog():
        if stamps:
            A("""s_waitcnt lgkmcnt(0)
            s_mov_b32 m0, s84
            s_add_u32 s84, s84, 1
            s_min_u32 s84, s84, 63
            v_writelane_b32 v168, s60, m0""")

    A(f"L_F:\nv_mov_b32 v{SA}, 0\nv_mov_b32 v{SB}, 0")
    for j in range(4):
        if j == 2:
            A("s_nop 2"); softmax_part()
        A(f"s_waitcnt vmcnt({15 - 3*j})")
        consume(j, KB, VB)
    A("s_cmp_lg_u32 s45, 0\ns_cbranch_scc1 L_exit")
    A("L_loop:")
    if stamps: A("s_memrealtime s[60:61]")
    if deep: A(f"ds_read_b32 v{FL}, v{ZERO} offset:{L_FLAG}")
    A(f"v_mov_b32 v{SA}, 0\nv_mov_b32 v{SB}, 0\ns_waitcnt vmcnt(3)")
    consume(0, KA, VA)
    if fill4: A("s_cmp_lg_u32 s41, 0\ns_cbranch_scc1 L_sk0")
    group(2, KA, VA, 43)
    A("L_sk0:\ns_waitcnt vmcnt(3)")
    consume(1, KA, VA)
    if fill4: A("s_cmp_lg_u32 s41, 0\ns_mov_b32 s41, 0\ns_cbranch_scc1 L_sk1")
    group(3, KA, VA, 43)
    A("L_sk1:")
    if th < 999:
        A(f"s_cmp_ge_u32 s85, {th + 16}\ns_cbranch_scc1 L_early\nL_early_ret:")
    softmax_part()
    A("s_waitcnt vmcnt(3)")
    consume(2, KA, VA)
    prog()
    A("s_cmp_ge_u32 s85, 240\ns_cbranch_scc1 L_last")
    uoff(43, 85)
    group(0, KA, VA, 43)
    advance()
    if deep: A(f"s_waitcnt lgkmcnt(0)\nv_readfirstlane_b32 s47, v{FL}")
    A("s_waitcnt vmcnt(3)")
    consume(3, KA, VA)
    group(1, KA, VA, 43)
    if deep:
        A("s_cmp_eq_u32 s47, 0\ns_cbranch_scc1 L_loop")
        group(2, KA, VA, 43); group(3, KA, VA, 43)
        for j in range(4): group(j, KB, VB, 44)
        A("s_mov_b32 s100, 0\nL_deep:")
        if stamps: A("s_memrealtime s[60:61]")
        A(f"v_mov_b32 v{SA}, 0\nv_mov_b32 v{SB}, 0")
        for j in range(4):
            if j == 2: softmax_part()
            A("s_waitcnt vmcnt(9)")
            consume(j, KA, VA)
            if j == 0:
                prog()
                A("s_cmp_ge_u32 s85, 240\ns_cselect_b32 s45, 1, 0\ns_cbranch_scc1 L_dsub0")
                uoff(43, 85)
                group(0, KA, VA, 43)
                advance()
                A("L_dret0:")
            elif j < 3:
                A(f"s_cmp_lg_u32 s45, 0\ns_cbranch_scc1 L_dsub{j}")
                group(j, KA, VA, 43)
                A(f"L_dret{j}:")
            else:
                A("s_cmp_lg_u32 s45, 0\ns_cbranch_scc1 L_F")
                group(3, KA, VA, 43)
                A("s_branch L_deep")
        for j in range(3):
            A(f"L_dsub{j}:")
            dummies(3)
            A(f"s_branch L_dret{j}")
    else:
        A("s_branch L_loop")
    if th < 999:
        A("L_early:\ns_mov_b32 s100, 0")
        for j in range(4): group(j, KB, VB, 44)
        A("s_branch L_early_ret")
    A("L_last:")
    g.stamp(3)
    A("s_mov_b32 s45, 1")
    if th < 999:
        A("s_cmp_eq_u32 s100, 0\ns_cbranch_scc1 L_last3")
    for j in range(4): group(j, KB, VB, 44)
    WO = KA

    def wo_loads():
        for j in range(8):
            o = j * 1280
            A(f"buffer_load_dwordx4 v[{WO+4*j}:{WO+4*j+3}], v3, s[36:39], s{72 if o < 4096 else 73} offen offset:{o if o < 4096 else o-5120}{P}")
    if wolate:
        dummies(6)
        A("s_waitcnt vmcnt(18)")
    else:
        assert th == 999 and not deep
        wo_loads()
        A("s_waitcnt vmcnt(20)")
    if th < 999:
        A("s_branch L_last4\nL_last3:\ns_waitcnt vmcnt(0)\nL_last4:")
    consume(3, KA, VA)
    A("s_branch L_F")
    A("L_exit:")
    if wolate: wo_loads()
    g.stamp(4)
    g.dpp("v_add_f32", LL, LL, LL, "row_ror:8")
    g.allred_16_32("v_add_f32", LL, T)
    O0, S0, XR = 108, 112, 96
    A(f"""v_mov_b32 v{T}, 1
    ds_write_b128 v{LA}, v[{ACC}:{ACC+3}] offset:{L_ACC}
    ds_write_b128 v{LA}, v[{ACC+4}:{ACC+7}] offset:{L_ACC+1024}
    ds_write_b128 v{LA}, v[{ACC+8}:{ACC+11}] offset:{L_ACC+2048}
    ds_write_b64 v{LS}, v[{MC}:{LL}] offset:{L_ST}""")
    if deep: A(f"ds_write_b32 v{ZERO}, v{T} offset:{L_DONE}")
    A(f"""s_waitcnt lgkmcnt(0)
    s_barrier
    s_cmp_lg_u32 s83, 0
    s_cbranch_scc1 L_sdone
    L_pollO:
    global_load_dwordx4 v[{O0}:{O0+3}], v{OA}, s[92:93] sc1
    global_load_dwordx4 v[{S0}:{S0+3}], v{OS}, s[92:93] offset:768 sc1
    s_waitcnt vmcnt(0)""")
    g.tagcheck(list(range(O0, O0 + 8)), T)
    A("s_cbranch_vccz L_gotO")
    if dual: g.pick()
    g.spin("L_pollO", sleep)
    A("L_gotO:")
    g.stamp(5)
    g.dpp("v_max_f32", T, S0, S0, "quad_perm:[1,0,3,2]")
    A("s_nop 1")
    g.dpp("v_max_f32", T, T, T, "quad_perm:[2,3,0,1]")
    A(f"""v_sub_f32 v{T}, v{S0}, v{T}
    v_exp_f32 v{T}, v{T}
    s_nop 0
    v_mul_f32 v{S0+1}, v{S0+1}, v{T}""")
    for e in range(4):
        A(f"v_mul_f32 v{O0+e}, v{O0+e}, v{T}")
    for ctl in ["quad_perm:[1,0,3,2]", "quad_perm:[2,3,0,1]"]:
        g.dpp("v_add_f32", S0 + 1, S0 + 1, S0 + 1, ctl)
        for e in range(4):
            g.dpp("v_add_f32", O0 + e, O0 + e, O0 + e, ctl)
    A(f"""v_rcp_f32 v{T}, v{S0+1}
    s_nop 0""")
    for e in range(4):
        A(f"v_mul_f32 v{O0+e}, v{O0+e}, v{T}")
    for e in range(4):
        A(f"v_cvt_pk_bf16_f32 v{O0+e}, v{O0+e}, v{O0+e}")
    for rq in range(8):
        A(f"ds_bpermute_b32 v{XR+rq}, v{BP0 if rq < 4 else BP1}, v{O0+(rq&3)}")
    D = ACC
    AR = [A0, A1, 116, 120]
    for rq in range(8):
        A(f"s_waitcnt lgkmcnt({7-rq})")
        Ar = AR[rq % 4]
        for r in range(4):
            A(f"v_and_b32 v{Ar+r}, v{XR+rq}, v{M+r}")
        if rq >= 1:
            p = rq - 1
            c = "0" if p == 0 else f"v[{D}:{D+3}]"
            A(f"v_mfma_f32_16x16x32_bf16 v[{D}:{D+3}], v[{AR[p%4]}:{AR[p%4]+3}], v[{WO+4*p}:{WO+4*p+3}], {c}")
    A(f"""s_nop 0
    v_mfma_f32_16x16x32_bf16 v[{D}:{D+3}], v[{AR[3]}:{AR[3]+3}], v[{WO+28}:{WO+31}], v[{D}:{D+3}]
    s_nop 7
    ds_write_b128 v{LY}, v[{D}:{D+3}] offset:{L_YP}
    s_waitcnt lgkmcnt(0)
    s_barrier
    L_sdone:""")
    g.stamp(6)
    g.stamp_flush()
    A("s_endpgm")

    A("L_aux2:")
    g.stamp(6)
    A(f"""s_mul_i32 s96, s95, 15
    s_add_u32 s96, s96, s101
    s_sub_u32 s69, s101, 15
    s_sub_u32 s70, s101, 24
    s_cmp_ge_u32 s101, 30
    s_cselect_b32 s69, s70, s69
    s_cselect_b32 s48, 0, s69
    s_lshl_b32 s70, s95, 3
    s_add_u32 s70, s70, s69
    s_add_u32 s70, s70, 120
    s_cmp_lt_u32 s48, 6
    s_cselect_b32 s70, s70, 255
    s_cmp_lt_u32 s101, 15
    s_cselect_b32 s96, s96, s70
    s_mul_i32 s59, s95, 10
    s_sub_u32 s69, s101, 21
    s_add_u32 s59, s59, s69
    s_cmp_lt_u32 s69, 10
    s_cselect_b32 s59, s59, 255
    s_lshl_b32 s68, s66, 3
    s_lshl_b32 s47, s67, 2
    s_add_u32 s68, s68, s47
    s_add_u32 s68, s68, s49
    s_lshl_b32 s68, s68, 10
    s_add_u32 s68, s68, {WS_O}
    s_add_u32 s98, s101, 17
    s_and_b32 s98, s98, 31
    s_cmp_ge_u32 s98, 30
    s_cselect_b32 s83, 1, 0
    s_mul_i32 s74, s95, 30
    s_add_u32 s74, s74, s98
    s_lshl_b32 s74, s74, 10
    s_add_u32 s74, s74, {WS_Y}
    s_lshl_b32 s47, s96, 10
    s_add_u32 s75, s47, {WS_G}
    s_add_u32 s48, s47, {WS_Y + 120*1024}
    s_cmp_lt_u32 s96, 120
    s_cselect_b32 s75, s75, s48
    s_mul_i32 s69, s96, 205
    s_lshr_b32 s69, s69, 10
    s_mul_i32 s70, s69, 5
    s_sub_u32 s70, s96, s70
    s_mov_b32 s63, 0
    s_cmp_lt_u32 s96, 120
    s_cbranch_scc1 L_gtask
    s_cmp_lt_u32 s96, 180
    s_cbranch_scc0 L_ffn_done""")
    A(f"""s_sub_u32 s76, s69, 24
    s_mul_i32 s47, s76, 10240
    s_add_u32 s47, s47, {WS_G + 4096}
    v_lshl_add_u32 v{T0}, v1, 4, s47
    v_add_u32 v{T1}, 5120, v{T0}
    L_pollG:
    s_sleep {lsleep}""")
    for j in range(5):
        A(f"global_load_dwordx4 v[{W+4*j}:{W+4*j+3}], v{T0}, s[26:27] offset:{j*1024-4096} sc1")
    for j in range(5):
        A(f"global_load_dwordx4 v[{W+20+4*j}:{W+20+4*j+3}], v{T1}, s[26:27] offset:{j*1024-4096} sc1")
    A("s_waitcnt vmcnt(0)")
    g.tagcheck(list(range(W, W + 40)), T2)
    A("s_cbranch_vccz L_gotG")
    g.spin("L_pollG", lsleep)
    A("L_gotG:")
    for f in range(2):
        for j in range(1, 5):
            for e in range(4):
                A(f"v_add_f32 v{W+20*f+e}, v{W+20*f+e}, v{W+20*f+4*j+e}")
    S0_, S1_ = W, W + 20
    GG, UU = W + 4, W + 8
    for e in range(4):
        A(f"v_mov_b32 v{GG+e}, v{S0_+e}\nv_mov_b32 v{UU+e}, v{S1_+e}")
    A("s_nop 1")
    for e in range(4):
        A(f"v_mov_b32_dpp v{GG+e}, v{S1_+e} row_ror:8 row_mask:0xf bank_mask:0xc")
        A(f"v_mov_b32_dpp v{UU+e}, v{S0_+e} row_ror:8 row_mask:0xf bank_mask:0x3")
    for e in range(4):
        gg, uu = GG + e, UU + e
        g.rbf(gg); g.rbf(uu)
        A(f"""v_mul_f32 v{T2}, v{gg}, v{gg}
        v_mul_f32 v{T2}, v{T2}, v{gg}
        v_mov_b32 v{T3}, v{gg}
        v_fmac_f32 v{T3}, 0x3d372713, v{T2}
        v_mul_f32 v{T3}, 0xc0135761, v{T3}
        v_exp_f32 v{T3}, v{T3}
        s_nop 0
        v_add_f32 v{T3}, 1.0, v{T3}
        v_rcp_f32 v{T3}, v{T3}
        s_nop 0
        v_mul_f32 v{gg}, v{gg}, v{T3}""")
        g.rbf(gg)
        A(f"v_mul_f32 v{gg}, v{gg}, v{uu}")
    A(f"""v_cvt_pk_bf16_f32 v{GG}, v{GG}, v{GG+1}
    v_cvt_pk_bf16_f32 v{GG+1}, v{GG+2}, v{GG+3}""")

    def wr_h():
        A(f"""v_and_b32 v{T1}, 15, v1
        v_lshlrev_b32 v{T1}, 4, v{T1}
        v_and_b32 v{T2}, 32, v1
        v_lshl_add_u32 v{T1}, v{T2}, 3, v{T1}
        v_bfe_u32 v{T2}, v1, 4, 1
        v_lshl_add_u32 v{T1}, v{T2}, 3, v{T1}
        ds_write_b64 v{T1}, v[{GG}:{GG+1}] offset:{L_X}""")

    xbuf_roundtrip(wr_h)
    A(f"""v_lshrrev_b32 v{T0}, 4, v1
    v_mul_u32_u24 v2, 40960, v{T0}
    v_and_b32 v{T1}, 15, v1
    v_lshl_add_u32 v2, v{T1}, 4, v2
    s_mul_i32 s47, s76, 163840
    s_lshl_b32 s48, s70, 8
    s_add_u32 s47, s47, s48
    v_add_u32 v2, s47, v2
    v_mov_b32 v3, 0
    s_mov_b32 s62, 1280
    v_lshl_add_u64 v[2:3], v[2:3], 0, s[20:21]""")
    nat_off(T2, T1)
    A(f"""v_add_u32 v{T2}, s75, v{T2}
    s_waitcnt lgkmcnt(0)
    s_branch L_tile2
    L_gtask:
    v_lshrrev_b32 v{T0}, 4, v1
    v_mul_u32_u24 v2, 98304, v{T0}
    v_and_b32 v{T1}, 7, v1
    v_lshl_add_u32 v2, v{T1}, 4, v2
    s_mul_i32 s47, s70, 393216
    s_lshl_b32 s48, s69, 7
    s_add_u32 s47, s47, s48
    v_add_u32 v2, s47, v2
    v_mov_b32 v3, 0
    s_mov_b32 s62, 3072
    v_and_b32 v{T1}, 8, v1
    v_cmp_eq_u32 vcc, 0, v{T1}
    v_mov_b32 v{T0}, s18
    v_mov_b32 v{T1}, s19
    v_mov_b32 v{T2}, s16
    v_mov_b32 v{T3}, s17
    v_cndmask_b32 v{T0}, v{T0}, v{T2}, vcc
    v_cndmask_b32 v{T1}, v{T1}, v{T3}, vcc
    v_lshl_add_u64 v[2:3], v[2:3], 0, v[{T0}:{T1}]
    v_lshl_add_u32 v{T2}, v1, 4, s75
    L_tile2:""")
    for i in range(32):
        A(f"global_load_dwordx4 v[{W+4*i}:{W+4*i+3}], v[2:3], off{P}")
        if i < 31:
            A("v_lshl_add_u64 v[2:3], v[2:3], 0, s[62:63]")
    tile_compute()
    A(f"v_mov_b32 v{T1}, s80\ns_nop 7")
    g.tagput(range(DD, DD + 4), T1)
    A(f"""global_store_dwordx4 v{T2}, v[{DD}:{DD+3}], s[26:27] sc1
    L_ffn_done:""")
    g.stamp(7)
    GV, XO, YA = 8, 12, 16
    A(f"""s_cmp_ge_u32 s59, 80
    s_cbranch_scc1 L_c_done
    s_cmp_ge_u32 s59, 40
    s_cselect_b32 s78, 1, 0
    s_mul_i32 s47, s78, 40
    s_sub_u32 s77, s59, s47
    s_lshr_b32 s47, s77, 3
    s_lshl_b32 s47, s47, 10
    s_and_b32 s48, s77, 7
    s_lshl_b32 s48, s48, 6
    s_add_u32 s47, s47, s48
    s_lshl_b32 s48, s78, 9
    s_add_u32 s47, s47, s48
    s_add_u32 s47, s47, {WS_Y}
    v_lshrrev_b32 v{T0}, 2, v1
    v_mul_u32_u24 v{T0}, 5120, v{T0}
    v_and_b32 v{T1}, 3, v1
    v_lshl_add_u32 v{T0}, v{T1}, 4, v{T0}
    v_add_u32 v{YA}, s47, v{T0}
    v_add_u32 v{YA+1}, 81920, v{YA}
    v_add_u32 v{YA+2}, 81920, v{YA+1}
    v_add_u32 v{T0}, 81920, v{YA+2}
    s_mul_i32 s47, s78, 1280
    s_lshl_b32 s48, s77, 5
    s_add_u32 s47, s47, s48
    v_lshl_add_u32 v{YA+3}, v{T1}, 3, s47
    global_load_dwordx2 v[{XO}:{XO+1}], v{YA+3}, s[4:5]
    v_mov_b32 v{GV}, 0
    v_mov_b32 v{GV+1}, 0
    v_mov_b32 v{GV+2}, 0
    v_mov_b32 v{GV+3}, 0
    s_bfm_b64 exec, 48, 0
    L_pollF:
    s_sleep {2*lsleep}
    global_load_dwordx4 v[{GV}:{GV+3}], v{T0}, s[26:27] sc1
    s_waitcnt vmcnt(0)""")
    g.tagcheck(list(range(GV, GV + 4)), T2)
    A("s_cbranch_vccz L_gotF")
    g.spin("L_pollF", lsleep)
    A("L_gotF:\ns_mov_b64 exec, -1\ns_nop 1")

    def red16(base):
        for ctl in ["row_ror:4", "row_ror:8"]:
            for e in range(4):
                g.dpp("v_add_f32", base + e, base + e, base + e, ctl)
        for sw in ["v_permlane16_swap_b32", "v_permlane32_swap_b32"]:
            for e in range(4):
                A(f"v_mov_b32 v{T0+e}, v{base+e}")
            for e in range(4):
                A(f"{sw} v{base+e}, v{T0+e}")
            for e in range(4):
                A(f"v_add_f32 v{base+e}, v{base+e}, v{T0+e}")

    red16(GV)
    A(f"""v_and_b32 v{XO+3}, 0xffff0000, v{XO+1}
    v_lshlrev_b32 v{XO+2}, 16, v{XO+1}
    v_and_b32 v{XO+1}, 0xffff0000, v{XO}
    v_lshlrev_b32 v{XO}, 16, v{XO}""")
    for e in range(4):
        g.rbf(GV + e)
        A(f"""v_mul_f32 v{T3}, 0xbfb8aa3b, v{GV+e}
        v_exp_f32 v{T3}, v{T3}
        s_nop 0
        v_add_f32 v{T3}, 1.0, v{T3}
        v_rcp_f32 v{T3}, v{T3}
        s_nop 0
        v_mul_f32 v{GV+e}, v{GV+e}, v{T3}""")
        g.rbf(GV + e)
    A("L_c_done:")
    g.stamp(8)
    MA = 20
    A(f"""v_lshrrev_b32 v{MA}, 4, v1
    v_lshlrev_b32 v{MA}, 10, v{MA}
    v_bfe_u32 v{T0}, v1, 1, 3
    v_lshl_add_u32 v{MA}, v{T0}, 4, v{MA}
    v_and_b32 v{T0}, 1, v1
    v_lshl_add_u32 v{MA}, v{T0}, 8, v{MA}
    v_mov_b32 v{MA+1}, 0
    v_lshl_add_u32 v{MA+2}, v1, 4, s68
    v_mov_b32 v{MA+3}, s80
    v_cmp_eq_u32 s[50:51], 48, v1""")
    nat_off(2, T1)
    A(f"""v_add_u32 v2, s74, v2
    v_lshlrev_b32 v{DD}, 4, v1""")
    if deep:
        A(f"""s_lshl_b32 s47, s95, 7
        s_add_u32 s47, s47, {WS_D}
        v_lshl_add_u32 v{T0}, v1, 2, s47
        s_lshl_b32 s48, s101, 2
        s_add_u32 s47, s47, s48
        v_mov_b32 v3, s47
        s_bfm_b64 exec, 32, 0
        L_pollD:
        s_sleep {dsleep}
        global_load_dword v{T1}, v{T0}, s[26:27] sc1
        ds_read_b32 v{T2}, v{MA+1} offset:{L_DONE}
        s_waitcnt vmcnt(0) lgkmcnt(0)
        v_cmp_ne_u32 vcc, 0, v{T2}
        s_cbranch_vccnz L_gotD
        v_cmp_eq_u32 vcc, s82, v{T1}
        s_bcnt1_i32_b64 s47, vcc
        s_cmp_ge_u32 s47, {ndone}
        s_cbranch_scc1 L_setD""")
        g.spin("L_pollD", 0)
        A(f"""L_setD:
        v_mov_b32 v{T1}, 1
        ds_write_b32 v{MA+1}, v{T1} offset:{L_FLAG}
        L_gotD:
        s_mov_b64 exec, -1
        v_mov_b32 v{T3}, s82""")
    A(f"""s_barrier
    ds_read_b128 v[{AX0}:{AX0+3}], v{MA+1} offset:{L_ST}
    ds_read_b128 v[{AX1}:{AX1+3}], v{MA+1} offset:{L_ST+16}""")
    g.stamp(9)
    for w in range(4):
        A(f"ds_read_b128 v[{W+8*w}:{W+8*w+3}], v{MA} offset:{L_ACC+3072*w}")
        A(f"ds_read_b128 v[{W+8*w+4}:{W+8*w+7}], v{MA} offset:{L_ACC+3072*w+640}")
    ms = [AX0, AX0 + 2, AX1, AX1 + 2]
    OD = W + 32
    A(f"""s_waitcnt lgkmcnt(8)
    v_max_f32 v{T0}, v{ms[0]}, v{ms[1]}
    v_max3_f32 v{T0}, v{T0}, v{ms[2]}, v{ms[3]}
    v_and_b32 v{T0}, s81, v{T0}""")
    for w in range(4):
        A(f"v_sub_f32 v{ms[w]}, v{ms[w]}, v{T0}")
    for w in range(4):
        A(f"v_exp_f32 v{ms[w]}, v{ms[w]}")
    A(f"s_nop 0\nv_mul_f32 v{T1}, v{ms[0]}, v{ms[0]+1}")
    for w in range(1, 4):
        A(f"v_fmac_f32 v{T1}, v{ms[w]}, v{ms[w]+1}")
    for w in range(4):
        A(f"s_waitcnt lgkmcnt({6-2*w})")
        for e in range(4):
            A(f"v_add_f32 v{W+8*w+e}, v{W+8*w+e}, v{W+8*w+4+e}")
        for e in range(4):
            if w == 0:
                A(f"v_mul_f32 v{OD+e}, v{ms[0]}, v{W+e}")
            else:
                A(f"v_fmac_f32 v{OD+e}, v{ms[w]}, v{W+8*w+e}")
    A(f"""v_cndmask_b32 v{OD}, v{OD}, v{T0}, s[50:51]
    v_cndmask_b32 v{OD+1}, v{OD+1}, v{T1}, s[50:51]""")
    g.tagput(range(OD, OD + 4), MA + 3)
    A(f"""s_bfm_b64 exec, 49, 0
    global_store_dwordx4 v{MA+2}, v[{OD}:{OD+3}], s[26:27]{'' if dual else ' sc1'}""")
    if dual: A(f"global_store_dwordx4 v{MA+2}, v[{OD}:{OD+3}], s[90:91] sc1")
    if deep: A(f"s_mov_b64 exec, 1\nglobal_store_dword v3, v{T3}, s[26:27]")
    A("s_mov_b64 exec, -1")
    g.stamp(10)
    A(f"""s_cmp_lg_u32 s83, 0
    s_cbranch_scc1 L_noy
    s_barrier""")
    for w in range(4):
        A(f"ds_read_b128 v[{W+4*w}:{W+4*w+3}], v{DD} offset:{L_YP+1024*w}")
    for w in range(1, 4):
        A(f"s_waitcnt lgkmcnt({3-w})")
        for e in range(4):
            A(f"v_add_f32 v{W+e}, v{W+e}, v{W+4*w+e}")
    g.tagput(range(W, W + 4), MA + 3)
    A(f"""global_store_dwordx4 v2, v[{W}:{W+3}], s[26:27] sc1
    L_noy:""")
    g.stamp(11)
    A(f"""s_cmp_ge_u32 s59, 80
    s_cbranch_scc1 L_adone
    L_pollY:""")
    Y0 = W + 16
    for k in range(3):
        A(f"global_load_dwordx4 v[{Y0+4*k}:{Y0+4*k+3}], v{YA+k}, s[26:27] sc1")
    A("s_waitcnt vmcnt(0)")
    g.tagcheck(list(range(Y0, Y0 + 12)), T2)
    A("s_cbranch_vccz L_gotY")
    g.spin("L_pollY", sleep)
    A("L_gotY:")
    g.stamp(12)
    for k in range(1, 3):
        for e in range(4):
            A(f"v_add_f32 v{Y0+e}, v{Y0+e}, v{Y0+4*k+e}")
    A("s_nop 0")
    red16(Y0)
    for e in range(4):
        g.rbf(Y0 + e)
    for e in range(4):
        A(f"v_mul_f32 v{Y0+e}, v{Y0+e}, v{GV+e}")
    for e in range(4):
        g.rbf(Y0 + e)
    for e in range(4):
        A(f"v_add_f32 v{Y0+e}, v{Y0+e}, v{XO+e}")
    A(f"""v_cvt_pk_bf16_f32 v{Y0}, v{Y0}, v{Y0+1}
    v_cvt_pk_bf16_f32 v{Y0+1}, v{Y0+2}, v{Y0+3}
    s_mov_b64 exec, 15
    global_store_dwordx2 v{YA+3}, v[{Y0}:{Y0+1}], s[22:23]
    s_cmp_lg_u32 s59, 79
    s_cbranch_scc1 L_adone
    s_mov_b64 exec, 1
    v_mov_b32 v{T0}, {WS_E}
    v_mov_b32 v{T1}, s82
    global_store_dword v{T0}, v{T1}, s[26:27]{' sc1' if dbg else ''}
    L_adone:
    s_mov_b64 exec, -1""")
    g.stamp(13)
    g.stamp_flush(True)
    A("L_end:\ns_endpgm")
    if cpf:
        A(f".fill (16384 - (. - {KN}))/4, 4, 0xbf810000")

    nv = 176 if stamps else 168
    out = [HDR + f"; @launch grid=(256,1,1) block=(320,1,1) lds={LDS_BYTES}",
           '.amdgcn_target "amdgcn-amd-amdhsa--gfx950"', ".text", f".globl {KN}", ".p2align 8",
           f".type {KN},@function", f"{KN}:"] + g.L + [
        '.section .rodata,"a"', ".p2align 6", f".amdhsa_kernel {KN}",
        f"  .amdhsa_next_free_vgpr {nv}", "  .amdhsa_next_free_sgpr 102", f"  .amdhsa_accum_offset {nv}",
        "  .amdhsa_group_segment_fixed_size 0", "  .amdhsa_kernarg_size 96", "  .amdhsa_user_sgpr_count 2",
        "  .amdhsa_user_sgpr_kernarg_segment_ptr 1", "  .amdhsa_system_sgpr_workgroup_id_x 1",
        "  .amdhsa_float_denorm_mode_32 3", ".end_amdhsa_kernel"]
    return "\n".join(out) + "\n"


if __name__ == "__main__":
    kw = {}
    for kv in sys.argv[2:]:
        k, v = kv.split("=")
        kw[k] = int(v) if v.lstrip("-").isdigit() else v.replace("+", " ")
    open(sys.argv[1], "w").write(gen(**kw))
```

```python
import sys
KN = "recurrent_scan__gqa_block_cached__geglu_ffn__decode_kernel"

HDR = """; Kernarg layout for this problem (96 bytes, ptrs only, base s[0:1]):
;
"""

WS_Q = 0x00000
WS_E = 0x3F000
WS_O = 0x40000
WS_Y = 0x80000
WS_G = 0x100000
WS_D = 0x140000
WS_B = 0x180000
WS_STAMP = 0x200000
TAGM = 0x3ff
L_X = 0
L_Q = 512
L_FLAG = 896
L_DONE = 900
L_ST = 960
L_YP = 1024
L_ACC = 5120
LDS_BYTES = 5120 + 12288 + 2048

LOG2E = 0x3FB8AA3B
SCALE = 0x3D93CD3A


class G:
    def __init__(self, stamps, dbg):
        self.L = []
        self.stamps = stamps
        self.dbg = dbg
        self.nlab = 0

    def A(self, s):
        for x in s.split("\n"):
            x = x.strip()
            if x:
                self.L.append("    " + x if not x.endswith(":") else x)

    def lab(self, p="L"):
        self.nlab += 1
        return f"{p}_{self.nlab}"

    def stamp(self, idx):
        if not self.stamps:
            return
        self.A(f"""s_memrealtime s[60:61]
        s_waitcnt lgkmcnt(0)
        v_writelane_b32 v168, s60, {idx}""")

    def stamp_flush(self, aux=False):
        if not self.stamps:
            return
        if self.dbg:
            sel = ([(2, 1, 0), (3, 3, 0), (6, 8, 0), (7, 9, 0), (8, 9, 1), (9, 10, 0), (11, 11, 0), (12, 12, 0), (13, 13, 0), (14, 2, 0)] if aux
                   else [(0, 0, 1), (1, 0, 0), (4, 2, 0), (5, 2, 1), (10, 5, 0), (15, 1, 0)])
            self.A("s_mov_b64 exec, 1")
            lw = self.lab("L_dw"); lo = self.lab("L_dwo")
            self.A(f"""v_mov_b32 v170, {WS_E}
            s_mov_b32 s58, 20000
            {lw}:
            s_sleep 64
            global_load_dword v169, v170, s[26:27] sc1
            s_waitcnt vmcnt(0)
            v_and_b32 v169, {TAGM}, v169
            v_cmp_eq_u32 vcc, s80, v169
            s_cbranch_vccnz {lo}
            s_sub_u32 s58, s58, 1
            s_cmp_gt_i32 s58, 0
            s_cbranch_scc1 {lw}
            {lo}:
            s_sleep 64""")
            for slot, idx, inv in sel:
                l = self.lab("L_dbg")
                self.A(f"v_readlane_b32 s47, v168, {idx}\ns_nop 3\ns_cmp_eq_u32 s47, 0\ns_cbranch_scc1 {l}")
                if inv: self.A("s_not_b32 s47, s47")
                self.A(f"v_mov_b32 v169, s47\nv_mov_b32 v170, {slot*4}\nglobal_atomic_umax v170, v169, s[24:25]\n{l}:")
            self.A("s_mov_b64 exec, -1")
            return
        self.A(f"""s_mul_i32 s47, s2, 5
        s_add_u32 s47, s47, s79
        s_lshl_b32 s47, s47, 8
        s_add_u32 s47, s47, {WS_STAMP}
        v_lshl_add_u32 v169, v1, 2, s47
        global_store_dword v169, v168, s[26:27]""")

    def spin(self, back, sleep):
        if sleep: self.A(f"s_sleep {sleep}")
        self.A(f"""s_sub_u32 s58, s58, 1
        s_cmp_gt_i32 s58, 0
        s_cbranch_scc1 {back}""")

    def pick(self):
        self.A("""s_and_b32 s47, s58, 63
        s_cmp_eq_u32 s47, 0
        s_cselect_b64 s[92:93], s[90:91], s[26:27]""")

    def allred_16_32(self, op, v, t):
        self.A(f"""v_mov_b32 v{t}, v{v}
        s_nop 1
        v_permlane16_swap_b32 v{v}, v{t}
        s_nop 0
        {op} v{v}, v{v}, v{t}
        v_mov_b32 v{t}, v{v}
        s_nop 1
        v_permlane32_swap_b32 v{v}, v{t}
        s_nop 0
        {op} v{v}, v{v}, v{t}""")

    def dpp(self, op, d, a, b, ctl, bank="0xf"):
        self.A(f"{op}_dpp v{d}, v{a}, v{b} {ctl} row_mask:0xf bank_mask:{bank}")

    def tagcheck(self, regs, t):
        for r in regs:
            self.A(f"v_xor_b32 v{r}, s80, v{r}")
        self.A(f"v_or_b32 v{t}, v{regs[0]}, v{regs[1]}")
        for j in range(2, len(regs), 2):
            self.A(f"v_or3_b32 v{t}, v{t}, v{regs[j]}, v{regs[j+1]}")
        self.A(f"v_and_b32 v{t}, {TAGM}, v{t}\nv_cmp_ne_u32 vcc, 0, v{t}")

    def tagput(self, regs, tg):
        for r in regs:
            self.A(f"v_add_u32 v{r}, {(TAGM+1)//2}, v{r}")
        for r in regs:
            self.A(f"v_and_or_b32 v{r}, v{r}, s81, v{tg}")

    def rbf(self, v):
        self.A(f"""v_cvt_pk_bf16_f32 v{v}, v{v}, v{v}
        v_and_b32 v{v}, 0xffff0000, v{v}""")

    def masks(self, M, t0, t1):
        self.A(f"""v_and_b32 v{t0}, 1, v1
        v_lshlrev_b32 v{t0}, 4, v{t0}
        v_mov_b32 v{t1}, 0xffff
        v_lshlrev_b32 v{t0}, v{t0}, v{t1}
        v_bfe_u32 v{t1}, v1, 1, 2
        v_cmp_eq_u32 s[50:51], 0, v{t1}
        v_cmp_eq_u32 s[52:53], 1, v{t1}
        v_cmp_eq_u32 s[54:55], 2, v{t1}
        v_cmp_eq_u32 s[56:57], 3, v{t1}
        s_nop 0
        v_cndmask_b32 v{M}, 0, v{t0}, s[50:51]
        v_cndmask_b32 v{M+1}, 0, v{t0}, s[52:53]
        v_cndmask_b32 v{M+2}, 0, v{t0}, s[54:55]
        v_cndmask_b32 v{M+3}, 0, v{t0}, s[56:57]""")


def isize(line):
    t = line.strip()
    if not t or t.endswith(":") or t.startswith((";", "@", ".")):
        return 0
    op = t.split()[0]
    if op.startswith(("buffer_", "global_", "ds_", "s_load", "s_memrealtime", "s_memtime", "v_mfma", "v_perm_b32", "v_cvt_pk", "v_lshl_add", "v_and_or",
                      "v_or3", "v_max3", "v_fma_", "v_bfe", "v_writelane", "v_readlane", "v_add3")) or "_dpp" in op:
        return 8
    if op.startswith(("v_cmp", "v_cndmask")) and "s[" in t:
        return 8
    import re
    args = t[len(op):]
    for m in re.finditer(r"(?<![\w\[:])(-?0x[0-9a-fA-F]+|-?\d+)(?![\w\]:.])", args):
        v = int(m.group(1), 0)
        if not (-16 <= v <= 64) and not op.startswith(("s_waitcnt", "s_nop", "s_sleep", "s_setprio")):
            return 8
    return 4


def insert_pads(L, space):
    out = []
    i = 0
    while i < len(L):
        t = L[i].strip()
        if not t.startswith("@chain"):
            out.append(L[i]); i += 1; continue
        _, name, n, ret = t.split(); n = int(n)
        j = i + 1
        body = []
        while L[j].strip() != "@end":
            body.append(L[j]); j += 1
        pos = []; acc = space; ok = True
        for k, ln in enumerate(body):
            tt = ln.strip()
            if tt == "@nopad":
                if ok and acc > 64: pos.append(k); acc = 0
                ok = False
                continue
            if tt == "@pad":
                ok = True
                continue
            sz = isize(ln)
            if ok and sz and acc + sz > space:
                pos.append(k); acc = 0
            acc += sz
        per = -(-len(pos) // n)
        lab = {}
        for q, k in enumerate(pos):
            c = q // per
            first = q % per == 0
            last = q % per == per - 1 or q == len(pos) - 1
            me = f"{name}_{c}" if first else f"{name}_p{q}"
            nxt = ret if last else f"{name}_p{q+1}"
            lab[k] = [f"{me}:", f"    s_cbranch_execz {nxt}"]
        assert (len(pos) - 1) // per == n - 1, (name, len(pos), n)
        for k, ln in enumerate(body):
            if k in lab: out += lab[k]
            if ln.strip() not in ("@nopad", "@pad"): out.append(ln)
        i = j + 1
    return out


def gen(stamps=0, pol="nt", sleep=1, lsleep=16, prio=3, pace=3, pre=0, ph=113, deep=0, ndone=6, dsleep=16,
        th=999, dbg=0, cpf=0, dual=1, fill4=1, wolate=0, warm=0, space=192):
    g = G(stamps, dbg)
    A = g.A
    P = (" " + pol) if pol else ""
    M = 4
    A(f"""s_cmp_ge_u32 s2, 256
    s_cbranch_scc1 L_end
    s_load_dwordx16 s[4:19], s[0:1], 0
    s_load_dwordx8 s[20:27], s[0:1], 64
    v_lshrrev_b32 v2, 6, v0
    v_and_b32 v1, 63, v0
    v_readfirstlane_b32 s3, v2""")
    if stamps:
        A("v_mov_b32 v168, 0\ns_memrealtime s[60:61]\ns_mov_b32 s79, s3")
    A("""s_lshr_b32 s101, s2, 3
    s_and_b32 s95, s2, 7
    s_and_b32 s66, s101, 3
    s_lshl_b32 s47, s95, 2
    s_add_u32 s66, s66, s47
    s_bfe_u32 s67, s101, 0x10002
    s_lshr_b32 s49, s101, 3
    s_mul_i32 s96, s95, 30
    s_cmp_lg_u32 s3, 0
    s_cbranch_scc1 L_stream""")

    XP = 8; AX0 = 24; AX1 = 28; W = 32; DD = 160; T0, T1, T2, T3 = 164, 165, 166, 167
    A(f"""s_setprio {prio}
    s_add_u32 s97, s96, s101
    s_mul_i32 s69, s97, 205
    s_lshr_b32 s69, s69, 10
    s_mul_i32 s70, s69, 5
    s_sub_u32 s70, s97, s70
    v_lshrrev_b32 v{T0}, 4, v1
    v_and_b32 v{T1}, 7, v1
    v_bfe_u32 v{T2}, v1, 3, 1
    v_mul_u32_u24 v{T2}, 1280, v{T2}
    v_lshl_add_u32 v{T3}, v{T0}, 3, v{T1}
    v_lshl_add_u32 v{DD}, v{T3}, 4, v{T2}
    v_lshl_add_u32 v{DD+1}, v{T3}, 3, v{T2}
    s_lshl_b32 s47, s70, 8
    v_add_u32 v{DD+1}, s47, v{DD+1}
    v_mul_u32_u24 v2, 393216, v{T0}
    v_and_b32 v{T1}, 15, v1
    v_lshl_add_u32 v2, v{T1}, 4, v2
    s_mul_i32 s62, s70, 1572864
    s_lshl_b32 s48, s69, 8
    s_add_u32 s62, s62, s48
    v_mov_b32 v{XP+8}, 0
    v_mov_b32 v{XP+9}, 0
    v_mov_b32 v{XP+10}, 0
    v_mov_b32 v{XP+11}, 0
    s_mov_b32 s38, 7864320
    s_mov_b32 s39, 0x20000""")
    if warm & 1: A("s_mov_b64 exec, 0\ns_branch WI_0\nL_wi_ret:\ns_mov_b64 exec, -1")
    A("s_waitcnt lgkmcnt(0)")
    if stamps:
        A("v_writelane_b32 v168, s60, 0")
    A(f"""s_mov_b32 s36, s10
    s_mov_b32 s37, s11
    global_load_dwordx4 v[{XP}:{XP+3}], v{DD}, s[4:5]
    global_load_dwordx4 v[{XP+4}:{XP+7}], v{DD}, s[4:5] offset:512
    global_load_dwordx2 v[{XP+12}:{XP+13}], v{DD+1}, s[4:5]
    s_bfm_b64 exec, 32, 0
    global_load_dwordx4 v[{XP+8}:{XP+11}], v{DD}, s[4:5] offset:1024
    s_mov_b64 exec, -1
    s_load_dword s80, s[26:27], {WS_E}
    s_cmp_ge_u32 s101, 30
    s_cbranch_scc1 L_noq1""")
    if warm & 1: A("@chain WI 1 L_wi_ret")
    for i in range(32):
        A(f"buffer_load_dwordx4 v[{W+4*i}:{W+4*i+3}], v2, s[36:39], s62 offen{P}")
        if i < 31:
            A("s_add_u32 s62, s62, 12288")
    if warm & 1: A("@end")
    A(f"""L_noq1:
    s_barrier""")
    if warm & 2: A("@chain WQ 4 L_wq_ret")
    g.stamp(1)
    g.masks(M, T0, T1)
    A(f"""s_mov_b32 s81, {(~TAGM) & 0xffffffff}
    s_mov_b32 s64, 0x01000100
    s_mov_b32 s65, 0x03020302
    s_mov_b32 s58, 399999
    s_add_u32 s90, s26, {WS_B}
    s_addc_u32 s91, s27, 0
    v_mov_b32 v{T0}, 0
    v_mov_b32 v{T1}, 0
    ds_write_b64 v{T0}, v[{T0}:{T1}] offset:{L_FLAG}
    s_waitcnt lgkmcnt(0)
    s_add_u32 s82, s80, 1
    s_and_b32 s80, s82, {TAGM}
    s_mov_b32 s84, 1
    s_cmp_ge_u32 s101, 30
    s_cbranch_scc1 L_qgather""")
    SUM, VAR, MEAN = T0, T1, T2
    A(f"""s_mov_b32 s47, 0x3f803f80
    s_waitcnt vmcnt(32)""")
    for r in range(12):
        A(f"v_dot2c_f32_bf16 v{SUM}, s47, v{XP+r}")
    A("s_nop 2")

    def allred_stats(v, t):
        for ctl in ["quad_perm:[1,0,3,2]", "quad_perm:[2,3,0,1]", "row_half_mirror"]:
            g.dpp("v_add_f32", v, v, v, ctl)
            A("s_nop 1")
        g.allred_16_32("v_add_f32", v, t)

    allred_stats(SUM, T3)
    A(f"v_mul_f32 v{MEAN}, 0x3acccccd, v{SUM}")
    for r in range(12):
        if r == 8:
            A("s_bfm_b64 exec, 32, 0")
        A(f"""v_lshlrev_b32 v{AX1}, 16, v{XP+r}
        v_and_b32 v{AX1+1}, 0xffff0000, v{XP+r}
        v_sub_f32 v{AX1}, v{AX1}, v{MEAN}
        v_sub_f32 v{AX1+1}, v{AX1+1}, v{MEAN}
        v_fmac_f32 v{VAR}, v{AX1}, v{AX1}
        v_fmac_f32 v{VAR}, v{AX1+1}, v{AX1+1}""")
    A("s_mov_b64 exec, -1\ns_nop 1")
    allred_stats(VAR, T3)
    A(f"v_mul_f32 v{VAR}, 0x3acccccd, v{VAR}")
    g.rbf(VAR)
    g.rbf(MEAN)
    A(f"v_add_f32 v{VAR}, 0x3727c5ac, v{VAR}")
    g.rbf(VAR)
    A(f"v_sqrt_f32 v{VAR}, v{VAR}\ns_nop 0")
    g.rbf(VAR)
    A(f"v_rcp_f32 v{VAR}, v{VAR}")
    for k in range(2):
        r = XP + 12 + k
        A(f"""v_lshlrev_b32 v{AX1}, 16, v{r}
        v_and_b32 v{AX1+1}, 0xffff0000, v{r}
        v_sub_f32 v{AX1}, v{AX1}, v{MEAN}
        v_sub_f32 v{AX1+1}, v{AX1+1}, v{MEAN}
        v_cvt_pk_bf16_f32 v{r}, v{AX1}, v{AX1+1}
        v_lshlrev_b32 v{AX1}, 16, v{r}
        v_and_b32 v{AX1+1}, 0xffff0000, v{r}
        v_mul_f32 v{AX1}, v{AX1}, v{VAR}
        v_mul_f32 v{AX1+1}, v{AX1+1}, v{VAR}
        v_cvt_pk_bf16_f32 v{r}, v{AX1}, v{AX1+1}""")

    def xbuf_roundtrip(src):
        A(f"""v_lshrrev_b32 v{T0}, 4, v1
        v_lshlrev_b32 v{T0}, 6, v{T0}
        v_and_b32 v{T1}, 8, v1
        v_lshl_add_u32 v{T0}, v{T1}, 5, v{T0}""")
        src()
        A("s_waitcnt lgkmcnt(0)")
        for j in range(4):
            A(f"ds_read_b128 v[{XP+4*j}:{XP+4*j+3}], v{T0} offset:{L_X+16*j}")

    def wr_x():
        A(f"""v_and_b32 v{T1}, 7, v1
        v_lshl_add_u32 v{T1}, v{T1}, 3, v{T0}
        ds_write_b64 v{T1}, v[{XP+12}:{XP+13}] offset:{L_X}""")

    def tile_compute():
        for i in range(32):
            Ar = AX0 if i % 2 == 0 else AX1
            A(f"v_perm_b32 v{T3}, v{XP+(i>>1)}, v{XP+(i>>1)}, s{64+(i&1)}")
            for r in range(4):
                A(f"v_and_b32 v{Ar+r}, v{T3}, v{M+r}")
            A(f"s_waitcnt vmcnt({31-i})")
            A("s_nop 0")
            c = "0" if i == 0 else f"v[{DD}:{DD+3}]"
            A(f"v_mfma_f32_16x16x32_bf16 v[{DD}:{DD+3}], v[{Ar}:{Ar+3}], v[{W+4*i}:{W+4*i+3}], {c}")

    def nat_off(dst, tmp):
        A(f"""v_and_b32 v{dst}, 15, v1
        v_lshlrev_b32 v{dst}, 5, v{dst}
        v_and_b32 v{tmp}, 16, v1
        v_add_u32 v{dst}, v{dst}, v{tmp}
        v_and_b32 v{tmp}, 32, v1
        v_lshl_add_u32 v{dst}, v{tmp}, 4, v{dst}""")

    xbuf_roundtrip(wr_x)
    nat_off(T2, T1)
    A(f"""s_lshl_b32 s47, s97, 10
    v_add_u32 v{T2}, s47, v{T2}
    v_mov_b32 v{T1}, s80
    s_mov_b32 s84, 0
    s_waitcnt lgkmcnt(0)""")
    g.stamp(2)
    tile_compute()
    A("s_nop 7")
    g.tagput(range(DD, DD + 4), T1)
    A(f"global_store_dwordx4 v{T2}, v[{DD}:{DD+3}], s[26:27]{'' if dual else ' sc1'}")
    g.stamp(3)
    A(f"""L_qgather:
    s_mul_i32 s47, s66, 192
    v_lshl_add_u32 v{T0}, v1, 2, s47
    v_lshrrev_b32 v{T3}, 7, v{T0}
    v_mul_u32_u24 v{T3}, 5120, v{T3}
    v_and_b32 v{T0}, 127, v{T0}
    v_lshl_add_u32 v{T3}, v{T0}, 2, v{T3}
    s_lshl_b32 s47, s67, 9
    s_add_u32 s47, s47, {WS_Q + 2048}
    v_add_u32 v{T3}, s47, v{T3}
    s_bfm_b64 s[86:87], 48, 0
    s_mov_b64 s[88:89], s[86:87]
    s_mov_b64 s[98:99], s[86:87]
    s_mov_b64 s[76:77], s[86:87]
    s_mov_b64 s[74:75], s[86:87]
    s_mov_b64 s[92:93], s[26:27]
    @nopad
    L_pollQ:""")
    QM = [86, 88, 98, 76, 74]
    for rb in range(5):
        A(f"s_mov_b64 exec, s[{QM[rb]}:{QM[rb]+1}]")
        l = g.lab("L_pq")
        A(f"s_cbranch_execz {l}")
        A(f"global_load_dwordx4 v[{W+4*rb}:{W+4*rb+3}], v{T3}, s[92:93] offset:{rb*1024-2048} sc1")
        A(f"{l}:")
    if dual:
        A(f"""s_cmp_lg_u32 s84, 0
        s_cbranch_scc1 L_pq_w0
        s_mov_b32 s84, 1
        s_mov_b64 exec, -1
        global_store_dwordx4 v{T2}, v[{DD}:{DD+3}], s[90:91] sc1
        s_waitcnt vmcnt(1)
        s_branch L_pq_w1
        L_pq_w0:""")
    A("s_waitcnt vmcnt(0)\nL_pq_w1:\ns_mov_b64 exec, -1\n@pad\ns_nop 0\n@nopad")
    for rb in range(5):
        A(f"s_mov_b64 exec, s[{QM[rb]}:{QM[rb]+1}]")
        g.tagcheck(list(range(W + 4*rb, W + 4*rb + 4)), T0)
        A(f"s_mov_b64 s[{QM[rb]}:{QM[rb]+1}], vcc")
    A(f"""s_or_b64 s[50:51], s[{QM[0]}:{QM[0]+1}], s[{QM[1]}:{QM[1]+1}]
    s_or_b64 s[52:53], s[{QM[2]}:{QM[2]+1}], s[{QM[3]}:{QM[3]+1}]
    s_or_b64 s[50:51], s[50:51], s[{QM[4]}:{QM[4]+1}]
    s_or_b64 s[50:51], s[50:51], s[52:53]
    s_cbranch_scc0 L_gotQ""")
    if dual: g.pick()
    g.spin("L_pollQ", 0)
    A("L_gotQ:\ns_bfm_b64 exec, 48, 0\n@pad")
    g.stamp(5)
    A(f"v_lshlrev_b32 v{T0}, 3, v1")
    for rb in range(1, 5):
        for e in range(4):
            A(f"v_add_f32 v{W+e}, v{W+e}, v{W+4*rb+e}")
    A(f"""v_cvt_pk_bf16_f32 v{W}, v{W}, v{W+1}
    v_cvt_pk_bf16_f32 v{W+1}, v{W+2}, v{W+3}
    ds_write_b64 v{T0}, v[{W}:{W+1}] offset:{L_Q}
    s_mov_b64 exec, -1
    s_waitcnt lgkmcnt(0)
    s_barrier
    s_branch L_aux2
    @nopad""")

    Q = 8; ACC = 20; A0 = 32; A1 = 36
    SA, SB, T, MM, MC, LL, PA, PB = 40, 41, 42, 43, 44, 45, 46, 47
    KA, VA, KB, VB = 48, 72, 96, 120
    FL, OOB, ZERO = 144, 145, 146
    OA, OS, BP0, BP1, LA, LS, LY = 148, 149, 150, 151, 152, 153, 154
    CP = 156
    OFFS = [0, 128, 256, 3072, 3200, 3328]

    def group(j, K, V, sreg):
        base = (K if j < 2 else V) + 12 * (j & 1)
        srd = 28 if j < 2 else 32
        for t in range(3):
            A(f"buffer_load_dwordx4 v[{base+4*t}:{base+4*t+3}], v2, s[{srd}:{srd+3}], s{sreg} offen offset:{OFFS[3*(j&1)+t]}{P}")

    def uoff(dst, src):
        A(f"""s_add_u32 s48, s{src}, s94
        s_and_b32 s48, s48, 255
        s_mul_i32 s48, s48, 6144
        s_add_u32 s{dst}, s40, s48""")

    A(f"""L_stream:
    s_sub_u32 s3, s3, 1
    s_lshl_b32 s42, s49, 2
    s_add_u32 s42, s42, s3
    s_lshl_b32 s40, s67, 5
    s_add_u32 s40, s40, s66
    s_mul_i32 s94, s40, {ph}
    s_mul_i32 s40, s40, 1572864
    v_lshrrev_b32 v2, 3, v1
    v_mul_u32_u24 v2, 384, v2
    v_and_b32 v3, 7, v1
    v_lshl_add_u32 v2, v3, 4, v2""")
    uoff(44, 42)
    A("""s_add_u32 s47, s42, 4
    s_and_b32 s47, s47, 15
    s_add_u32 s47, s47, 16""")
    uoff(43, 47)
    if cpf:
        A(f"""s_getpc_b64 s[50:51]
        L_pc:
        s_lshl_b32 s47, s3, 12
        s_sub_u32 s47, s47, L_pc-{KN}
        s_ashr_i32 s48, s47, 31
        s_add_u32 s50, s50, s47
        s_addc_u32 s51, s51, s48
        v_lshlrev_b32 v{CP}, 4, v1
        v_mov_b32 v{CP+1}, 0
        v_lshl_add_u64 v[{CP}:{CP+1}], v[{CP}:{CP+1}], 0, s[50:51]""")
        for j in range(4):
            A(f"global_load_dwordx4 v[{CP+4}:{CP+7}], v[{CP}:{CP+1}], off offset:{j*1024}")
    A("""s_mov_b32 s30, 100663296
    s_mov_b32 s31, 0x20000
    s_mov_b32 s34, 100663296
    s_mov_b32 s35, 0x20000""")

    def hop4(name, ret):
        A(f"""@nopad
        s_mov_b64 exec, 0
        s_cmp_eq_u32 s3, 0
        s_cbranch_scc1 {name}_0
        s_cmp_eq_u32 s3, 1
        s_cbranch_scc1 {name}_1
        s_cmp_eq_u32 s3, 2
        s_cbranch_scc1 {name}_2
        s_branch {name}_3
        {ret}:
        s_mov_b64 exec, -1
        @pad""")
    if warm & 2: hop4("WQ", "L_wq_ret")
    A("s_waitcnt lgkmcnt(0)")
    if stamps:
        A("v_writelane_b32 v168, s60, 0")
    A("""s_mov_b32 s28, s6
    s_mov_b32 s29, s7
    s_mov_b32 s32, s8
    s_mov_b32 s33, s9""")
    seq = [(0, KB, VB, 44), (1, KB, VB, 44), (2, KB, VB, 44), (3, KB, VB, 44), (0, KA, VA, 43), (1, KA, VA, 43)]
    if fill4: seq += [(2, KA, VA, 43), (3, KA, VA, 43)]
    for n, (j, K, V, sr) in enumerate(seq):
        if n == pre:
            A("s_barrier")
        if n == 2:
            A(f"s_load_dword s80, s[26:27], {WS_E}")
            g.masks(M, T, PA)
            A(f"""s_add_u32 s98, s101, 17
            s_and_b32 s98, s98, 31
            s_cmp_ge_u32 s98, 30
            s_cselect_b32 s83, 1, 0
            s_add_u32 s98, s98, s96
            s_mul_i32 s69, s98, 205
            s_lshr_b32 s69, s69, 10
            s_mul_i32 s70, s69, 5
            s_sub_u32 s70, s98, s70
            s_mov_b32 s36, s12
            s_mov_b32 s37, s13
            s_mov_b32 s38, 7864320
            s_mov_b32 s39, 0x20000
            s_lshl_b32 s71, s69, 2
            s_add_u32 s71, s71, s3
            s_mul_i32 s72, s71, 40960
            s_lshl_b32 s47, s70, 8
            s_add_u32 s72, s72, s47
            s_add_u32 s73, s72, 5120
            v_lshrrev_b32 v3, 4, v1
            v_mul_u32_u24 v3, 10240, v3
            v_and_b32 v{T}, 15, v1
            v_lshl_add_u32 v3, v{T}, 4, v3
            s_lshl_b32 s47, s83, 30
            v_add_u32 v3, s47, v3
            s_mov_b32 s41, 1
            s_mov_b32 s46, {LOG2E}
            s_mov_b32 s58, 399999
            s_add_u32 s90, s26, {WS_B}
            s_addc_u32 s91, s27, 0
            s_mov_b64 s[92:93], s[26:27]""")
        if n == 3:
            for r in range(12):
                A(f"v_mov_b32 v{ACC+r}, 0")
            A(f"""v_mov_b32 v{MM}, 0xff800000
            v_mov_b32 v{MC}, 0xff800000
            v_mov_b32 v{LL}, 0
            v_mov_b32 v{OOB}, 0x7ff00000
            v_mov_b32 v{ZERO}, 0
            s_mul_i32 s47, s71, 171
            s_lshr_b32 s47, s47, 10
            s_mul_i32 s48, s47, 6
            s_sub_u32 s48, s71, s48
            s_lshl_b32 s47, s47, 13
            s_add_u32 s47, s47, {WS_O}
            v_and_b32 v{OS}, 7, v1
            v_lshl_add_u32 v{OS}, v{OS}, 10, s47
            v_lshrrev_b32 v{OA}, 3, v1
            s_lshl_b32 s48, s48, 7
            v_lshl_add_u32 v{OA}, v{OA}, 4, s48
            v_add_u32 v{OA}, v{OA}, v{OS}
            v_lshrrev_b32 v{BP0}, 4, v1
            v_lshlrev_b32 v{BP0}, 6, v{BP0}
            v_and_b32 v{BP1}, 8, v1
            v_lshl_add_u32 v{BP0}, v{BP1}, 1, v{BP0}
            v_add_u32 v{BP1}, 32, v{BP0}
            s_mul_i32 s47, s3, 3072
            v_lshl_add_u32 v{LA}, v1, 4, s47
            s_lshl_b32 s47, s3, 3
            v_mov_b32 v{LS}, s47
            s_lshl_b32 s47, s3, 10
            v_lshl_add_u32 v{LY}, v1, 4, s47""")
        if n == 4 and warm & 4: hop4("WS", "L_ws_ret")
        if n >= 2:
            A(f"s_waitcnt vmcnt({pace})")
        group(j, K, V, sr)
    g.stamp(1)
    A(f"""s_add_u32 s85, s42, 8
    s_and_b32 s85, s85, 15
    s_add_u32 s85, s85, 32
    s_add_u32 s47, s42, 12
    s_and_b32 s47, s47, 15
    s_add_u32 s47, s47, 240""")
    uoff(44, 47)
    A(f"""s_mov_b32 s45, 0
    s_mov_b32 s100, 1
    s_mov_b32 s84, 16
    v_and_b32 v{T}, 7, v1
    v_lshlrev_b32 v{T}, 4, v{T}
    s_waitcnt lgkmcnt(0)
    s_add_u32 s80, s80, 1
    s_and_b32 s80, s80, {TAGM}
    s_barrier
    ds_read_b128 v[{Q}:{Q+3}], v{T} offset:{L_Q}
    ds_read_b128 v[{Q+4}:{Q+7}], v{T} offset:{L_Q+128}
    ds_read_b128 v[{Q+8}:{Q+11}], v{T} offset:{L_Q+256}
    s_waitcnt lgkmcnt(0)""")
    g.stamp(2)

    def softmax_part():
        for ctl in ["quad_perm:[1,0,3,2]", "quad_perm:[2,3,0,1]", "row_half_mirror"]:
            g.dpp("v_add_f32", SA, SA, SA, ctl)
            g.dpp("v_add_f32", SB, SB, SB, ctl)
            A("s_nop 0")
        skip = g.lab("L_skip")
        A(f"""v_cvt_pk_bf16_f32 v{T}, v{SA}, v{SB}
        v_lshlrev_b32 v{SA}, 16, v{T}
        v_and_b32 v{SB}, 0xffff0000, v{T}
        v_mul_f32 v{SA}, {SCALE}, v{SA}
        v_mul_f32 v{SB}, {SCALE}, v{SB}
        v_cvt_pk_bf16_f32 v{T}, v{SA}, v{SB}
        v_lshlrev_b32 v{SA}, 16, v{T}
        v_and_b32 v{SB}, 0xffff0000, v{T}
        v_max_f32 v{T}, v{SA}, v{SB}
        v_cmp_gt_f32 vcc, v{T}, v{MM}
        s_cbranch_vccz {skip}""")
        g.dpp("v_max_f32", T, T, T, "row_ror:8")
        g.allred_16_32("v_max_f32", T, PA)
        A(f"""v_max_f32 v{MM}, v{MM}, v{T}
        v_mul_f32 v{PA}, s46, v{MM}
        v_sub_f32 v{PB}, v{MC}, v{PA}
        v_exp_f32 v{PB}, v{PB}
        v_mov_b32 v{MC}, v{PA}
        v_mul_f32 v{LL}, v{LL}, v{PB}""")
        for r in range(12):
            A(f"v_mul_f32 v{ACC+r}, v{ACC+r}, v{PB}")
        A(f"""{skip}:
        v_fma_f32 v{PA}, v{SA}, s46, -v{MC}
        v_fma_f32 v{PB}, v{SB}, s46, -v{MC}
        v_exp_f32 v{PA}, v{PA}
        v_exp_f32 v{PB}, v{PB}
        s_nop 0
        v_add_f32 v{LL}, v{LL}, v{PA}
        v_cvt_pk_bf16_f32 v{PA}, v{PA}, v{PA}
        v_add_f32 v{LL}, v{LL}, v{PB}
        v_cvt_pk_bf16_f32 v{PB}, v{PB}, v{PB}""")
        for r in range(4):
            A(f"v_and_b32 v{A0+r}, v{PA}, v{M+r}")
        for r in range(4):
            A(f"v_and_b32 v{A1+r}, v{PB}, v{M+r}")

    def consume(j, K, V):
        if j < 2:
            for r in range(12):
                A(f"v_dot2c_f32_bf16 v{SA+j}, v{K+12*j+r}, v{Q+r}")
        else:
            Ar = A0 if j == 2 else A1
            for t in range(3):
                b = V + 12 * (j - 2) + 4 * t
                A(f"v_mfma_f32_16x16x32_bf16 v[{ACC+4*t}:{ACC+4*t+3}], v[{Ar}:{Ar+3}], v[{b}:{b+3}], v[{ACC+4*t}:{ACC+4*t+3}]")

    def dummies(n):
        for j in range(n):
            A(f"buffer_load_dword v{FL}, v{OOB}, s[36:39], 0 offen")

    def advance():
        A("""s_add_u32 s48, s85, 4
        s_and_b32 s48, s48, 15
        s_andn2_b32 s85, s85, 15
        s_add_u32 s85, s85, s48
        s_add_u32 s85, s85, 16""")

    def prog():
        if stamps:
            A("""s_waitcnt lgkmcnt(0)
            s_mov_b32 m0, s84
            s_add_u32 s84, s84, 1
            s_min_u32 s84, s84, 63
            v_writelane_b32 v168, s60, m0""")

    if warm & 2: A("@end")
    if warm & 4: A("@chain WS 4 L_ws_ret")
    A(f"L_F:\nv_mov_b32 v{SA}, 0\nv_mov_b32 v{SB}, 0")
    for j in range(4):
        if j == 2:
            A("s_nop 2"); softmax_part()
        A(f"s_waitcnt vmcnt({15 - 3*j})")
        consume(j, KB, VB)
    A("s_cmp_lg_u32 s45, 0\ns_cbranch_scc1 L_exit")
    A("L_loop:")
    if stamps: A("s_memrealtime s[60:61]")
    if deep: A(f"ds_read_b32 v{FL}, v{ZERO} offset:{L_FLAG}")
    A(f"v_mov_b32 v{SA}, 0\nv_mov_b32 v{SB}, 0\ns_waitcnt vmcnt(3)")
    consume(0, KA, VA)
    if fill4: A("s_cmp_lg_u32 s41, 0\ns_cbranch_scc1 L_sk0")
    group(2, KA, VA, 43)
    A("L_sk0:\ns_waitcnt vmcnt(3)")
    consume(1, KA, VA)
    if fill4: A("s_cmp_lg_u32 s41, 0\ns_mov_b32 s41, 0\ns_cbranch_scc1 L_sk1")
    group(3, KA, VA, 43)
    A("L_sk1:")
    if th < 999:
        A(f"s_cmp_ge_u32 s85, {th + 16}\ns_cbranch_scc1 L_early\nL_early_ret:")
    softmax_part()
    A("s_waitcnt vmcnt(3)")
    consume(2, KA, VA)
    prog()
    A("s_cmp_ge_u32 s85, 240\ns_cbranch_scc1 L_last")
    uoff(43, 85)
    group(0, KA, VA, 43)
    advance()
    if deep: A(f"s_waitcnt lgkmcnt(0)\nv_readfirstlane_b32 s47, v{FL}")
    A("s_waitcnt vmcnt(3)")
    consume(3, KA, VA)
    group(1, KA, VA, 43)
    if deep:
        A("s_cmp_eq_u32 s47, 0\ns_cbranch_scc1 L_loop")
        group(2, KA, VA, 43); group(3, KA, VA, 43)
        for j in range(4): group(j, KB, VB, 44)
        A("s_mov_b32 s100, 0\nL_deep:")
        if stamps: A("s_memrealtime s[60:61]")
        A(f"v_mov_b32 v{SA}, 0\nv_mov_b32 v{SB}, 0")
        for j in range(4):
            if j == 2: softmax_part()
            A("s_waitcnt vmcnt(9)")
            consume(j, KA, VA)
            if j == 0:
                prog()
                A("s_cmp_ge_u32 s85, 240\ns_cselect_b32 s45, 1, 0\ns_cbranch_scc1 L_dsub0")
                uoff(43, 85)
                group(0, KA, VA, 43)
                advance()
                A("L_dret0:")
            elif j < 3:
                A(f"s_cmp_lg_u32 s45, 0\ns_cbranch_scc1 L_dsub{j}")
                group(j, KA, VA, 43)
                A(f"L_dret{j}:")
            else:
                A("s_cmp_lg_u32 s45, 0\ns_cbranch_scc1 L_F")
                group(3, KA, VA, 43)
                A("s_branch L_deep")
        for j in range(3):
            A(f"L_dsub{j}:")
            dummies(3)
            A(f"s_branch L_dret{j}")
    else:
        A("s_branch L_loop")
    if th < 999:
        A("L_early:\ns_mov_b32 s100, 0")
        for j in range(4): group(j, KB, VB, 44)
        A("s_branch L_early_ret")
    A("L_last:")
    g.stamp(3)
    A("s_mov_b32 s45, 1")
    if th < 999:
        A("s_cmp_eq_u32 s100, 0\ns_cbranch_scc1 L_last3")
    for j in range(4): group(j, KB, VB, 44)
    WO = KA

    def wo_loads():
        for j in range(8):
            o = j * 1280
            A(f"buffer_load_dwordx4 v[{WO+4*j}:{WO+4*j+3}], v3, s[36:39], s{72 if o < 4096 else 73} offen offset:{o if o < 4096 else o-5120}{P}")
    if wolate:
        dummies(6)
        A("s_waitcnt vmcnt(18)")
    else:
        assert th == 999 and not deep
        wo_loads()
        A("s_waitcnt vmcnt(20)")
    if th < 999:
        A("s_branch L_last4\nL_last3:\ns_waitcnt vmcnt(0)\nL_last4:")
    consume(3, KA, VA)
    A("s_branch L_F")
    A("L_exit:")
    if wolate: wo_loads()
    g.stamp(4)
    g.dpp("v_add_f32", LL, LL, LL, "row_ror:8")
    g.allred_16_32("v_add_f32", LL, T)
    O0, S0, XR = 108, 112, 96
    A(f"""v_mov_b32 v{T}, 1
    ds_write_b128 v{LA}, v[{ACC}:{ACC+3}] offset:{L_ACC}
    ds_write_b128 v{LA}, v[{ACC+4}:{ACC+7}] offset:{L_ACC+1024}
    ds_write_b128 v{LA}, v[{ACC+8}:{ACC+11}] offset:{L_ACC+2048}
    ds_write_b64 v{LS}, v[{MC}:{LL}] offset:{L_ST}""")
    if deep: A(f"ds_write_b32 v{ZERO}, v{T} offset:{L_DONE}")
    A(f"""s_waitcnt lgkmcnt(0)
    s_barrier
    s_cmp_lg_u32 s83, 0
    s_cbranch_scc1 L_sdone
    L_pollO:
    global_load_dwordx4 v[{O0}:{O0+3}], v{OA}, s[92:93] sc1
    global_load_dwordx4 v[{S0}:{S0+3}], v{OS}, s[92:93] offset:768 sc1
    s_waitcnt vmcnt(0)""")
    g.tagcheck(list(range(O0, O0 + 8)), T)
    A("s_cbranch_vccz L_gotO")
    if dual: g.pick()
    g.spin("L_pollO", sleep)
    A("L_gotO:")
    g.stamp(5)
    g.dpp("v_max_f32", T, S0, S0, "quad_perm:[1,0,3,2]")
    A("s_nop 1")
    g.dpp("v_max_f32", T, T, T, "quad_perm:[2,3,0,1]")
    A(f"""v_sub_f32 v{T}, v{S0}, v{T}
    v_exp_f32 v{T}, v{T}
    s_nop 0
    v_mul_f32 v{S0+1}, v{S0+1}, v{T}""")
    for e in range(4):
        A(f"v_mul_f32 v{O0+e}, v{O0+e}, v{T}")
    for ctl in ["quad_perm:[1,0,3,2]", "quad_perm:[2,3,0,1]"]:
        g.dpp("v_add_f32", S0 + 1, S0 + 1, S0 + 1, ctl)
        for e in range(4):
            g.dpp("v_add_f32", O0 + e, O0 + e, O0 + e, ctl)
    A(f"""v_rcp_f32 v{T}, v{S0+1}
    s_nop 0""")
    for e in range(4):
        A(f"v_mul_f32 v{O0+e}, v{O0+e}, v{T}")
    for e in range(4):
        A(f"v_cvt_pk_bf16_f32 v{O0+e}, v{O0+e}, v{O0+e}")
    for rq in range(8):
        A(f"ds_bpermute_b32 v{XR+rq}, v{BP0 if rq < 4 else BP1}, v{O0+(rq&3)}")
    D = ACC
    AR = [A0, A1, 116, 120]
    for rq in range(8):
        A(f"s_waitcnt lgkmcnt({7-rq})")
        Ar = AR[rq % 4]
        for r in range(4):
            A(f"v_and_b32 v{Ar+r}, v{XR+rq}, v{M+r}")
        if rq >= 1:
            p = rq - 1
            c = "0" if p == 0 else f"v[{D}:{D+3}]"
            A(f"v_mfma_f32_16x16x32_bf16 v[{D}:{D+3}], v[{AR[p%4]}:{AR[p%4]+3}], v[{WO+4*p}:{WO+4*p+3}], {c}")
    A(f"""s_nop 0
    v_mfma_f32_16x16x32_bf16 v[{D}:{D+3}], v[{AR[3]}:{AR[3]+3}], v[{WO+28}:{WO+31}], v[{D}:{D+3}]
    s_nop 7
    ds_write_b128 v{LY}, v[{D}:{D+3}] offset:{L_YP}
    s_waitcnt lgkmcnt(0)
    s_barrier""")
    if warm & 4: A("@end")
    A("L_sdone:")
    g.stamp(6)
    g.stamp_flush()
    A("s_endpgm")

    A("L_aux2:")
    g.stamp(6)
    A(f"""s_mul_i32 s96, s95, 15
    s_add_u32 s96, s96, s101
    s_sub_u32 s69, s101, 15
    s_sub_u32 s70, s101, 24
    s_cmp_ge_u32 s101, 30
    s_cselect_b32 s69, s70, s69
    s_cselect_b32 s48, 0, s69
    s_lshl_b32 s70, s95, 3
    s_add_u32 s70, s70, s69
    s_add_u32 s70, s70, 120
    s_cmp_lt_u32 s48, 6
    s_cselect_b32 s70, s70, 255
    s_cmp_lt_u32 s101, 15
    s_cselect_b32 s96, s96, s70
    s_mul_i32 s59, s95, 10
    s_sub_u32 s69, s101, 21
    s_add_u32 s59, s59, s69
    s_cmp_lt_u32 s69, 10
    s_cselect_b32 s59, s59, 255
    s_lshl_b32 s68, s66, 3
    s_lshl_b32 s47, s67, 2
    s_add_u32 s68, s68, s47
    s_add_u32 s68, s68, s49
    s_lshl_b32 s68, s68, 10
    s_add_u32 s68, s68, {WS_O}
    s_add_u32 s98, s101, 17
    s_and_b32 s98, s98, 31
    s_cmp_ge_u32 s98, 30
    s_cselect_b32 s83, 1, 0
    s_mul_i32 s74, s95, 30
    s_add_u32 s74, s74, s98
    s_lshl_b32 s74, s74, 10
    s_add_u32 s74, s74, {WS_Y}
    s_lshl_b32 s47, s96, 10
    s_add_u32 s75, s47, {WS_G}
    s_add_u32 s48, s47, {WS_Y + 120*1024}
    s_cmp_lt_u32 s96, 120
    s_cselect_b32 s75, s75, s48
    s_mul_i32 s69, s96, 205
    s_lshr_b32 s69, s69, 10
    s_mul_i32 s70, s69, 5
    s_sub_u32 s70, s96, s70
    s_mov_b32 s63, 0
    s_cmp_lt_u32 s96, 120
    s_cbranch_scc1 L_gtask
    s_cmp_lt_u32 s96, 180
    s_cbranch_scc0 L_ffn_done""")
    A(f"""s_sub_u32 s76, s69, 24
    s_mul_i32 s47, s76, 10240
    s_add_u32 s47, s47, {WS_G + 4096}
    v_lshl_add_u32 v{T0}, v1, 4, s47
    v_add_u32 v{T1}, 5120, v{T0}
    L_pollG:
    s_sleep {lsleep}""")
    for j in range(5):
        A(f"global_load_dwordx4 v[{W+4*j}:{W+4*j+3}], v{T0}, s[26:27] offset:{j*1024-4096} sc1")
    for j in range(5):
        A(f"global_load_dwordx4 v[{W+20+4*j}:{W+20+4*j+3}], v{T1}, s[26:27] offset:{j*1024-4096} sc1")
    A("s_waitcnt vmcnt(0)")
    g.tagcheck(list(range(W, W + 40)), T2)
    A("s_cbranch_vccz L_gotG")
    g.spin("L_pollG", lsleep)
    A("L_gotG:")
    for f in range(2):
        for j in range(1, 5):
            for e in range(4):
                A(f"v_add_f32 v{W+20*f+e}, v{W+20*f+e}, v{W+20*f+4*j+e}")
    S0_, S1_ = W, W + 20
    GG, UU = W + 4, W + 8
    for e in range(4):
        A(f"v_mov_b32 v{GG+e}, v{S0_+e}\nv_mov_b32 v{UU+e}, v{S1_+e}")
    A("s_nop 1")
    for e in range(4):
        A(f"v_mov_b32_dpp v{GG+e}, v{S1_+e} row_ror:8 row_mask:0xf bank_mask:0xc")
        A(f"v_mov_b32_dpp v{UU+e}, v{S0_+e} row_ror:8 row_mask:0xf bank_mask:0x3")
    for e in range(4):
        gg, uu = GG + e, UU + e
        g.rbf(gg); g.rbf(uu)
        A(f"""v_mul_f32 v{T2}, v{gg}, v{gg}
        v_mul_f32 v{T2}, v{T2}, v{gg}
        v_mov_b32 v{T3}, v{gg}
        v_fmac_f32 v{T3}, 0x3d372713, v{T2}
        v_mul_f32 v{T3}, 0xc0135761, v{T3}
        v_exp_f32 v{T3}, v{T3}
        s_nop 0
        v_add_f32 v{T3}, 1.0, v{T3}
        v_rcp_f32 v{T3}, v{T3}
        s_nop 0
        v_mul_f32 v{gg}, v{gg}, v{T3}""")
        g.rbf(gg)
        A(f"v_mul_f32 v{gg}, v{gg}, v{uu}")
    A(f"""v_cvt_pk_bf16_f32 v{GG}, v{GG}, v{GG+1}
    v_cvt_pk_bf16_f32 v{GG+1}, v{GG+2}, v{GG+3}""")

    def wr_h():
        A(f"""v_and_b32 v{T1}, 15, v1
        v_lshlrev_b32 v{T1}, 4, v{T1}
        v_and_b32 v{T2}, 32, v1
        v_lshl_add_u32 v{T1}, v{T2}, 3, v{T1}
        v_bfe_u32 v{T2}, v1, 4, 1
        v_lshl_add_u32 v{T1}, v{T2}, 3, v{T1}
        ds_write_b64 v{T1}, v[{GG}:{GG+1}] offset:{L_X}""")

    xbuf_roundtrip(wr_h)
    A(f"""v_lshrrev_b32 v{T0}, 4, v1
    v_mul_u32_u24 v2, 40960, v{T0}
    v_and_b32 v{T1}, 15, v1
    v_lshl_add_u32 v2, v{T1}, 4, v2
    s_mul_i32 s47, s76, 163840
    s_lshl_b32 s48, s70, 8
    s_add_u32 s47, s47, s48
    v_add_u32 v2, s47, v2
    v_mov_b32 v3, 0
    s_mov_b32 s62, 1280
    v_lshl_add_u64 v[2:3], v[2:3], 0, s[20:21]""")
    nat_off(T2, T1)
    A(f"""v_add_u32 v{T2}, s75, v{T2}
    s_waitcnt lgkmcnt(0)
    s_branch L_tile2
    L_gtask:
    v_lshrrev_b32 v{T0}, 4, v1
    v_mul_u32_u24 v2, 98304, v{T0}
    v_and_b32 v{T1}, 7, v1
    v_lshl_add_u32 v2, v{T1}, 4, v2
    s_mul_i32 s47, s70, 393216
    s_lshl_b32 s48, s69, 7
    s_add_u32 s47, s47, s48
    v_add_u32 v2, s47, v2
    v_mov_b32 v3, 0
    s_mov_b32 s62, 3072
    v_and_b32 v{T1}, 8, v1
    v_cmp_eq_u32 vcc, 0, v{T1}
    v_mov_b32 v{T0}, s18
    v_mov_b32 v{T1}, s19
    v_mov_b32 v{T2}, s16
    v_mov_b32 v{T3}, s17
    v_cndmask_b32 v{T0}, v{T0}, v{T2}, vcc
    v_cndmask_b32 v{T1}, v{T1}, v{T3}, vcc
    v_lshl_add_u64 v[2:3], v[2:3], 0, v[{T0}:{T1}]
    v_lshl_add_u32 v{T2}, v1, 4, s75
    L_tile2:""")
    for i in range(32):
        A(f"global_load_dwordx4 v[{W+4*i}:{W+4*i+3}], v[2:3], off{P}")
        if i < 31:
            A("v_lshl_add_u64 v[2:3], v[2:3], 0, s[62:63]")
    tile_compute()
    A(f"v_mov_b32 v{T1}, s80\ns_nop 7")
    g.tagput(range(DD, DD + 4), T1)
    A(f"""global_store_dwordx4 v{T2}, v[{DD}:{DD+3}], s[26:27] sc1
    L_ffn_done:""")
    g.stamp(7)
    GV, XO, YA = 8, 12, 16
    A(f"""s_cmp_ge_u32 s59, 80
    s_cbranch_scc1 L_c_done
    s_cmp_ge_u32 s59, 40
    s_cselect_b32 s78, 1, 0
    s_mul_i32 s47, s78, 40
    s_sub_u32 s77, s59, s47
    s_lshr_b32 s47, s77, 3
    s_lshl_b32 s47, s47, 10
    s_and_b32 s48, s77, 7
    s_lshl_b32 s48, s48, 6
    s_add_u32 s47, s47, s48
    s_lshl_b32 s48, s78, 9
    s_add_u32 s47, s47, s48
    s_add_u32 s47, s47, {WS_Y}
    v_lshrrev_b32 v{T0}, 2, v1
    v_mul_u32_u24 v{T0}, 5120, v{T0}
    v_and_b32 v{T1}, 3, v1
    v_lshl_add_u32 v{T0}, v{T1}, 4, v{T0}
    v_add_u32 v{YA}, s47, v{T0}
    v_add_u32 v{YA+1}, 81920, v{YA}
    v_add_u32 v{YA+2}, 81920, v{YA+1}
    v_add_u32 v{T0}, 81920, v{YA+2}
    s_mul_i32 s47, s78, 1280
    s_lshl_b32 s48, s77, 5
    s_add_u32 s47, s47, s48
    v_lshl_add_u32 v{YA+3}, v{T1}, 3, s47
    global_load_dwordx2 v[{XO}:{XO+1}], v{YA+3}, s[4:5]
    v_mov_b32 v{GV}, 0
    v_mov_b32 v{GV+1}, 0
    v_mov_b32 v{GV+2}, 0
    v_mov_b32 v{GV+3}, 0
    s_bfm_b64 exec, 48, 0
    L_pollF:
    s_sleep {2*lsleep}
    global_load_dwordx4 v[{GV}:{GV+3}], v{T0}, s[26:27] sc1
    s_waitcnt vmcnt(0)""")
    g.tagcheck(list(range(GV, GV + 4)), T2)
    A("s_cbranch_vccz L_gotF")
    g.spin("L_pollF", lsleep)
    A("L_gotF:\ns_mov_b64 exec, -1\ns_nop 1")

    def red16(base):
        for ctl in ["row_ror:4", "row_ror:8"]:
            for e in range(4):
                g.dpp("v_add_f32", base + e, base + e, base + e, ctl)
        for sw in ["v_permlane16_swap_b32", "v_permlane32_swap_b32"]:
            for e in range(4):
                A(f"v_mov_b32 v{T0+e}, v{base+e}")
            for e in range(4):
                A(f"{sw} v{base+e}, v{T0+e}")
            for e in range(4):
                A(f"v_add_f32 v{base+e}, v{base+e}, v{T0+e}")

    red16(GV)
    A(f"""v_and_b32 v{XO+3}, 0xffff0000, v{XO+1}
    v_lshlrev_b32 v{XO+2}, 16, v{XO+1}
    v_and_b32 v{XO+1}, 0xffff0000, v{XO}
    v_lshlrev_b32 v{XO}, 16, v{XO}""")
    for e in range(4):
        g.rbf(GV + e)
        A(f"""v_mul_f32 v{T3}, 0xbfb8aa3b, v{GV+e}
        v_exp_f32 v{T3}, v{T3}
        s_nop 0
        v_add_f32 v{T3}, 1.0, v{T3}
        v_rcp_f32 v{T3}, v{T3}
        s_nop 0
        v_mul_f32 v{GV+e}, v{GV+e}, v{T3}""")
        g.rbf(GV + e)
    A("L_c_done:")
    g.stamp(8)
    MA = 20
    A(f"""v_lshrrev_b32 v{MA}, 4, v1
    v_lshlrev_b32 v{MA}, 10, v{MA}
    v_bfe_u32 v{T0}, v1, 1, 3
    v_lshl_add_u32 v{MA}, v{T0}, 4, v{MA}
    v_and_b32 v{T0}, 1, v1
    v_lshl_add_u32 v{MA}, v{T0}, 8, v{MA}
    v_mov_b32 v{MA+1}, 0
    v_lshl_add_u32 v{MA+2}, v1, 4, s68
    v_mov_b32 v{MA+3}, s80
    v_cmp_eq_u32 s[50:51], 48, v1""")
    nat_off(2, T1)
    A(f"""v_add_u32 v2, s74, v2
    v_lshlrev_b32 v{DD}, 4, v1""")
    if deep:
        A(f"""s_lshl_b32 s47, s95, 7
        s_add_u32 s47, s47, {WS_D}
        v_lshl_add_u32 v{T0}, v1, 2, s47
        s_lshl_b32 s48, s101, 2
        s_add_u32 s47, s47, s48
        v_mov_b32 v3, s47
        s_bfm_b64 exec, 32, 0
        L_pollD:
        s_sleep {dsleep}
        global_load_dword v{T1}, v{T0}, s[26:27] sc1
        ds_read_b32 v{T2}, v{MA+1} offset:{L_DONE}
        s_waitcnt vmcnt(0) lgkmcnt(0)
        v_cmp_ne_u32 vcc, 0, v{T2}
        s_cbranch_vccnz L_gotD
        v_cmp_eq_u32 vcc, s82, v{T1}
        s_bcnt1_i32_b64 s47, vcc
        s_cmp_ge_u32 s47, {ndone}
        s_cbranch_scc1 L_setD""")
        g.spin("L_pollD", 0)
        A(f"""L_setD:
        v_mov_b32 v{T1}, 1
        ds_write_b32 v{MA+1}, v{T1} offset:{L_FLAG}
        L_gotD:
        s_mov_b64 exec, -1
        v_mov_b32 v{T3}, s82""")
    if warm & 8: A("s_mov_b64 exec, 0\ns_branch WT_0\nL_wt_ret:\ns_mov_b64 exec, -1\ns_branch L_wt_go\n@chain WT 1 L_wt_ret\nL_wt_go:")
    A(f"""s_barrier
    ds_read_b128 v[{AX0}:{AX0+3}], v{MA+1} offset:{L_ST}
    ds_read_b128 v[{AX1}:{AX1+3}], v{MA+1} offset:{L_ST+16}""")
    g.stamp(9)
    for w in range(4):
        A(f"ds_read_b128 v[{W+8*w}:{W+8*w+3}], v{MA} offset:{L_ACC+3072*w}")
        A(f"ds_read_b128 v[{W+8*w+4}:{W+8*w+7}], v{MA} offset:{L_ACC+3072*w+640}")
    ms = [AX0, AX0 + 2, AX1, AX1 + 2]
    OD = W + 32
    A(f"""s_waitcnt lgkmcnt(8)
    v_max_f32 v{T0}, v{ms[0]}, v{ms[1]}
    v_max3_f32 v{T0}, v{T0}, v{ms[2]}, v{ms[3]}
    v_and_b32 v{T0}, s81, v{T0}""")
    for w in range(4):
        A(f"v_sub_f32 v{ms[w]}, v{ms[w]}, v{T0}")
    for w in range(4):
        A(f"v_exp_f32 v{ms[w]}, v{ms[w]}")
    A(f"s_nop 0\nv_mul_f32 v{T1}, v{ms[0]}, v{ms[0]+1}")
    for w in range(1, 4):
        A(f"v_fmac_f32 v{T1}, v{ms[w]}, v{ms[w]+1}")
    for w in range(4):
        A(f"s_waitcnt lgkmcnt({6-2*w})")
        for e in range(4):
            A(f"v_add_f32 v{W+8*w+e}, v{W+8*w+e}, v{W+8*w+4+e}")
        for e in range(4):
            if w == 0:
                A(f"v_mul_f32 v{OD+e}, v{ms[0]}, v{W+e}")
            else:
                A(f"v_fmac_f32 v{OD+e}, v{ms[w]}, v{W+8*w+e}")
    A(f"""v_cndmask_b32 v{OD}, v{OD}, v{T0}, s[50:51]
    v_cndmask_b32 v{OD+1}, v{OD+1}, v{T1}, s[50:51]""")
    g.tagput(range(OD, OD + 4), MA + 3)
    A(f"""s_bfm_b64 exec, 49, 0
    global_store_dwordx4 v{MA+2}, v[{OD}:{OD+3}], s[26:27]{'' if dual else ' sc1'}""")
    if dual: A(f"global_store_dwordx4 v{MA+2}, v[{OD}:{OD+3}], s[90:91] sc1")
    if deep: A(f"s_mov_b64 exec, 1\nglobal_store_dword v3, v{T3}, s[26:27]")
    A("s_mov_b64 exec, -1")
    g.stamp(10)
    A(f"""s_cmp_lg_u32 s83, 0
    s_cbranch_scc1 L_noy
    s_barrier""")
    for w in range(4):
        A(f"ds_read_b128 v[{W+4*w}:{W+4*w+3}], v{DD} offset:{L_YP+1024*w}")
    for w in range(1, 4):
        A(f"s_waitcnt lgkmcnt({3-w})")
        for e in range(4):
            A(f"v_add_f32 v{W+e}, v{W+e}, v{W+4*w+e}")
    g.tagput(range(W, W + 4), MA + 3)
    A(f"""global_store_dwordx4 v2, v[{W}:{W+3}], s[26:27] sc1
    L_noy:""")
    g.stamp(11)
    A(f"""s_cmp_ge_u32 s59, 80
    s_cbranch_scc1 L_adone
    L_pollY:""")
    Y0 = W + 16
    for k in range(3):
        A(f"global_load_dwordx4 v[{Y0+4*k}:{Y0+4*k+3}], v{YA+k}, s[26:27] sc1")
    A("s_waitcnt vmcnt(0)")
    g.tagcheck(list(range(Y0, Y0 + 12)), T2)
    A("s_cbranch_vccz L_gotY")
    g.spin("L_pollY", sleep)
    A("L_gotY:")
    g.stamp(12)
    for k in range(1, 3):
        for e in range(4):
            A(f"v_add_f32 v{Y0+e}, v{Y0+e}, v{Y0+4*k+e}")
    A("s_nop 0")
    red16(Y0)
    for e in range(4):
        g.rbf(Y0 + e)
    for e in range(4):
        A(f"v_mul_f32 v{Y0+e}, v{Y0+e}, v{GV+e}")
    for e in range(4):
        g.rbf(Y0 + e)
    for e in range(4):
        A(f"v_add_f32 v{Y0+e}, v{Y0+e}, v{XO+e}")
    A(f"""v_cvt_pk_bf16_f32 v{Y0}, v{Y0}, v{Y0+1}
    v_cvt_pk_bf16_f32 v{Y0+1}, v{Y0+2}, v{Y0+3}
    s_mov_b64 exec, 15
    global_store_dwordx2 v{YA+3}, v[{Y0}:{Y0+1}], s[22:23]
    s_cmp_lg_u32 s59, 79
    s_cbranch_scc1 L_adone
    s_mov_b64 exec, 1
    v_mov_b32 v{T0}, {WS_E}
    v_mov_b32 v{T1}, s82
    global_store_dword v{T0}, v{T1}, s[26:27]{' sc1' if dbg else ''}
    L_adone:
    s_mov_b64 exec, -1""")
    if warm & 8: A("@end")
    g.stamp(13)
    g.stamp_flush(True)
    A("L_end:\ns_endpgm")
    if cpf:
        A(f".fill (16384 - (. - {KN}))/4, 4, 0xbf810000")

    g.L = [x for x in insert_pads(g.L, space) if x.strip() not in ("@nopad", "@pad")]
    nv = 176 if stamps else 168
    out = [HDR + f"; @launch grid=(256,1,1) block=(320,1,1) lds={LDS_BYTES}",
           '.amdgcn_target "amdgcn-amd-amdhsa--gfx950"', ".text", f".globl {KN}", ".p2align 8",
           f".type {KN},@function", f"{KN}:"] + g.L + [
        '.section .rodata,"a"', ".p2align 6", f".amdhsa_kernel {KN}",
        f"  .amdhsa_next_free_vgpr {nv}", "  .amdhsa_next_free_sgpr 102", f"  .amdhsa_accum_offset {nv}",
        "  .amdhsa_group_segment_fixed_size 0", "  .amdhsa_kernarg_size 96", "  .amdhsa_user_sgpr_count 2",
        "  .amdhsa_user_sgpr_kernarg_segment_ptr 1", "  .amdhsa_system_sgpr_workgroup_id_x 1",
        "  .amdhsa_float_denorm_mode_32 3", ".end_amdhsa_kernel"]
    return "\n".join(out) + "\n"


if __name__ == "__main__":
    kw = {}
    for kv in sys.argv[2:]:
        k, v = kv.split("=")
        kw[k] = int(v) if v.lstrip("-").isdigit() else v.replace("+", " ")
    open(sys.argv[1], "w").write(gen(**kw))
```

```python
import sys
KN = "recurrent_scan__gqa_block_cached__geglu_ffn__decode_kernel"

HDR = """; Kernarg layout for this problem (96 bytes, ptrs only, base s[0:1]):
;
"""

WS_Q = 0x00000
WS_E = 0x3F000
WS_O = 0x40000
WS_Y = 0x80000
WS_G = 0x100000
WS_D = 0x140000
WS_R = 0x141000
WS_B = 0x180000
WS_STAMP = 0x200000
TAGM = 0x1ff
TAGS = [80, 0, 1, 14]
L_X = 0
L_Q = 512
L_FLAG = 896
L_DONE = 900
L_ST = 960
L_YP = 1024
L_ACC = 5120
LDS_BYTES = 5120 + 12288 + 2048

LOG2E = 0x3FB8AA3B
SCALE = 0x3D93CD3A


class G:
    def __init__(self, stamps, dbg):
        self.L = []
        self.stamps = stamps
        self.dbg = dbg
        self.nlab = 0

    def A(self, s):
        for x in s.split("\n"):
            x = x.strip()
            if x:
                self.L.append("    " + x if not x.endswith(":") else x)

    def lab(self, p="L"):
        self.nlab += 1
        return f"{p}_{self.nlab}"

    def stamp(self, idx):
        if not self.stamps:
            return
        self.A(f"""s_memrealtime s[60:61]
        s_waitcnt lgkmcnt(0)
        v_writelane_b32 v168, s60, {idx}""")

    def stamp_flush(self, aux=False):
        if not self.stamps:
            return
        if self.dbg:
            sel = ([(2, 1, 0), (3, 3, 0), (6, 8, 0), (7, 9, 0), (8, 9, 1), (9, 10, 0), (11, 11, 0), (12, 12, 0), (13, 13, 0), (14, 2, 0)] if aux
                   else [(0, 0, 1), (1, 0, 0), (4, 2, 0), (5, 2, 1), (10, 5, 0), (15, 1, 0)])
            self.A("s_mov_b64 exec, 1")
            lw = self.lab("L_dw"); lo = self.lab("L_dwo")
            self.A(f"""v_mov_b32 v170, {WS_E}
            s_mov_b32 s58, 20000
            {lw}:
            s_sleep 64
            global_load_dword v169, v170, s[26:27] sc1
            s_waitcnt vmcnt(0)
            v_and_b32 v169, {TAGM}, v169
            v_cmp_eq_u32 vcc, s80, v169
            s_cbranch_vccnz {lo}
            s_sub_u32 s58, s58, 1
            s_cmp_gt_i32 s58, 0
            s_cbranch_scc1 {lw}
            {lo}:
            s_sleep 64""")
            for slot, idx, inv in sel:
                l = self.lab("L_dbg")
                self.A(f"v_readlane_b32 s47, v168, {idx}\ns_nop 3\ns_cmp_eq_u32 s47, 0\ns_cbranch_scc1 {l}")
                if inv: self.A("s_not_b32 s47, s47")
                self.A(f"v_mov_b32 v169, s47\nv_mov_b32 v170, {slot*4}\nglobal_atomic_umax v170, v169, s[24:25]\n{l}:")
            self.A("s_mov_b64 exec, -1")
            return
        self.A(f"""s_getreg_b32 s47, hwreg(HW_REG_HW_ID)
        s_getreg_b32 s48, hwreg(HW_REG_XCC_ID)
        s_lshl_b32 s48, s48, 24
        s_and_b32 s47, s47, 0xffffff
        s_or_b32 s47, s47, s48
        s_or_b32 s47, s47, 0x80000000
        v_writelane_b32 v168, s47, 15
        s_mul_i32 s47, s2, 5
        s_add_u32 s47, s47, s79
        s_lshl_b32 s47, s47, 8
        s_add_u32 s47, s47, {WS_STAMP}
        v_lshl_add_u32 v169, v1, 2, s47
        global_store_dword v169, v168, s[26:27]""")

    def spin(self, back, sleep):
        if sleep: self.A(f"s_sleep {sleep}")
        self.A(f"""s_sub_u32 s58, s58, 1
        s_cmp_gt_i32 s58, 0
        s_cbranch_scc1 {back}""")

    def pick(self, mask):
        self.A(f"""s_and_b32 s47, s58, {mask}
        s_cmp_eq_u32 s47, 0
        s_cselect_b64 s[92:93], s[90:91], s[26:27]""")

    def allred_16_32(self, op, v, t):
        self.A(f"""v_mov_b32 v{t}, v{v}
        s_nop 1
        v_permlane16_swap_b32 v{v}, v{t}
        s_nop 0
        {op} v{v}, v{v}, v{t}
        v_mov_b32 v{t}, v{v}
        s_nop 1
        v_permlane32_swap_b32 v{v}, v{t}
        s_nop 0
        {op} v{v}, v{v}, v{t}""")

    def dpp(self, op, d, a, b, ctl, bank="0xf"):
        self.A(f"{op}_dpp v{d}, v{a}, v{b} {ctl} row_mask:0xf bank_mask:{bank}")

    def tagcheck(self, regs, t):
        for j, r in enumerate(regs):
            self.A(f"v_xor_b32 v{r}, s{TAGS[j & 3]}, v{r}")
        self.A(f"v_or_b32 v{t}, v{regs[0]}, v{regs[1]}")
        for j in range(2, len(regs), 2):
            self.A(f"v_or3_b32 v{t}, v{t}, v{regs[j]}, v{regs[j+1]}")
        self.A(f"v_and_b32 v{t}, {TAGM}, v{t}\nv_cmp_ne_u32 vcc, 0, v{t}")

    def tagput(self, regs, tg):
        for r in regs:
            self.A(f"v_add_u32 v{r}, {(TAGM+1)//2}, v{r}")
        for j, r in enumerate(regs):
            self.A(f"v_bfi_b32 v{r}, v{tg}, s{TAGS[j & 3]}, v{r}")

    def rbf(self, v):
        self.A(f"""v_cvt_pk_bf16_f32 v{v}, v{v}, v{v}
        v_and_b32 v{v}, 0xffff0000, v{v}""")

    def masks(self, M, t0, t1):
        self.A(f"""v_and_b32 v{t0}, 1, v1
        v_lshlrev_b32 v{t0}, 4, v{t0}
        v_mov_b32 v{t1}, 0xffff
        v_lshlrev_b32 v{t0}, v{t0}, v{t1}
        v_bfe_u32 v{t1}, v1, 1, 2
        v_cmp_eq_u32 s[50:51], 0, v{t1}
        v_cmp_eq_u32 s[52:53], 1, v{t1}
        v_cmp_eq_u32 s[54:55], 2, v{t1}
        v_cmp_eq_u32 s[56:57], 3, v{t1}
        s_nop 0
        v_cndmask_b32 v{M}, 0, v{t0}, s[50:51]
        v_cndmask_b32 v{M+1}, 0, v{t0}, s[52:53]
        v_cndmask_b32 v{M+2}, 0, v{t0}, s[54:55]
        v_cndmask_b32 v{M+3}, 0, v{t0}, s[56:57]""")


def isize(line):
    t = line.strip()
    if not t or t.endswith(":") or t.startswith((";", "@", ".")):
        return 0
    op = t.split()[0]
    if op.startswith(("buffer_", "global_", "ds_", "s_load", "s_memrealtime", "s_memtime", "v_mfma", "v_perm_b32", "v_cvt_pk", "v_lshl_add", "v_and_or",
                      "v_or3", "v_bfi", "v_max3", "v_fma_", "v_bfe", "v_writelane", "v_readlane", "v_add3")) or "_dpp" in op:
        return 8
    if op.startswith(("v_cmp", "v_cndmask")) and "s[" in t:
        return 8
    import re
    args = t[len(op):]
    for m in re.finditer(r"(?<![\w\[:])(-?0x[0-9a-fA-F]+|-?\d+)(?![\w\]:.])", args):
        v = int(m.group(1), 0)
        if not (-16 <= v <= 64) and not op.startswith(("s_waitcnt", "s_nop", "s_sleep", "s_setprio")):
            return 8
    return 4


def insert_pads(L, space):
    out = []
    i = 0
    while i < len(L):
        t = L[i].strip()
        if not t.startswith("@chain"):
            out.append(L[i]); i += 1; continue
        _, name, n, ret = t.split(); n = int(n)
        j = i + 1
        body = []
        while L[j].strip() != "@end":
            body.append(L[j]); j += 1
        pos = []; acc = space; ok = True
        for k, ln in enumerate(body):
            tt = ln.strip()
            if tt == "@nopad":
                if ok and acc > 64: pos.append(k); acc = 0
                ok = False
                continue
            if tt == "@pad":
                ok = True
                continue
            sz = isize(ln)
            if ok and sz and acc + sz > space:
                pos.append(k); acc = 0
            acc += sz
        per = -(-len(pos) // n)
        lab = {}
        for q, k in enumerate(pos):
            c = q // per
            first = q % per == 0
            last = q % per == per - 1 or q == len(pos) - 1
            me = f"{name}_{c}" if first else f"{name}_p{q}"
            nxt = ret if last else f"{name}_p{q+1}"
            lab[k] = [f"{me}:", f"    s_cbranch_execz {nxt}"]
        extra = [f"{name}_{c}:" for c in range((len(pos) - 1) // per + 1, n)]
        if extra: lab[pos[-1]] = extra + lab[pos[-1]]
        for k, ln in enumerate(body):
            if k in lab: out += lab[k]
            if ln.strip() not in ("@nopad", "@pad"): out.append(ln)
        i = j + 1
    return out


def gen(tb=9, stamps=0, pol="nt", sleep=1, lsleep=16, prio=3, pace=3, pre=0, ph=113, deep=0, ndone=6, dsleep=16,
        th=999, dbg=0, cpf=0, dual=1, fill4=1, wolate=0, warm=14, space=192, fw=8, ysets=3, ystag=5, rbd=0, nq=32, rd=0, sready=0, ymiss=64, ysleep=12):
    global TAGM
    TAGM = (1 << tb) - 1
    g = G(stamps, dbg)
    A = g.A
    P = (" " + pol) if pol else ""
    M = 4
    A(f"""s_cmp_ge_u32 s2, 256
    s_cbranch_scc1 L_end
    s_load_dwordx16 s[4:19], s[0:1], 0
    s_load_dwordx8 s[20:27], s[0:1], 64
    v_lshrrev_b32 v2, 6, v0
    v_and_b32 v1, 63, v0
    v_readfirstlane_b32 s3, v2""")
    if stamps:
        A("v_mov_b32 v168, 0\ns_memrealtime s[60:61]\ns_mov_b32 s79, s3")
    A("""s_lshr_b32 s101, s2, 3
    s_and_b32 s95, s2, 7
    s_and_b32 s66, s101, 3
    s_lshl_b32 s47, s95, 2
    s_add_u32 s66, s66, s47
    s_bfe_u32 s67, s101, 0x10002
    s_lshr_b32 s49, s101, 3
    s_mul_i32 s96, s95, 30
    s_cmp_lg_u32 s3, 0
    s_cbranch_scc1 L_stream""")

    XP = 8; AX0 = 24; AX1 = 28; W = 32; DD = 160; T0, T1, T2, T3 = 164, 165, 166, 167
    A(f"""s_setprio {prio}
    s_add_u32 s97, s96, s101
    s_mul_i32 s69, s97, 205
    s_lshr_b32 s69, s69, 10
    s_mul_i32 s70, s69, 5
    s_sub_u32 s70, s97, s70
    v_lshrrev_b32 v{T0}, 4, v1
    v_and_b32 v{T1}, 7, v1
    v_bfe_u32 v{T2}, v1, 3, 1
    v_mul_u32_u24 v{T2}, 1280, v{T2}
    v_lshl_add_u32 v{T3}, v{T0}, 3, v{T1}
    v_lshl_add_u32 v{DD}, v{T3}, 4, v{T2}
    v_lshl_add_u32 v{DD+1}, v{T3}, 3, v{T2}
    s_lshl_b32 s47, s70, 8
    v_add_u32 v{DD+1}, s47, v{DD+1}
    v_mul_u32_u24 v2, 393216, v{T0}
    v_and_b32 v{T1}, 15, v1
    v_lshl_add_u32 v2, v{T1}, 4, v2
    s_mul_i32 s62, s70, 1572864
    s_lshl_b32 s48, s69, 8
    s_add_u32 s62, s62, s48
    v_mov_b32 v{XP+8}, 0
    v_mov_b32 v{XP+9}, 0
    v_mov_b32 v{XP+10}, 0
    v_mov_b32 v{XP+11}, 0
    s_mov_b32 s38, 7864320
    s_mov_b32 s39, 0x20000""")
    if warm & 1: A("s_mov_b64 exec, 0\ns_branch WI_0\nL_wi_ret:\ns_mov_b64 exec, -1")
    A("s_waitcnt lgkmcnt(0)")
    if stamps:
        A("v_writelane_b32 v168, s60, 0")
    A(f"""s_mov_b32 s36, s10
    s_mov_b32 s37, s11
    global_load_dwordx4 v[{XP}:{XP+3}], v{DD}, s[4:5]
    global_load_dwordx4 v[{XP+4}:{XP+7}], v{DD}, s[4:5] offset:512
    global_load_dwordx2 v[{XP+12}:{XP+13}], v{DD+1}, s[4:5]
    s_bfm_b64 exec, 32, 0
    global_load_dwordx4 v[{XP+8}:{XP+11}], v{DD}, s[4:5] offset:1024
    s_mov_b64 exec, -1
    s_load_dword s80, s[26:27], {WS_E}
    s_cmp_ge_u32 s101, 30
    s_cbranch_scc1 L_noq1""")
    if warm & 1: A("@chain WI 1 L_wi_ret")
    for i in range(32):
        A(f"buffer_load_dwordx4 v[{W+4*i}:{W+4*i+3}], v2, s[36:39], s62 offen{P}")
        if i < 31:
            A("s_add_u32 s62, s62, 12288")
    if warm & 1: A("@end")
    A(f"""L_noq1:
    s_barrier""")
    if warm & 2: A("@chain WA 4 L_wa_ret")
    g.stamp(1)
    g.masks(M, T0, T1)
    A(f"""s_mov_b32 s81, {(~TAGM) & 0xffffffff}
    s_mov_b32 s64, 0x01000100
    s_mov_b32 s65, 0x03020302
    s_mov_b32 s58, 399999
    s_add_u32 s90, s26, {WS_B}
    s_addc_u32 s91, s27, 0
    v_mov_b32 v{T0}, 0
    v_mov_b32 v{T1}, 0
    ds_write_b64 v{T0}, v[{T0}:{T1}] offset:{L_FLAG}
    s_waitcnt lgkmcnt(0)
    s_add_u32 s82, s80, 1
    s_and_b32 s80, s82, {TAGM}
    s_add_u32 s0, s82, 173
    s_and_b32 s0, s0, {TAGM}
    s_add_u32 s1, s82, 346
    s_and_b32 s1, s1, {TAGM}
    s_add_u32 s14, s82, 519
    s_and_b32 s14, s14, {TAGM}
    s_mov_b32 s84, 1
    s_cmp_ge_u32 s101, 30
    s_cbranch_scc1 L_qgather""")
    SUM, VAR, MEAN = T0, T1, T2
    A(f"""s_mov_b32 s47, 0x3f803f80
    s_waitcnt vmcnt(32)""")
    for r in range(12):
        A(f"v_dot2c_f32_bf16 v{SUM}, s47, v{XP+r}")
    A("s_nop 2")

    def allred_stats(v, t):
        for ctl in ["quad_perm:[1,0,3,2]", "quad_perm:[2,3,0,1]", "row_half_mirror"]:
            g.dpp("v_add_f32", v, v, v, ctl)
            A("s_nop 1")
        g.allred_16_32("v_add_f32", v, t)

    allred_stats(SUM, T3)
    A(f"v_mul_f32 v{MEAN}, 0x3acccccd, v{SUM}")
    for r in range(12):
        if r == 8:
            A("s_bfm_b64 exec, 32, 0")
        A(f"""v_lshlrev_b32 v{AX1}, 16, v{XP+r}
        v_and_b32 v{AX1+1}, 0xffff0000, v{XP+r}
        v_sub_f32 v{AX1}, v{AX1}, v{MEAN}
        v_sub_f32 v{AX1+1}, v{AX1+1}, v{MEAN}
        v_fmac_f32 v{VAR}, v{AX1}, v{AX1}
        v_fmac_f32 v{VAR}, v{AX1+1}, v{AX1+1}""")
    A("s_mov_b64 exec, -1\ns_nop 1")
    allred_stats(VAR, T3)
    A(f"v_mul_f32 v{VAR}, 0x3acccccd, v{VAR}")
    g.rbf(VAR)
    g.rbf(MEAN)
    A(f"v_add_f32 v{VAR}, 0x3727c5ac, v{VAR}")
    g.rbf(VAR)
    A(f"v_sqrt_f32 v{VAR}, v{VAR}\ns_nop 0")
    g.rbf(VAR)
    A(f"v_rcp_f32 v{VAR}, v{VAR}")
    for k in range(2):
        r = XP + 12 + k
        A(f"""v_lshlrev_b32 v{AX1}, 16, v{r}
        v_and_b32 v{AX1+1}, 0xffff0000, v{r}
        v_sub_f32 v{AX1}, v{AX1}, v{MEAN}
        v_sub_f32 v{AX1+1}, v{AX1+1}, v{MEAN}
        v_cvt_pk_bf16_f32 v{r}, v{AX1}, v{AX1+1}
        v_lshlrev_b32 v{AX1}, 16, v{r}
        v_and_b32 v{AX1+1}, 0xffff0000, v{r}
        v_mul_f32 v{AX1}, v{AX1}, v{VAR}
        v_mul_f32 v{AX1+1}, v{AX1+1}, v{VAR}
        v_cvt_pk_bf16_f32 v{r}, v{AX1}, v{AX1+1}""")

    def xbuf_roundtrip(src):
        A(f"""v_lshrrev_b32 v{T0}, 4, v1
        v_lshlrev_b32 v{T0}, 6, v{T0}
        v_and_b32 v{T1}, 8, v1
        v_lshl_add_u32 v{T0}, v{T1}, 5, v{T0}""")
        src()
        A("s_waitcnt lgkmcnt(0)")
        for j in range(4):
            A(f"ds_read_b128 v[{XP+4*j}:{XP+4*j+3}], v{T0} offset:{L_X+16*j}")

    def wr_x():
        A(f"""v_and_b32 v{T1}, 7, v1
        v_lshl_add_u32 v{T1}, v{T1}, 3, v{T0}
        ds_write_b64 v{T1}, v[{XP+12}:{XP+13}] offset:{L_X}""")

    def tile_compute(win=32, issue=None):
        for i in range(32):
            Ar = AX0 if i % 2 == 0 else AX1
            if issue and i > 0 and i - 1 + win < 32:
                issue(i - 1 + win)
            A(f"v_perm_b32 v{T3}, v{XP+(i>>1)}, v{XP+(i>>1)}, s{64+(i&1)}")
            for r in range(4):
                A(f"v_and_b32 v{Ar+r}, v{T3}, v{M+r}")
            A(f"s_waitcnt vmcnt({min(31-i, win-1)})")
            A("s_nop 0")
            c = "0" if i == 0 else f"v[{DD}:{DD+3}]"
            A(f"v_mfma_f32_16x16x32_bf16 v[{DD}:{DD+3}], v[{Ar}:{Ar+3}], v[{W+4*i}:{W+4*i+3}], {c}")

    def nat_off(dst, tmp):
        A(f"""v_and_b32 v{dst}, 15, v1
        v_lshlrev_b32 v{dst}, 5, v{dst}
        v_and_b32 v{tmp}, 16, v1
        v_add_u32 v{dst}, v{dst}, v{tmp}
        v_and_b32 v{tmp}, 32, v1
        v_lshl_add_u32 v{dst}, v{tmp}, 4, v{dst}""")

    if warm & 2: A("@end\n@chain WQ 4 L_wq_ret")
    xbuf_roundtrip(wr_x)
    nat_off(T2, T1)
    A(f"""s_lshl_b32 s47, s97, 10
    v_add_u32 v{T2}, s47, v{T2}
    v_mov_b32 v{T1}, {TAGM}
    s_mov_b32 s84, 0
    s_waitcnt lgkmcnt(0)""")
    g.stamp(2)
    tile_compute()
    A("s_nop 7")
    g.tagput(range(DD, DD + 4), T1)
    A(f"global_store_dwordx4 v{T2}, v[{DD}:{DD+3}], s[26:27]{'' if dual else ' sc1'}")
    g.stamp(3)
    A(f"""L_qgather:
    s_mul_i32 s47, s66, 192
    v_lshl_add_u32 v{T0}, v1, 2, s47
    v_lshrrev_b32 v{T3}, 7, v{T0}
    v_mul_u32_u24 v{T3}, 5120, v{T3}
    v_and_b32 v{T0}, 127, v{T0}
    v_lshl_add_u32 v{T3}, v{T0}, 2, v{T3}
    s_lshl_b32 s47, s67, 9
    s_add_u32 s47, s47, {WS_Q + 2048}
    v_add_u32 v{T3}, s47, v{T3}
    s_bfm_b64 s[86:87], 48, 0
    s_mov_b64 s[88:89], s[86:87]
    s_mov_b64 s[98:99], s[86:87]
    s_mov_b64 s[76:77], s[86:87]
    s_mov_b64 s[74:75], s[86:87]
    s_mov_b64 s[92:93], s[26:27]
    @nopad
    L_pollQ:""")
    QM = [86, 88, 98, 76, 74]
    for rb in range(5):
        A(f"s_mov_b64 exec, s[{QM[rb]}:{QM[rb]+1}]")
        l = g.lab("L_pq")
        A(f"s_cbranch_execz {l}")
        A(f"global_load_dwordx4 v[{W+4*rb}:{W+4*rb+3}], v{T3}, s[92:93] offset:{rb*1024-2048} sc1")
        A(f"{l}:")
    if dual:
        A(f"""s_cmp_lg_u32 s84, 0
        s_cbranch_scc1 L_pq_w0
        s_mov_b32 s84, 1
        s_mov_b64 exec, -1
        global_store_dwordx4 v{T2}, v[{DD}:{DD+3}], s[90:91] sc1
        s_waitcnt vmcnt(1)
        s_branch L_pq_w1
        L_pq_w0:""")
    A("s_waitcnt vmcnt(0)\nL_pq_w1:\ns_mov_b64 exec, -1\n@pad\ns_nop 0\n@nopad")
    for rb in range(5):
        A(f"s_mov_b64 exec, s[{QM[rb]}:{QM[rb]+1}]")
        g.tagcheck(list(range(W + 4*rb, W + 4*rb + 4)), T0)
        A(f"s_mov_b64 s[{QM[rb]}:{QM[rb]+1}], vcc")
    A(f"""s_or_b64 s[50:51], s[{QM[0]}:{QM[0]+1}], s[{QM[1]}:{QM[1]+1}]
    s_or_b64 s[52:53], s[{QM[2]}:{QM[2]+1}], s[{QM[3]}:{QM[3]+1}]
    s_or_b64 s[50:51], s[50:51], s[{QM[4]}:{QM[4]+1}]
    s_or_b64 s[50:51], s[50:51], s[52:53]
    s_cbranch_scc0 L_gotQ""")
    if dual: g.pick(7)
    g.spin("L_pollQ", 0)
    A("L_gotQ:\ns_bfm_b64 exec, 48, 0\n@pad")
    if dual:
        A(f"""s_cmp_eq_u32 s92, s26
        s_cselect_b32 s47, 63, 0
        v_mov_b32 v{T1}, s47
        v_mov_b32 v{T0}, 0
        ds_write_b32 v{T0}, v{T1} offset:{L_DONE}""")
    g.stamp(5)
    A(f"v_lshlrev_b32 v{T0}, 3, v1")
    for rb in range(1, 5):
        for e in range(4):
            A(f"v_add_f32 v{W+e}, v{W+e}, v{W+4*rb+e}")
    A(f"""v_cvt_pk_bf16_f32 v{W}, v{W}, v{W+1}
    v_cvt_pk_bf16_f32 v{W+1}, v{W+2}, v{W+3}
    ds_write_b64 v{T0}, v[{W}:{W+1}] offset:{L_Q}
    s_mov_b64 exec, -1
    s_waitcnt lgkmcnt(0)
    s_barrier
    s_branch L_aux2
    @nopad""")

    Q = 8; ACC = 20; A0 = 32; A1 = 36
    SA, SB, T, MM, MC, LL, PA, PB = 40, 41, 42, 43, 44, 45, 46, 47
    KA, VA, KB, VB = 48, 72, 96, 120
    FL, OOB, ZERO = 144, 145, 146
    OA, OS, BP0, BP1, LA, LS, LY = 148, 149, 150, 151, 152, 153, 154
    CP = 156
    BD = 155
    OFFS = [0, 128, 256, 3072, 3200, 3328]

    def group(j, K, V, sreg):
        base = (K if j < 2 else V) + 12 * (j & 1)
        srd = 28 if j < 2 else 32
        for t in range(3):
            A(f"buffer_load_dwordx4 v[{base+4*t}:{base+4*t+3}], v2, s[{srd}:{srd+3}], s{sreg} offen offset:{OFFS[3*(j&1)+t]}{P}")

    def uoff(dst, src):
        A(f"""s_add_u32 s48, s{src}, s94
        s_and_b32 s48, s48, 255
        s_mul_i32 s48, s48, 6144
        s_add_u32 s{dst}, s40, s48""")

    A(f"""L_stream:
    s_sub_u32 s3, s3, 1
    s_lshl_b32 s42, s49, 2
    s_add_u32 s42, s42, s3
    s_lshl_b32 s40, s67, 5
    s_add_u32 s40, s40, s66
    s_mul_i32 s94, s40, {ph}
    s_mul_i32 s40, s40, 1572864
    v_lshrrev_b32 v2, 3, v1
    v_mul_u32_u24 v2, 384, v2
    v_and_b32 v3, 7, v1
    v_lshl_add_u32 v2, v3, 4, v2""")
    uoff(44, 42)
    A("""s_add_u32 s47, s42, 4
    s_and_b32 s47, s47, 15
    s_add_u32 s47, s47, 16""")
    uoff(43, 47)
    if cpf:
        A(f"""s_getpc_b64 s[50:51]
        L_pc:
        s_lshl_b32 s47, s3, 12
        s_sub_u32 s47, s47, L_pc-{KN}
        s_ashr_i32 s48, s47, 31
        s_add_u32 s50, s50, s47
        s_addc_u32 s51, s51, s48
        v_lshlrev_b32 v{CP}, 4, v1
        v_mov_b32 v{CP+1}, 0
        v_lshl_add_u64 v[{CP}:{CP+1}], v[{CP}:{CP+1}], 0, s[50:51]""")
        for j in range(4):
            A(f"global_load_dwordx4 v[{CP+4}:{CP+7}], v[{CP}:{CP+1}], off offset:{j*1024}")
    A("""s_mov_b32 s30, 100663296
    s_mov_b32 s31, 0x20000
    s_mov_b32 s34, 100663296
    s_mov_b32 s35, 0x20000""")

    def hop4(name, ret):
        A(f"""@nopad
        s_mov_b64 exec, 0
        s_cmp_eq_u32 s3, 0
        s_cbranch_scc1 {name}_0
        s_cmp_eq_u32 s3, 1
        s_cbranch_scc1 {name}_1
        s_cmp_eq_u32 s3, 2
        s_cbranch_scc1 {name}_2
        s_branch {name}_3
        {ret}:
        s_mov_b64 exec, -1
        @pad""")
    if warm & 2: hop4("WA", "L_wa_ret")
    A("s_waitcnt lgkmcnt(0)")
    if stamps:
        A("v_writelane_b32 v168, s60, 0")
    A("""s_mov_b32 s28, s6
    s_mov_b32 s29, s7
    s_mov_b32 s32, s8
    s_mov_b32 s33, s9""")
    seq = [(0, KB, VB, 44), (1, KB, VB, 44), (2, KB, VB, 44), (3, KB, VB, 44), (0, KA, VA, 43), (1, KA, VA, 43)]
    if fill4: seq += [(2, KA, VA, 43), (3, KA, VA, 43)]
    for n, (j, K, V, sr) in enumerate(seq):
        if n == pre:
            A("s_barrier")
        if n == 2:
            if warm & 2: hop4("WQ", "L_wq_ret")
            A(f"s_load_dword s80, s[26:27], {WS_E}")
            g.masks(M, T, PA)
            A(f"""s_add_u32 s98, s101, 17
            s_and_b32 s98, s98, 31
            s_cmp_ge_u32 s98, 30
            s_cselect_b32 s83, 1, 0
            s_add_u32 s98, s98, s96
            s_mul_i32 s69, s98, 205
            s_lshr_b32 s69, s69, 10
            s_mul_i32 s70, s69, 5
            s_sub_u32 s70, s98, s70
            s_mov_b32 s36, s12
            s_mov_b32 s37, s13
            s_mov_b32 s38, 7864320
            s_mov_b32 s39, 0x20000
            s_lshl_b32 s71, s69, 2
            s_add_u32 s71, s71, s3
            s_mul_i32 s72, s71, 40960
            s_lshl_b32 s47, s70, 8
            s_add_u32 s72, s72, s47
            s_add_u32 s73, s72, 5120
            v_lshrrev_b32 v3, 4, v1
            v_mul_u32_u24 v3, 10240, v3
            v_and_b32 v{T}, 15, v1
            v_lshl_add_u32 v3, v{T}, 4, v3
            s_lshl_b32 s47, s83, 30
            v_add_u32 v3, s47, v3
            s_mov_b32 s41, 1
            s_mov_b32 s46, {LOG2E}
            s_mov_b32 s58, 399999
            s_add_u32 s90, s26, {WS_B}
            s_addc_u32 s91, s27, 0
            s_mov_b64 s[92:93], s[26:27]""")
        if n == 3:
            for r in range(12):
                A(f"v_mov_b32 v{ACC+r}, 0")
            A(f"""v_mov_b32 v{MM}, 0xff800000
            v_mov_b32 v{MC}, 0xff800000
            v_mov_b32 v{LL}, 0
            v_mov_b32 v{OOB}, 0x7ff00000
            v_mov_b32 v{ZERO}, 0
            s_mul_i32 s47, s71, 171
            s_lshr_b32 s47, s47, 10
            s_mul_i32 s48, s47, 6
            s_sub_u32 s48, s71, s48
            s_lshl_b32 s88, s47, 7
            s_add_u32 s88, s88, {WS_R}
            s_lshl_b32 s47, s47, 13
            s_add_u32 s47, s47, {WS_O}
            v_and_b32 v{OS}, 7, v1
            v_lshl_add_u32 v{OS}, v{OS}, 10, s47
            v_lshrrev_b32 v{OA}, 3, v1
            s_lshl_b32 s48, s48, 7
            v_lshl_add_u32 v{OA}, v{OA}, 4, s48
            v_add_u32 v{OA}, v{OA}, v{OS}
            v_lshrrev_b32 v{BP0}, 4, v1
            v_lshlrev_b32 v{BP0}, 6, v{BP0}
            v_and_b32 v{BP1}, 8, v1
            v_lshl_add_u32 v{BP0}, v{BP1}, 1, v{BP0}
            v_add_u32 v{BP1}, 32, v{BP0}
            s_mul_i32 s47, s3, 3072
            v_lshl_add_u32 v{LA}, v1, 4, s47
            s_lshl_b32 s47, s3, 3
            v_mov_b32 v{LS}, s47
            s_lshl_b32 s47, s3, 10
            v_lshl_add_u32 v{LY}, v1, 4, s47""")
            if rbd:
                A(f"""s_mul_i32 s47, s95, 384
                s_add_u32 s47, s47, {WS_D}
                v_lshl_add_u32 v{BD}, v1, 2, s47
                s_and_b32 s86, s101, 3
                s_lshl_b32 s47, s95, 3
                s_lshr_b32 s48, s101, 2
                s_add_u32 s47, s47, s48
                s_lshl_b32 s47, s47, 2
                s_add_u32 s87, s47, {WS_D}""")
        if n == 4 and warm & 4: hop4("WS", "L_ws_ret")
        if n >= 2:
            A(f"s_waitcnt vmcnt({pace})")
        group(j, K, V, sr)
    g.stamp(1)
    A(f"""s_add_u32 s85, s42, 8
    s_and_b32 s85, s85, 15
    s_add_u32 s85, s85, 32
    s_add_u32 s47, s42, 12
    s_and_b32 s47, s47, 15
    s_add_u32 s47, s47, 240""")
    uoff(44, 47)
    A(f"""s_mov_b32 s45, 0
    s_mov_b32 s100, 1
    s_mov_b32 s84, 16
    v_and_b32 v{T}, 7, v1
    v_lshlrev_b32 v{T}, 4, v{T}
    s_waitcnt lgkmcnt(0)
    s_add_u32 s82, s80, 1
    s_and_b32 s80, s82, {TAGM}
    s_add_u32 s0, s82, 173
    s_and_b32 s0, s0, {TAGM}
    s_add_u32 s1, s82, 346
    s_and_b32 s1, s1, {TAGM}
    s_add_u32 s14, s82, 519
    s_and_b32 s14, s14, {TAGM}
    s_mov_b32 s86, s82
    s_mov_b32 s87, s82
    s_barrier
    ds_read_b128 v[{Q}:{Q+3}], v{T} offset:{L_Q}
    ds_read_b128 v[{Q+4}:{Q+7}], v{T} offset:{L_Q+128}
    ds_read_b128 v[{Q+8}:{Q+11}], v{T} offset:{L_Q+256}
    ds_read_b32 v{PA}, v{ZERO} offset:{L_DONE}
    s_waitcnt lgkmcnt(0)
    v_readfirstlane_b32 s89, v{PA}""")
    g.stamp(2)

    def softmax_part():
        for ctl in ["quad_perm:[1,0,3,2]", "quad_perm:[2,3,0,1]", "row_half_mirror"]:
            g.dpp("v_add_f32", SA, SA, SA, ctl)
            g.dpp("v_add_f32", SB, SB, SB, ctl)
            A("s_nop 0")
        skip = g.lab("L_skip")
        A(f"""v_cvt_pk_bf16_f32 v{T}, v{SA}, v{SB}
        v_lshlrev_b32 v{SA}, 16, v{T}
        v_and_b32 v{SB}, 0xffff0000, v{T}
        v_mul_f32 v{SA}, {SCALE}, v{SA}
        v_mul_f32 v{SB}, {SCALE}, v{SB}
        v_cvt_pk_bf16_f32 v{T}, v{SA}, v{SB}
        v_lshlrev_b32 v{SA}, 16, v{T}
        v_and_b32 v{SB}, 0xffff0000, v{T}
        v_max_f32 v{T}, v{SA}, v{SB}
        v_cmp_gt_f32 vcc, v{T}, v{MM}
        s_cbranch_vccz {skip}""")
        g.dpp("v_max_f32", T, T, T, "row_ror:8")
        g.allred_16_32("v_max_f32", T, PA)
        A(f"""v_max_f32 v{MM}, v{MM}, v{T}
        v_mul_f32 v{PA}, s46, v{MM}
        v_sub_f32 v{PB}, v{MC}, v{PA}
        v_exp_f32 v{PB}, v{PB}
        v_mov_b32 v{MC}, v{PA}
        v_mul_f32 v{LL}, v{LL}, v{PB}""")
        for r in range(12):
            A(f"v_mul_f32 v{ACC+r}, v{ACC+r}, v{PB}")
        A(f"""{skip}:
        v_fma_f32 v{PA}, v{SA}, s46, -v{MC}
        v_fma_f32 v{PB}, v{SB}, s46, -v{MC}
        v_exp_f32 v{PA}, v{PA}
        v_exp_f32 v{PB}, v{PB}
        s_nop 0
        v_add_f32 v{LL}, v{LL}, v{PA}
        v_cvt_pk_bf16_f32 v{PA}, v{PA}, v{PA}
        v_add_f32 v{LL}, v{LL}, v{PB}
        v_cvt_pk_bf16_f32 v{PB}, v{PB}, v{PB}""")
        for r in range(4):
            A(f"v_and_b32 v{A0+r}, v{PA}, v{M+r}")
        for r in range(4):
            A(f"v_and_b32 v{A1+r}, v{PB}, v{M+r}")

    def consume(j, K, V):
        if j < 2:
            for r in range(12):
                A(f"v_dot2c_f32_bf16 v{SA+j}, v{K+12*j+r}, v{Q+r}")
        else:
            Ar = A0 if j == 2 else A1
            for t in range(3):
                b = V + 12 * (j - 2) + 4 * t
                A(f"v_mfma_f32_16x16x32_bf16 v[{ACC+4*t}:{ACC+4*t+3}], v[{Ar}:{Ar+3}], v[{b}:{b+3}], v[{ACC+4*t}:{ACC+4*t+3}]")

    def dummies(n):
        for j in range(n):
            A(f"buffer_load_dword v{FL}, v{OOB}, s[36:39], 0 offen")

    def advance():
        A("""s_add_u32 s48, s85, 4
        s_and_b32 s48, s48, 15
        s_andn2_b32 s85, s85, 15
        s_add_u32 s85, s85, s48
        s_add_u32 s85, s85, 16""")

    def prog():
        if stamps:
            A("""s_waitcnt lgkmcnt(0)
            s_mov_b32 m0, s84
            s_add_u32 s84, s84, 1
            s_min_u32 s84, s84, 63
            v_writelane_b32 v168, s60, m0""")

    if warm & 2: A("@end")
    if warm & 4: A("@chain WS 4 L_ws_ret")
    A(f"L_F:\nv_mov_b32 v{SA}, 0\nv_mov_b32 v{SB}, 0")
    for j in range(4):
        if j == 2:
            A("s_nop 2"); softmax_part()
        A(f"s_waitcnt vmcnt({15 - 3*j})")
        consume(j, KB, VB)
    A("s_cmp_lg_u32 s45, 0\ns_cbranch_scc1 L_exit")
    A("L_loop:")
    if stamps: A("s_memrealtime s[60:61]")
    if deep: A(f"ds_read_b32 v{FL}, v{ZERO} offset:{L_FLAG}")
    if rbd: A(f"s_lshr_b32 s47, s85, 4\ns_cmp_eq_u32 s47, {rbd+1}\ns_cbranch_scc1 L_board\nL_board_ret:")
    A(f"v_mov_b32 v{SA}, 0\nv_mov_b32 v{SB}, 0\ns_waitcnt vmcnt(3)")
    consume(0, KA, VA)
    if fill4: A("s_cmp_lg_u32 s41, 0\ns_cbranch_scc1 L_sk0")
    group(2, KA, VA, 43)
    A("L_sk0:\ns_waitcnt vmcnt(3)")
    consume(1, KA, VA)
    if fill4: A("s_cmp_lg_u32 s41, 0\ns_mov_b32 s41, 0\ns_cbranch_scc1 L_sk1")
    group(3, KA, VA, 43)
    A("L_sk1:")
    if th < 999:
        A(f"s_cmp_ge_u32 s85, {th + 16}\ns_cbranch_scc1 L_early\nL_early_ret:")
    if rbd:
        A(f"s_cmp_ge_u32 s47, {rbd+2}\ns_cbranch_scc1 L_judge\nL_early_ret:")
    softmax_part()
    A("s_waitcnt vmcnt(3)")
    consume(2, KA, VA)
    prog()
    A("s_cmp_ge_u32 s85, 240\ns_cbranch_scc1 L_last")
    uoff(43, 85)
    group(0, KA, VA, 43)
    advance()
    if deep: A(f"s_waitcnt lgkmcnt(0)\nv_readfirstlane_b32 s47, v{FL}")
    A("s_waitcnt vmcnt(3)")
    consume(3, KA, VA)
    group(1, KA, VA, 43)
    WO = KA

    def wo_load(j):
        o = j * 1280
        A(f"buffer_load_dwordx4 v[{WO+4*j}:{WO+4*j+3}], v3, s[36:39], s{72 if o < 4096 else 73} offen offset:{o if o < 4096 else o-5120}{P}")
    if deep or rd:
        if rd: A(f"s_cmp_lt_u32 s85, {16*(rd+1)}\ns_cbranch_scc1 L_loop")
        else: A("s_cmp_eq_u32 s47, 0\ns_cbranch_scc1 L_loop")
        group(2, KA, VA, 43); group(3, KA, VA, 43)
        for j in range(4): group(j, KB, VB, 44)
        A("s_mov_b32 s100, 0\nL_deep:")
        if stamps: A("s_memrealtime s[60:61]")
        A(f"v_mov_b32 v{SA}, 0\nv_mov_b32 v{SB}, 0")
        for j in range(4):
            if j == 2: softmax_part()
            A("s_waitcnt vmcnt(9)")
            consume(j, KA, VA)
            if j == 0:
                prog()
                A("s_cmp_ge_u32 s85, 240\ns_cselect_b32 s45, 1, 0\ns_cbranch_scc1 L_dsub0")
                uoff(43, 85)
                group(0, KA, VA, 43)
                advance()
                A("L_dret0:")
            elif j < 3:
                A(f"s_cmp_lg_u32 s45, 0\ns_cbranch_scc1 L_dsub{j}")
                group(j, KA, VA, 43)
                A(f"L_dret{j}:")
            else:
                A("s_cmp_lg_u32 s45, 0\ns_cbranch_scc1 L_F")
                group(3, KA, VA, 43)
                A("s_branch L_deep")
        for j in range(3):
            A(f"L_dsub{j}:")
            if wolate:
                dummies(3)
            else:
                for jj in range(3*j, min(3*j+3, 8)): wo_load(jj)
                if j == 2: dummies(1)
            A(f"s_branch L_dret{j}")
    else:
        A("s_branch L_loop")
    if rbd:
        A(f"""L_board:
        s_cmp_lg_u32 s3, 0
        s_cbranch_scc1 L_board_ret
        global_load_dword v{FL}, v{BD}, s[26:27] sc1
        s_cmp_lg_u32 s86, 0
        s_cbranch_scc1 L_board_ret
        v_mul_u32_u24 v{PA}, 384, v1
        v_add_u32 v{PA}, s87, v{PA}
        v_mov_b32 v{PB}, s82
        s_mov_b64 exec, 0xff
        global_store_dword v{PA}, v{PB}, s[26:27] sc1
        s_mov_b64 exec, -1
        s_branch L_board_ret
        L_judge:
        s_cmp_eq_u32 s47, {rbd+3}
        s_cbranch_scc1 L_judge2
        s_cmp_gt_u32 s47, {rbd+3}
        s_cbranch_scc1 L_early_ret
        s_cmp_lg_u32 s3, 0
        s_cbranch_scc1 L_early_ret
        v_cmp_eq_u32 vcc, s82, v{FL}
        s_bcnt1_i32_b64 s48, vcc
        s_cmp_lt_u32 s48, {nq}
        s_cbranch_scc1 L_early_ret
        v_mov_b32 v{FL}, 1
        ds_write_b32 v{ZERO}, v{FL} offset:{L_FLAG}
        s_branch L_early_ret
        L_judge2:
        ds_read_b32 v{FL}, v{ZERO} offset:{L_FLAG}
        s_waitcnt lgkmcnt(0)
        v_cmp_eq_u32 vcc, 1, v{FL}
        s_cbranch_vccz L_early_ret""")
    if th < 999 or rbd:
        A("L_early:\ns_mov_b32 s100, 0")
        for j in range(4): group(j, KB, VB, 44)
        A("s_branch L_early_ret")
    A("L_last:")
    g.stamp(3)
    A("s_mov_b32 s45, 1")
    if th < 999 or rbd:
        A("s_cmp_eq_u32 s100, 0\ns_cbranch_scc1 L_last3")
    for j in range(4): group(j, KB, VB, 44)
    WO = KA

    def wo_loads():
        for j in range(8):
            o = j * 1280
            A(f"buffer_load_dwordx4 v[{WO+4*j}:{WO+4*j+3}], v3, s[36:39], s{72 if o < 4096 else 73} offen offset:{o if o < 4096 else o-5120}{P}")
    if wolate:
        dummies(6)
        A("s_waitcnt vmcnt(18)")
    else:
        wo_loads()
        A("s_waitcnt vmcnt(20)")
    if th < 999 or rbd:
        A("s_branch L_last4\nL_last3:")
        if wolate:
            A("s_waitcnt vmcnt(0)")
        else:
            wo_loads()
            A("s_waitcnt vmcnt(8)")
        A("L_last4:")
    consume(3, KA, VA)
    A("s_branch L_F")
    A("L_exit:")
    if wolate: wo_loads()
    g.stamp(4)
    g.dpp("v_add_f32", LL, LL, LL, "row_ror:8")
    g.allred_16_32("v_add_f32", LL, T)
    O0, S0, XR = 108, 112, 96
    A(f"""v_mov_b32 v{T}, 1
    ds_write_b128 v{LA}, v[{ACC}:{ACC+3}] offset:{L_ACC}
    ds_write_b128 v{LA}, v[{ACC+4}:{ACC+7}] offset:{L_ACC+1024}
    ds_write_b128 v{LA}, v[{ACC+8}:{ACC+11}] offset:{L_ACC+2048}
    ds_write_b64 v{LS}, v[{MC}:{LL}] offset:{L_ST}""")
    if deep: A(f"ds_write_b32 v{ZERO}, v{T} offset:{L_DONE}")
    A(f"""s_waitcnt lgkmcnt(0)
    s_barrier
    s_cmp_lg_u32 s83, 0
    s_cbranch_scc1 L_sdone""")
    if sready:
        A("""L_pollR:
        s_load_dwordx8 s[4:11], s[26:27], s88 glc
        s_mov_b64 s[92:93], s[26:27]
        s_sub_u32 s58, s58, 1
        s_waitcnt lgkmcnt(0)""")
        for j in range(0, 8, 2):
            A(f"s_xor_b64 s[{4+j}:{5+j}], s[{4+j}:{5+j}], s[86:87]")
        A("""s_or_b64 s[4:5], s[4:5], s[6:7]
        s_or_b64 s[8:9], s[8:9], s[10:11]
        s_or_b64 s[4:5], s[4:5], s[8:9]
        s_cbranch_scc0 L_pollO
        s_and_b32 s47, s58, 63
        s_cbranch_scc1 L_pollR
        s_mov_b64 s[92:93], s[90:91]""")
    A(f"""L_pollO:
    global_load_dwordx4 v[{O0}:{O0+3}], v{OA}, s[92:93] sc1
    global_load_dwordx4 v[{S0}:{S0+3}], v{OS}, s[92:93] offset:768 sc1
    s_waitcnt vmcnt(0)""")
    g.tagcheck(list(range(O0, O0 + 8)), T)
    A("s_cbranch_vccz L_gotO")
    if sready:
        A("s_cmp_gt_i32 s58, 0\ns_cbranch_scc1 L_pollR")
    else:
        if dual: g.pick("s89")
        g.spin("L_pollO", sleep)
    A("L_gotO:")
    g.stamp(5)
    g.dpp("v_max_f32", T, S0, S0, "quad_perm:[1,0,3,2]")
    A("s_nop 1")
    g.dpp("v_max_f32", T, T, T, "quad_perm:[2,3,0,1]")
    A(f"""v_sub_f32 v{T}, v{S0}, v{T}
    v_exp_f32 v{T}, v{T}
    s_nop 0
    v_mul_f32 v{S0+1}, v{S0+1}, v{T}""")
    for e in range(4):
        A(f"v_mul_f32 v{O0+e}, v{O0+e}, v{T}")
    for ctl in ["quad_perm:[1,0,3,2]", "quad_perm:[2,3,0,1]"]:
        g.dpp("v_add_f32", S0 + 1, S0 + 1, S0 + 1, ctl)
        for e in range(4):
            g.dpp("v_add_f32", O0 + e, O0 + e, O0 + e, ctl)
    A(f"""v_rcp_f32 v{T}, v{S0+1}
    s_nop 0""")
    for e in range(4):
        A(f"v_mul_f32 v{O0+e}, v{O0+e}, v{T}")
    for e in range(4):
        A(f"v_cvt_pk_bf16_f32 v{O0+e}, v{O0+e}, v{O0+e}")
    for rq in range(8):
        A(f"ds_bpermute_b32 v{XR+rq}, v{BP0 if rq < 4 else BP1}, v{O0+(rq&3)}")
    D = ACC
    AR = [A0, A1, 116, 120]
    for rq in range(8):
        A(f"s_waitcnt lgkmcnt({7-rq})")
        Ar = AR[rq % 4]
        for r in range(4):
            A(f"v_and_b32 v{Ar+r}, v{XR+rq}, v{M+r}")
        if rq >= 1:
            p = rq - 1
            c = "0" if p == 0 else f"v[{D}:{D+3}]"
            A(f"v_mfma_f32_16x16x32_bf16 v[{D}:{D+3}], v[{AR[p%4]}:{AR[p%4]+3}], v[{WO+4*p}:{WO+4*p+3}], {c}")
    A(f"""s_nop 0
    v_mfma_f32_16x16x32_bf16 v[{D}:{D+3}], v[{AR[3]}:{AR[3]+3}], v[{WO+28}:{WO+31}], v[{D}:{D+3}]
    s_nop 7
    ds_write_b128 v{LY}, v[{D}:{D+3}] offset:{L_YP}
    s_waitcnt lgkmcnt(0)
    s_barrier""")
    if warm & 4: A("@end")
    A("L_sdone:")
    g.stamp(6)
    g.stamp_flush()
    A("s_endpgm")

    A("L_aux2:")
    g.stamp(6)
    A(f"""s_mul_i32 s96, s95, 15
    s_add_u32 s96, s96, s101
    s_sub_u32 s69, s101, 15
    s_sub_u32 s70, s101, 24
    s_cmp_ge_u32 s101, 30
    s_cselect_b32 s69, s70, s69
    s_cselect_b32 s48, 0, s69
    s_lshl_b32 s70, s95, 3
    s_add_u32 s70, s70, s69
    s_add_u32 s70, s70, 120
    s_cmp_lt_u32 s48, 6
    s_cselect_b32 s70, s70, 255
    s_cmp_lt_u32 s101, 15
    s_cselect_b32 s96, s96, s70
    s_mul_i32 s59, s95, 10
    s_sub_u32 s69, s101, 21
    s_add_u32 s59, s59, s69
    s_cmp_lt_u32 s69, 10
    s_cselect_b32 s59, s59, 255
    s_lshl_b32 s68, s66, 3
    s_lshl_b32 s47, s67, 2
    s_add_u32 s68, s68, s47
    s_add_u32 s68, s68, s49
    s_lshl_b32 s68, s68, 10
    s_add_u32 s68, s68, {WS_O}
    s_add_u32 s98, s101, 17
    s_and_b32 s98, s98, 31
    s_cmp_ge_u32 s98, 30
    s_cselect_b32 s83, 1, 0
    s_mul_i32 s74, s95, 30
    s_add_u32 s74, s74, s98
    s_lshl_b32 s74, s74, 10
    s_add_u32 s74, s74, {WS_Y}
    s_lshl_b32 s47, s96, 10
    s_add_u32 s75, s47, {WS_G}
    s_add_u32 s48, s47, {WS_Y + 120*1024}
    s_cmp_lt_u32 s96, 120
    s_cselect_b32 s75, s75, s48
    s_mul_i32 s69, s96, 205
    s_lshr_b32 s69, s69, 10
    s_mul_i32 s70, s69, 5
    s_sub_u32 s70, s96, s70
    s_mov_b32 s63, 0
    s_cmp_lt_u32 s96, 120
    s_cbranch_scc1 L_gtask
    s_cmp_lt_u32 s96, 180
    s_cbranch_scc0 L_ffn_done""")
    A(f"""s_sub_u32 s76, s69, 24
    s_mul_i32 s47, s76, 10240
    s_add_u32 s47, s47, {WS_G + 4096}
    v_lshl_add_u32 v{T0}, v1, 4, s47
    v_add_u32 v{T1}, 5120, v{T0}
    L_pollG:
    s_sleep {lsleep}""")
    for j in range(5):
        A(f"global_load_dwordx4 v[{W+4*j}:{W+4*j+3}], v{T0}, s[26:27] offset:{j*1024-4096} sc1")
    for j in range(5):
        A(f"global_load_dwordx4 v[{W+20+4*j}:{W+20+4*j+3}], v{T1}, s[26:27] offset:{j*1024-4096} sc1")
    A("s_waitcnt vmcnt(0)")
    g.tagcheck(list(range(W, W + 40)), T2)
    A("s_cbranch_vccz L_gotG")
    g.spin("L_pollG", lsleep)
    A("L_gotG:")
    for f in range(2):
        for j in range(1, 5):
            for e in range(4):
                A(f"v_add_f32 v{W+20*f+e}, v{W+20*f+e}, v{W+20*f+4*j+e}")
    S0_, S1_ = W, W + 20
    GG, UU = W + 4, W + 8
    for e in range(4):
        A(f"v_mov_b32 v{GG+e}, v{S0_+e}\nv_mov_b32 v{UU+e}, v{S1_+e}")
    A("s_nop 1")
    for e in range(4):
        A(f"v_mov_b32_dpp v{GG+e}, v{S1_+e} row_ror:8 row_mask:0xf bank_mask:0xc")
        A(f"v_mov_b32_dpp v{UU+e}, v{S0_+e} row_ror:8 row_mask:0xf bank_mask:0x3")
    for e in range(4):
        gg, uu = GG + e, UU + e
        g.rbf(gg); g.rbf(uu)
        A(f"""v_mul_f32 v{T2}, v{gg}, v{gg}
        v_mul_f32 v{T2}, v{T2}, v{gg}
        v_mov_b32 v{T3}, v{gg}
        v_fmac_f32 v{T3}, 0x3d372713, v{T2}
        v_mul_f32 v{T3}, 0xc0135761, v{T3}
        v_exp_f32 v{T3}, v{T3}
        s_nop 0
        v_add_f32 v{T3}, 1.0, v{T3}
        v_rcp_f32 v{T3}, v{T3}
        s_nop 0
        v_mul_f32 v{gg}, v{gg}, v{T3}""")
        g.rbf(gg)
        A(f"v_mul_f32 v{gg}, v{gg}, v{uu}")
    A(f"""v_cvt_pk_bf16_f32 v{GG}, v{GG}, v{GG+1}
    v_cvt_pk_bf16_f32 v{GG+1}, v{GG+2}, v{GG+3}""")

    def wr_h():
        A(f"""v_and_b32 v{T1}, 15, v1
        v_lshlrev_b32 v{T1}, 4, v{T1}
        v_and_b32 v{T2}, 32, v1
        v_lshl_add_u32 v{T1}, v{T2}, 3, v{T1}
        v_bfe_u32 v{T2}, v1, 4, 1
        v_lshl_add_u32 v{T1}, v{T2}, 3, v{T1}
        ds_write_b64 v{T1}, v[{GG}:{GG+1}] offset:{L_X}""")

    xbuf_roundtrip(wr_h)
    A(f"""v_lshrrev_b32 v{T0}, 4, v1
    v_mul_u32_u24 v2, 40960, v{T0}
    v_and_b32 v{T1}, 15, v1
    v_lshl_add_u32 v2, v{T1}, 4, v2
    s_mul_i32 s47, s76, 163840
    s_lshl_b32 s48, s70, 8
    s_add_u32 s47, s47, s48
    v_add_u32 v2, s47, v2
    v_mov_b32 v3, 0
    s_mov_b32 s62, 1280
    v_lshl_add_u64 v[2:3], v[2:3], 0, s[20:21]""")
    nat_off(T2, T1)
    A(f"""v_add_u32 v{T2}, s75, v{T2}
    s_waitcnt lgkmcnt(0)
    s_branch L_tile2
    L_gtask:
    v_lshrrev_b32 v{T0}, 4, v1
    v_mul_u32_u24 v2, 98304, v{T0}
    v_and_b32 v{T1}, 7, v1
    v_lshl_add_u32 v2, v{T1}, 4, v2
    s_mul_i32 s47, s70, 393216
    s_lshl_b32 s48, s69, 7
    s_add_u32 s47, s47, s48
    v_add_u32 v2, s47, v2
    v_mov_b32 v3, 0
    s_mov_b32 s62, 3072
    v_and_b32 v{T1}, 8, v1
    v_cmp_eq_u32 vcc, 0, v{T1}
    v_mov_b32 v{T0}, s18
    v_mov_b32 v{T1}, s19
    v_mov_b32 v{T2}, s16
    v_mov_b32 v{T3}, s17
    v_cndmask_b32 v{T0}, v{T0}, v{T2}, vcc
    v_cndmask_b32 v{T1}, v{T1}, v{T3}, vcc
    v_lshl_add_u64 v[2:3], v[2:3], 0, v[{T0}:{T1}]
    v_lshl_add_u32 v{T2}, v1, 4, s75
    L_tile2:""")
    def t2_issue(i):
        A(f"global_load_dwordx4 v[{W+4*i}:{W+4*i+3}], v[2:3], off{P}")
        if i < 31:
            A("v_lshl_add_u64 v[2:3], v[2:3], 0, s[62:63]")
    for i in range(fw): t2_issue(i)
    tile_compute(fw, t2_issue)
    A(f"v_mov_b32 v{T1}, {TAGM}\ns_nop 7")
    g.tagput(range(DD, DD + 4), T1)
    A(f"""global_store_dwordx4 v{T2}, v[{DD}:{DD+3}], s[26:27] sc1
    L_ffn_done:""")
    g.stamp(7)
    GV, XO, YA = 8, 12, 16
    A(f"""s_cmp_ge_u32 s59, 80
    s_cbranch_scc1 L_c_done
    s_cmp_ge_u32 s59, 40
    s_cselect_b32 s78, 1, 0
    s_mul_i32 s47, s78, 40
    s_sub_u32 s77, s59, s47
    s_lshr_b32 s47, s77, 3
    s_lshl_b32 s47, s47, 10
    s_and_b32 s48, s77, 7
    s_lshl_b32 s48, s48, 6
    s_add_u32 s47, s47, s48
    s_lshl_b32 s48, s78, 9
    s_add_u32 s47, s47, s48
    s_add_u32 s47, s47, {WS_Y}
    v_lshrrev_b32 v{T0}, 2, v1
    v_mul_u32_u24 v{T0}, 5120, v{T0}
    v_and_b32 v{T1}, 3, v1
    v_lshl_add_u32 v{T0}, v{T1}, 4, v{T0}
    v_add_u32 v{YA}, s47, v{T0}
    v_add_u32 v{YA+1}, 81920, v{YA}
    v_add_u32 v{YA+2}, 81920, v{YA+1}
    v_add_u32 v{T0}, 81920, v{YA+2}
    s_mul_i32 s47, s78, 1280
    s_lshl_b32 s48, s77, 5
    s_add_u32 s47, s47, s48
    v_lshl_add_u32 v{YA+3}, v{T1}, 3, s47
    v_bfe_u32 v{T1}, v1, 4, 1
    v_lshl_add_u32 v{YA+3}, v{T1}, 2, v{YA+3}
    v_lshrrev_b32 v{T1}, 5, v1
    v_lshl_add_u32 v{YA+3}, v{T1}, 1, v{YA+3}
    global_load_ushort v{XO}, v{YA+3}, s[4:5]
    v_mov_b32 v{GV}, 0
    v_mov_b32 v{GV+1}, 0
    v_mov_b32 v{GV+2}, 0
    v_mov_b32 v{GV+3}, 0
    s_bfm_b64 exec, 48, 0
    L_pollF:
    s_sleep {2*lsleep}
    global_load_dwordx4 v[{GV}:{GV+3}], v{T0}, s[26:27] sc1
    s_waitcnt vmcnt(0)""")
    g.tagcheck(list(range(GV, GV + 4)), T2)
    A("s_cbranch_vccz L_gotF")
    g.spin("L_pollF", lsleep)
    A("L_gotF:\ns_mov_b64 exec, -1\ns_nop 1")

    def red16(base):
        A(f"""v_permlane32_swap_b32 v{base}, v{base+1}
        v_permlane32_swap_b32 v{base+2}, v{base+3}
        s_nop 0
        v_add_f32 v{base}, v{base}, v{base+1}
        v_add_f32 v{base+2}, v{base+2}, v{base+3}
        s_nop 1
        v_permlane16_swap_b32 v{base}, v{base+2}
        s_nop 0
        v_add_f32 v{base}, v{base}, v{base+2}
        s_nop 1""")
        g.dpp("v_add_f32", base, base, base, "row_ror:4")
        A("s_nop 1")
        g.dpp("v_add_f32", base, base, base, "row_ror:8")

    red16(GV)
    A(f"v_lshlrev_b32 v{XO}, 16, v{XO}")
    g.rbf(GV)
    A(f"""v_mul_f32 v{T3}, 0xbfb8aa3b, v{GV}
    v_exp_f32 v{T3}, v{T3}
    s_nop 0
    v_add_f32 v{T3}, 1.0, v{T3}
    v_rcp_f32 v{T3}, v{T3}
    s_nop 0
    v_mul_f32 v{GV}, v{GV}, v{T3}""")
    g.rbf(GV)
    A("L_c_done:")
    g.stamp(8)
    MA = 20
    A(f"""v_lshrrev_b32 v{MA}, 4, v1
    v_lshlrev_b32 v{MA}, 10, v{MA}
    v_bfe_u32 v{T0}, v1, 1, 3
    v_lshl_add_u32 v{MA}, v{T0}, 4, v{MA}
    v_and_b32 v{T0}, 1, v1
    v_lshl_add_u32 v{MA}, v{T0}, 8, v{MA}
    v_mov_b32 v{MA+1}, 0
    v_lshl_add_u32 v{MA+2}, v1, 4, s68
    v_mov_b32 v{MA+3}, {TAGM}
    v_cmp_eq_u32 s[50:51], 48, v1""")
    nat_off(2, T1)
    A(f"""v_add_u32 v2, s74, v2
    v_lshlrev_b32 v{DD}, 4, v1""")
    if sready:
        A(f"""s_lshl_b32 s47, s66, 5
        s_lshl_b32 s48, s67, 2
        s_add_u32 s47, s47, s48
        s_add_u32 s47, s47, s49
        s_lshl_b32 s47, s47, 2
        s_add_u32 s47, s47, {WS_R}
        v_mov_b32 v3, s47
        v_mov_b32 v{T3}, s82""")
    if deep:
        A(f"""s_lshl_b32 s47, s95, 7
        s_add_u32 s47, s47, {WS_D}
        v_lshl_add_u32 v{T0}, v1, 2, s47
        s_lshl_b32 s48, s101, 2
        s_add_u32 s47, s47, s48
        v_mov_b32 v3, s47
        s_bfm_b64 exec, 32, 0
        L_pollD:
        s_sleep {dsleep}
        global_load_dword v{T1}, v{T0}, s[26:27] sc1
        ds_read_b32 v{T2}, v{MA+1} offset:{L_DONE}
        s_waitcnt vmcnt(0) lgkmcnt(0)
        v_cmp_ne_u32 vcc, 0, v{T2}
        s_cbranch_vccnz L_gotD
        v_cmp_eq_u32 vcc, s82, v{T1}
        s_bcnt1_i32_b64 s47, vcc
        s_cmp_ge_u32 s47, {ndone}
        s_cbranch_scc1 L_setD""")
        g.spin("L_pollD", 0)
        A(f"""L_setD:
        v_mov_b32 v{T1}, 1
        ds_write_b32 v{MA+1}, v{T1} offset:{L_FLAG}
        L_gotD:
        s_mov_b64 exec, -1
        v_mov_b32 v{T3}, s82""")
    if warm & 8: A("s_mov_b64 exec, 0\ns_branch WT_0\nL_wt_ret:\ns_mov_b64 exec, -1\ns_branch L_wt_go\n@chain WT 1 L_wt_ret\nL_wt_go:")
    A(f"""s_barrier
    ds_read_b128 v[{AX0}:{AX0+3}], v{MA+1} offset:{L_ST}
    ds_read_b128 v[{AX1}:{AX1+3}], v{MA+1} offset:{L_ST+16}""")
    g.stamp(9)
    for w in range(4):
        A(f"ds_read_b128 v[{W+8*w}:{W+8*w+3}], v{MA} offset:{L_ACC+3072*w}")
        A(f"ds_read_b128 v[{W+8*w+4}:{W+8*w+7}], v{MA} offset:{L_ACC+3072*w+640}")
    ms = [AX0, AX0 + 2, AX1, AX1 + 2]
    OD = W + 32
    A(f"""s_waitcnt lgkmcnt(8)
    v_max_f32 v{T0}, v{ms[0]}, v{ms[1]}
    v_max3_f32 v{T0}, v{T0}, v{ms[2]}, v{ms[3]}
    v_and_b32 v{T0}, s81, v{T0}""")
    for w in range(4):
        A(f"v_sub_f32 v{ms[w]}, v{ms[w]}, v{T0}")
    for w in range(4):
        A(f"v_exp_f32 v{ms[w]}, v{ms[w]}")
    A(f"s_nop 0\nv_mul_f32 v{T1}, v{ms[0]}, v{ms[0]+1}")
    for w in range(1, 4):
        A(f"v_fmac_f32 v{T1}, v{ms[w]}, v{ms[w]+1}")
    for w in range(4):
        A(f"s_waitcnt lgkmcnt({6-2*w})")
        for e in range(4):
            A(f"v_add_f32 v{W+8*w+e}, v{W+8*w+e}, v{W+8*w+4+e}")
        for e in range(4):
            if w == 0:
                A(f"v_mul_f32 v{OD+e}, v{ms[0]}, v{W+e}")
            else:
                A(f"v_fmac_f32 v{OD+e}, v{ms[w]}, v{W+8*w+e}")
    A(f"""v_cndmask_b32 v{OD}, v{OD}, v{T0}, s[50:51]
    v_cndmask_b32 v{OD+1}, v{OD+1}, v{T1}, s[50:51]""")
    g.tagput(range(OD, OD + 4), MA + 3)
    A(f"""s_bfm_b64 exec, 49, 0
    global_store_dwordx4 v{MA+2}, v[{OD}:{OD+3}], s[26:27]{'' if dual else ' sc1'}""")
    if sready: A(f"s_mov_b64 exec, 1\nglobal_store_dword v3, v{T3}, s[26:27]\ns_bfm_b64 exec, 49, 0")
    if dual: A(f"global_store_dwordx4 v{MA+2}, v[{OD}:{OD+3}], s[90:91] sc1")
    A("s_mov_b64 exec, -1")
    g.stamp(10)
    A(f"""s_cmp_lg_u32 s83, 0
    s_cbranch_scc1 L_noy
    s_barrier""")
    for w in range(4):
        A(f"ds_read_b128 v[{W+4*w}:{W+4*w+3}], v{DD} offset:{L_YP+1024*w}")
    for w in range(1, 4):
        A(f"s_waitcnt lgkmcnt({3-w})")
        for e in range(4):
            A(f"v_add_f32 v{W+e}, v{W+e}, v{W+4*w+e}")
    g.tagput(range(W, W + 4), MA + 3)
    A(f"""global_store_dwordx4 v2, v[{W}:{W+3}], s[26:27] sc1
    L_noy:""")
    g.stamp(11)
    A(f"""s_cmp_ge_u32 s59, 80
    s_cbranch_scc1 L_adone""")
    YS = [W + 16 + 12 * j for j in range(ysets)]

    def yissue(j):
        for k in range(3):
            A(f"global_load_dwordx4 v[{YS[j]+4*k}:{YS[j]+4*k+3}], v{YA+k}, s[26:27] sc1")
    if ymiss < 64:
        A("L_pollY1:")
        yissue(0)
        A("s_waitcnt vmcnt(0)")
        g.tagcheck(list(range(YS[0], YS[0] + 12)), T2)
        A(f"""s_cbranch_vccz L_gotY0
        s_bcnt1_i32_b64 s47, vcc
        s_cmp_le_u32 s47, {ymiss}
        s_cbranch_scc1 L_pollY2""")
        g.spin("L_pollY1", ysleep)
        A("L_pollY2:")
    for j in range(ysets - 1):
        yissue(j)
        A(f"s_sleep {ystag}")
    A("L_pollY:")
    for j in range(ysets):
        yissue((j + ysets - 1) % ysets)
        A(f"s_waitcnt vmcnt({3*(ysets-1)})")
        g.tagcheck(list(range(YS[j], YS[j] + 12)), T2)
        A(f"s_cbranch_vccz L_gotY{j}")
    g.spin("L_pollY", sleep if ysets == 1 else 0)
    Y0 = YS[0]
    for j in range(ysets - 1, -1, -1):
        A(f"L_gotY{j}:")
        for e in range(4):
            A(f"v_add_f32 v{T0+e}, v{YS[j]+e}, v{YS[j]+4+e}")
        for e in range(4):
            A(f"v_add_f32 v{T0+e}, v{T0+e}, v{YS[j]+8+e}")
        if j > 0: A("s_branch L_gotY")
    A("L_gotY:")
    g.stamp(12)
    A("s_nop 1")
    red16(T0)
    g.rbf(T0)
    A(f"v_mul_f32 v{T0}, v{T0}, v{GV}")
    g.rbf(T0)
    A(f"""v_add_f32 v{T0}, v{T0}, v{XO}
    s_mov_b32 exec_lo, 0x000f000f
    s_mov_b32 exec_hi, 0x000f000f
    v_cvt_pk_bf16_f32 v{T0}, v{T0}, v{T0}
    global_store_short v{YA+3}, v{T0}, s[22:23]
    s_cmp_lg_u32 s59, 79
    s_cbranch_scc1 L_adone
    s_mov_b64 exec, 1
    v_mov_b32 v{T2}, {WS_E}
    v_mov_b32 v{T1}, s82
    global_store_dword v{T2}, v{T1}, s[26:27]{' sc1' if dbg else ''}
    L_adone:
    s_mov_b64 exec, -1""")
    if warm & 8: A("@end")
    g.stamp(13)
    g.stamp_flush(True)
    A("L_end:\ns_endpgm")
    if cpf:
        A(f".fill (16384 - (. - {KN}))/4, 4, 0xbf810000")

    g.L = [x for x in insert_pads(g.L, space) if x.strip() not in ("@nopad", "@pad")]
    nv = 176 if stamps else 168
    out = [HDR + f"; @launch grid=(256,1,1) block=(320,1,1) lds={LDS_BYTES}",
           '.amdgcn_target "amdgcn-amd-amdhsa--gfx950"', ".text", f".globl {KN}", ".p2align 8",
           f".type {KN},@function", f"{KN}:"] + g.L + [
        '.section .rodata,"a"', ".p2align 6", f".amdhsa_kernel {KN}",
        f"  .amdhsa_next_free_vgpr {nv}", "  .amdhsa_next_free_sgpr 102", f"  .amdhsa_accum_offset {nv}",
        "  .amdhsa_group_segment_fixed_size 0", "  .amdhsa_kernarg_size 96", "  .amdhsa_user_sgpr_count 2",
        "  .amdhsa_user_sgpr_kernarg_segment_ptr 1", "  .amdhsa_system_sgpr_workgroup_id_x 1",
        "  .amdhsa_float_denorm_mode_32 3", ".end_amdhsa_kernel"]
    return "\n".join(out) + "\n"


if __name__ == "__main__":
    kw = {}
    for kv in sys.argv[2:]:
        k, v = kv.split("=")
        kw[k] = int(v) if v.lstrip("-").isdigit() else v.replace("+", " ")
    open(sys.argv[1], "w").write(gen(**kw))
```

```python
import sys
KN = "recurrent_scan__gqa_block_cached__geglu_ffn__decode_kernel"

HDR = """; Kernarg layout for this problem (96 bytes, ptrs only, base s[0:1]):
;
"""

WS_Q = 0x00000
WS_E = 0x3F000
WS_O = 0x40000
WS_Y = 0x80000
WS_G = 0x100000
WS_D = 0x140000
WS_R = 0x141000
WS_B = 0x180000
WS_STAMP = 0x200000
TAGM = 0x1ff
TAGS = [80, 0, 1, 14]
L_X = 0
L_Q = 512
L_FLAG = 896
L_DONE = 900
L_ST = 960
L_YP = 1024
L_ACC = 5120
L_WO = 5120 + 12288 + 2048
LDS_BYTES = 5120 + 12288 + 2048

LOG2E = 0x3FB8AA3B
SCALE = 0x3D93CD3A


class G:
    def __init__(self, stamps, dbg):
        self.L = []
        self.stamps = stamps
        self.dbg = dbg
        self.nlab = 0

    def A(self, s):
        for x in s.split("\n"):
            x = x.strip()
            if x:
                self.L.append("    " + x if not x.endswith(":") else x)

    def lab(self, p="L"):
        self.nlab += 1
        return f"{p}_{self.nlab}"

    def stamp(self, idx):
        if not self.stamps:
            return
        self.A(f"""s_memrealtime s[60:61]
        s_waitcnt lgkmcnt(0)
        v_writelane_b32 v168, s60, {idx}""")

    def stamp_flush(self, aux=False):
        if not self.stamps:
            return
        if self.dbg:
            sel = ([(2, 1, 0), (3, 3, 0), (6, 8, 0), (7, 9, 0), (8, 9, 1), (9, 10, 0), (11, 11, 0), (12, 12, 0), (13, 13, 0), (14, 2, 0)] if aux
                   else [(0, 0, 1), (1, 0, 0), (4, 2, 0), (5, 2, 1), (10, 5, 0), (15, 1, 0)])
            self.A("s_mov_b64 exec, 1")
            lw = self.lab("L_dw"); lo = self.lab("L_dwo")
            self.A(f"""v_mov_b32 v170, {WS_E}
            s_mov_b32 s58, 20000
            {lw}:
            s_sleep 64
            global_load_dword v169, v170, s[26:27] sc1
            s_waitcnt vmcnt(0)
            v_and_b32 v169, {TAGM}, v169
            v_cmp_eq_u32 vcc, s80, v169
            s_cbranch_vccnz {lo}
            s_sub_u32 s58, s58, 1
            s_cmp_gt_i32 s58, 0
            s_cbranch_scc1 {lw}
            {lo}:
            s_sleep 64""")
            for slot, idx, inv in sel:
                l = self.lab("L_dbg")
                self.A(f"v_readlane_b32 s47, v168, {idx}\ns_nop 3\ns_cmp_eq_u32 s47, 0\ns_cbranch_scc1 {l}")
                if inv: self.A("s_not_b32 s47, s47")
                self.A(f"v_mov_b32 v169, s47\nv_mov_b32 v170, {slot*4}\nglobal_atomic_umax v170, v169, s[24:25]\n{l}:")
            self.A("s_mov_b64 exec, -1")
            return
        self.A(f"""s_getreg_b32 s47, hwreg(HW_REG_HW_ID)
        s_getreg_b32 s48, hwreg(HW_REG_XCC_ID)
        s_lshl_b32 s48, s48, 24
        s_and_b32 s47, s47, 0xffffff
        s_or_b32 s47, s47, s48
        s_or_b32 s47, s47, 0x80000000
        v_writelane_b32 v168, s47, 15
        s_mul_i32 s47, s2, 5
        s_add_u32 s47, s47, s79
        s_lshl_b32 s47, s47, 8
        s_add_u32 s47, s47, {WS_STAMP}
        v_lshl_add_u32 v169, v1, 2, s47
        global_store_dword v169, v168, s[26:27]""")

    def spin(self, back, sleep):
        if sleep: self.A(f"s_sleep {sleep}")
        self.A(f"""s_sub_u32 s58, s58, 1
        s_cmp_gt_i32 s58, 0
        s_cbranch_scc1 {back}""")

    def pick(self, mask):
        self.A(f"""s_and_b32 s47, s58, {mask}
        s_cmp_eq_u32 s47, 0
        s_cselect_b64 s[92:93], s[90:91], s[26:27]""")

    def allred_16_32(self, op, v, t):
        self.A(f"""v_mov_b32 v{t}, v{v}
        s_nop 1
        v_permlane16_swap_b32 v{v}, v{t}
        s_nop 0
        {op} v{v}, v{v}, v{t}
        v_mov_b32 v{t}, v{v}
        s_nop 1
        v_permlane32_swap_b32 v{v}, v{t}
        s_nop 0
        {op} v{v}, v{v}, v{t}""")

    def dpp(self, op, d, a, b, ctl, bank="0xf"):
        self.A(f"{op}_dpp v{d}, v{a}, v{b} {ctl} row_mask:0xf bank_mask:{bank}")

    def tagcheck(self, regs, t):
        for j, r in enumerate(regs):
            self.A(f"v_xor_b32 v{r}, s{TAGS[j & 3]}, v{r}")
        self.A(f"v_or_b32 v{t}, v{regs[0]}, v{regs[1]}")
        for j in range(2, len(regs), 2):
            self.A(f"v_or3_b32 v{t}, v{t}, v{regs[j]}, v{regs[j+1]}")
        self.A(f"v_and_b32 v{t}, {TAGM}, v{t}\nv_cmp_ne_u32 vcc, 0, v{t}")

    def tagput(self, regs, tg):
        for r in regs:
            self.A(f"v_add_u32 v{r}, {(TAGM+1)//2}, v{r}")
        for j, r in enumerate(regs):
            self.A(f"v_bfi_b32 v{r}, v{tg}, s{TAGS[j & 3]}, v{r}")

    def rbf(self, v):
        self.A(f"""v_cvt_pk_bf16_f32 v{v}, v{v}, v{v}
        v_and_b32 v{v}, 0xffff0000, v{v}""")

    def masks(self, M, t0, t1):
        self.A(f"""v_and_b32 v{t0}, 1, v1
        v_lshlrev_b32 v{t0}, 4, v{t0}
        v_mov_b32 v{t1}, 0xffff
        v_lshlrev_b32 v{t0}, v{t0}, v{t1}
        v_bfe_u32 v{t1}, v1, 1, 2
        v_cmp_eq_u32 s[50:51], 0, v{t1}
        v_cmp_eq_u32 s[52:53], 1, v{t1}
        v_cmp_eq_u32 s[54:55], 2, v{t1}
        v_cmp_eq_u32 s[56:57], 3, v{t1}
        s_nop 0
        v_cndmask_b32 v{M}, 0, v{t0}, s[50:51]
        v_cndmask_b32 v{M+1}, 0, v{t0}, s[52:53]
        v_cndmask_b32 v{M+2}, 0, v{t0}, s[54:55]
        v_cndmask_b32 v{M+3}, 0, v{t0}, s[56:57]""")


def isize(line):
    t = line.strip()
    if not t or t.endswith(":") or t.startswith((";", "@", ".")):
        return 0
    op = t.split()[0]
    if op.startswith(("buffer_", "global_", "ds_", "s_load", "s_memrealtime", "s_memtime", "v_mfma", "v_perm_b32", "v_cvt_pk", "v_lshl_add", "v_and_or",
                      "v_or3", "v_bfi", "v_max3", "v_fma_", "v_bfe", "v_writelane", "v_readlane", "v_add3")) or "_dpp" in op:
        return 8
    if op.startswith(("v_cmp", "v_cndmask")) and "s[" in t:
        return 8
    import re
    args = t[len(op):]
    for m in re.finditer(r"(?<![\w\[:])(-?0x[0-9a-fA-F]+|-?\d+)(?![\w\]:.])", args):
        v = int(m.group(1), 0)
        if not (-16 <= v <= 64) and not op.startswith(("s_waitcnt", "s_nop", "s_sleep", "s_setprio")):
            return 8
    return 4


def insert_pads(L, space):
    out = []
    i = 0
    while i < len(L):
        t = L[i].strip()
        if not t.startswith("@chain"):
            out.append(L[i]); i += 1; continue
        _, name, n, ret = t.split(); n = int(n)
        j = i + 1
        body = []
        while L[j].strip() != "@end":
            body.append(L[j]); j += 1
        pos = []; acc = space; ok = True
        for k, ln in enumerate(body):
            tt = ln.strip()
            if tt == "@nopad":
                if ok and acc > 64: pos.append(k); acc = 0
                ok = False
                continue
            if tt == "@pad":
                ok = True
                continue
            sz = isize(ln)
            if ok and sz and acc + sz > space:
                pos.append(k); acc = 0
            acc += sz
        per = -(-len(pos) // n)
        lab = {}
        for q, k in enumerate(pos):
            c = q // per
            first = q % per == 0
            last = q % per == per - 1 or q == len(pos) - 1
            me = f"{name}_{c}" if first else f"{name}_p{q}"
            nxt = ret if last else f"{name}_p{q+1}"
            lab[k] = [f"{me}:", f"    s_cbranch_execz {nxt}"]
        extra = [f"{name}_{c}:" for c in range((len(pos) - 1) // per + 1, n)]
        if extra: lab[pos[-1]] = extra + lab[pos[-1]]
        for k, ln in enumerate(body):
            if k in lab: out += lab[k]
            if ln.strip() not in ("@nopad", "@pad"): out.append(ln)
        i = j + 1
    return out


def gen(tb=9, stamps=0, pol="nt", sleep=1, lsleep=16, prio=3, pace=3, pre=0, ph=97, deep=0, ndone=6, dsleep=16,
        th=999, dbg=0, cpf=0, dual=1, fill4=1, wolate=2, warm=14, space=192, fw=8, ysets=3, ystag=5, rbd=0, nq=32, rd=0, sready=0, ymiss=64, ysleep=12, touch=0, wprio=1, aprio=0, ww=8, osets=1, ostag=2, wn=6):
    global TAGM
    TAGM = (1 << tb) - 1
    g = G(stamps, dbg)
    A = g.A
    P = (" " + pol) if pol else ""
    M = 4
    A(f"""s_cmp_ge_u32 s2, 256
    s_cbranch_scc1 L_end
    s_load_dwordx16 s[4:19], s[0:1], 0
    s_load_dwordx8 s[20:27], s[0:1], 64
    v_lshrrev_b32 v2, 6, v0
    v_and_b32 v1, 63, v0
    v_readfirstlane_b32 s3, v2""")
    if stamps:
        A("v_mov_b32 v168, 0\ns_memrealtime s[60:61]\ns_mov_b32 s79, s3")
    A("""s_lshr_b32 s101, s2, 3
    s_and_b32 s95, s2, 7
    s_and_b32 s66, s101, 3
    s_lshl_b32 s47, s95, 2
    s_add_u32 s66, s66, s47
    s_bfe_u32 s67, s101, 0x10002
    s_lshr_b32 s49, s101, 3
    s_mul_i32 s96, s95, 30
    s_cmp_lg_u32 s3, 0
    s_cbranch_scc1 L_stream""")

    XP = 8; AX0 = 24; AX1 = 28; W = 32; DD = 160; T0, T1, T2, T3 = 164, 165, 166, 167
    A(f"""s_setprio {prio}
    s_add_u32 s97, s96, s101
    s_mul_i32 s69, s97, 205
    s_lshr_b32 s69, s69, 10
    s_mul_i32 s70, s69, 5
    s_sub_u32 s70, s97, s70
    v_lshrrev_b32 v{T0}, 4, v1
    v_and_b32 v{T1}, 7, v1
    v_bfe_u32 v{T2}, v1, 3, 1
    v_mul_u32_u24 v{T2}, 1280, v{T2}
    v_lshl_add_u32 v{T3}, v{T0}, 3, v{T1}
    v_lshl_add_u32 v{DD}, v{T3}, 4, v{T2}
    v_lshl_add_u32 v{DD+1}, v{T3}, 3, v{T2}
    s_lshl_b32 s47, s70, 8
    v_add_u32 v{DD+1}, s47, v{DD+1}
    v_mul_u32_u24 v2, 393216, v{T0}
    v_and_b32 v{T1}, 15, v1
    v_lshl_add_u32 v2, v{T1}, 4, v2
    s_mul_i32 s62, s70, 1572864
    s_lshl_b32 s48, s69, 8
    s_add_u32 s62, s62, s48
    v_mov_b32 v{XP+8}, 0
    v_mov_b32 v{XP+9}, 0
    v_mov_b32 v{XP+10}, 0
    v_mov_b32 v{XP+11}, 0
    s_mov_b32 s38, 7864320
    s_mov_b32 s39, 0x20000""")
    if warm & 1: A("s_mov_b64 exec, 0\ns_branch WI_0\nL_wi_ret:\ns_mov_b64 exec, -1")
    A("s_waitcnt lgkmcnt(0)")
    if stamps:
        A("v_writelane_b32 v168, s60, 0")
    A(f"""s_mov_b32 s36, s10
    s_mov_b32 s37, s11
    global_load_dwordx4 v[{XP}:{XP+3}], v{DD}, s[4:5]
    global_load_dwordx4 v[{XP+4}:{XP+7}], v{DD}, s[4:5] offset:512
    global_load_dwordx2 v[{XP+12}:{XP+13}], v{DD+1}, s[4:5]
    s_bfm_b64 exec, 32, 0
    global_load_dwordx4 v[{XP+8}:{XP+11}], v{DD}, s[4:5] offset:1024
    s_mov_b64 exec, -1
    s_load_dword s80, s[26:27], {WS_E}
    s_cmp_ge_u32 s101, 30
    s_cbranch_scc1 L_noq1""")
    if warm & 1: A("@chain WI 1 L_wi_ret")
    for i in range(32):
        A(f"buffer_load_dwordx4 v[{W+4*i}:{W+4*i+3}], v2, s[36:39], s62 offen{P}")
        if i < 31:
            A("s_add_u32 s62, s62, 12288")
    if warm & 1: A("@end")
    A(f"""L_noq1:
    s_barrier""")
    if warm & 2: A("@chain WA 4 L_wa_ret")
    g.stamp(1)
    g.masks(M, T0, T1)
    A(f"""s_mov_b32 s81, {(~TAGM) & 0xffffffff}
    s_mov_b32 s64, 0x01000100
    s_mov_b32 s65, 0x03020302
    s_mov_b32 s58, 399999
    s_add_u32 s90, s26, {WS_B}
    s_addc_u32 s91, s27, 0
    v_mov_b32 v{T0}, 0
    v_mov_b32 v{T1}, 0
    ds_write_b64 v{T0}, v[{T0}:{T1}] offset:{L_FLAG}
    s_waitcnt lgkmcnt(0)
    s_add_u32 s82, s80, 1
    s_and_b32 s80, s82, {TAGM}
    s_add_u32 s0, s82, 173
    s_and_b32 s0, s0, {TAGM}
    s_add_u32 s1, s82, 346
    s_and_b32 s1, s1, {TAGM}
    s_add_u32 s14, s82, 519
    s_and_b32 s14, s14, {TAGM}
    s_mov_b32 s84, 1
    s_cmp_ge_u32 s101, 30
    s_cbranch_scc1 L_qgather""")
    SUM, VAR, MEAN = T0, T1, T2
    A(f"""s_mov_b32 s47, 0x3f803f80
    s_waitcnt vmcnt(32)""")
    for r in range(12):
        A(f"v_dot2c_f32_bf16 v{SUM}, s47, v{XP+r}")
    A("s_nop 2")

    def allred_stats(v, t):
        for ctl in ["quad_perm:[1,0,3,2]", "quad_perm:[2,3,0,1]", "row_half_mirror"]:
            g.dpp("v_add_f32", v, v, v, ctl)
            A("s_nop 1")
        g.allred_16_32("v_add_f32", v, t)

    allred_stats(SUM, T3)
    A(f"v_mul_f32 v{MEAN}, 0x3acccccd, v{SUM}")
    for r in range(12):
        if r == 8:
            A("s_bfm_b64 exec, 32, 0")
        A(f"""v_lshlrev_b32 v{AX1}, 16, v{XP+r}
        v_and_b32 v{AX1+1}, 0xffff0000, v{XP+r}
        v_sub_f32 v{AX1}, v{AX1}, v{MEAN}
        v_sub_f32 v{AX1+1}, v{AX1+1}, v{MEAN}
        v_fmac_f32 v{VAR}, v{AX1}, v{AX1}
        v_fmac_f32 v{VAR}, v{AX1+1}, v{AX1+1}""")
    A("s_mov_b64 exec, -1\ns_nop 1")
    allred_stats(VAR, T3)
    A(f"v_mul_f32 v{VAR}, 0x3acccccd, v{VAR}")
    g.rbf(VAR)
    g.rbf(MEAN)
    A(f"v_add_f32 v{VAR}, 0x3727c5ac, v{VAR}")
    g.rbf(VAR)
    A(f"v_sqrt_f32 v{VAR}, v{VAR}\ns_nop 0")
    g.rbf(VAR)
    A(f"v_rcp_f32 v{VAR}, v{VAR}")
    for k in range(2):
        r = XP + 12 + k
        A(f"""v_lshlrev_b32 v{AX1}, 16, v{r}
        v_and_b32 v{AX1+1}, 0xffff0000, v{r}
        v_sub_f32 v{AX1}, v{AX1}, v{MEAN}
        v_sub_f32 v{AX1+1}, v{AX1+1}, v{MEAN}
        v_cvt_pk_bf16_f32 v{r}, v{AX1}, v{AX1+1}
        v_lshlrev_b32 v{AX1}, 16, v{r}
        v_and_b32 v{AX1+1}, 0xffff0000, v{r}
        v_mul_f32 v{AX1}, v{AX1}, v{VAR}
        v_mul_f32 v{AX1+1}, v{AX1+1}, v{VAR}
        v_cvt_pk_bf16_f32 v{r}, v{AX1}, v{AX1+1}""")

    def xbuf_roundtrip(src):
        A(f"""v_lshrrev_b32 v{T0}, 4, v1
        v_lshlrev_b32 v{T0}, 6, v{T0}
        v_and_b32 v{T1}, 8, v1
        v_lshl_add_u32 v{T0}, v{T1}, 5, v{T0}""")
        src()
        A("s_waitcnt lgkmcnt(0)")
        for j in range(4):
            A(f"ds_read_b128 v[{XP+4*j}:{XP+4*j+3}], v{T0} offset:{L_X+16*j}")

    def wr_x():
        A(f"""v_and_b32 v{T1}, 7, v1
        v_lshl_add_u32 v{T1}, v{T1}, 3, v{T0}
        ds_write_b64 v{T1}, v[{XP+12}:{XP+13}] offset:{L_X}""")

    def tile_compute(win=32, issue=None):
        for i in range(32):
            Ar = AX0 if i % 2 == 0 else AX1
            if issue and i > 0 and i - 1 + win < 32:
                issue(i - 1 + win)
            A(f"v_perm_b32 v{T3}, v{XP+(i>>1)}, v{XP+(i>>1)}, s{64+(i&1)}")
            for r in range(4):
                A(f"v_and_b32 v{Ar+r}, v{T3}, v{M+r}")
            A(f"s_waitcnt vmcnt({min(31-i, win-1)})")
            A("s_nop 0")
            c = "0" if i == 0 else f"v[{DD}:{DD+3}]"
            A(f"v_mfma_f32_16x16x32_bf16 v[{DD}:{DD+3}], v[{Ar}:{Ar+3}], v[{W+4*i}:{W+4*i+3}], {c}")

    def nat_off(dst, tmp):
        A(f"""v_and_b32 v{dst}, 15, v1
        v_lshlrev_b32 v{dst}, 5, v{dst}
        v_and_b32 v{tmp}, 16, v1
        v_add_u32 v{dst}, v{dst}, v{tmp}
        v_and_b32 v{tmp}, 32, v1
        v_lshl_add_u32 v{dst}, v{tmp}, 4, v{dst}""")

    if warm & 2: A("@end\n@chain WQ 4 L_wq_ret")
    xbuf_roundtrip(wr_x)
    nat_off(T2, T1)
    A(f"""s_lshl_b32 s47, s97, 10
    v_add_u32 v{T2}, s47, v{T2}
    v_mov_b32 v{T1}, {TAGM}
    s_mov_b32 s84, 0
    s_waitcnt lgkmcnt(0)""")
    g.stamp(2)
    tile_compute()
    A("s_nop 7")
    g.tagput(range(DD, DD + 4), T1)
    A(f"global_store_dwordx4 v{T2}, v[{DD}:{DD+3}], s[26:27]{'' if dual else ' sc1'}")
    g.stamp(3)
    A(f"""L_qgather:
    s_mul_i32 s47, s66, 192
    v_lshl_add_u32 v{T0}, v1, 2, s47
    v_lshrrev_b32 v{T3}, 7, v{T0}
    v_mul_u32_u24 v{T3}, 5120, v{T3}
    v_and_b32 v{T0}, 127, v{T0}
    v_lshl_add_u32 v{T3}, v{T0}, 2, v{T3}
    s_lshl_b32 s47, s67, 9
    s_add_u32 s47, s47, {WS_Q + 2048}
    v_add_u32 v{T3}, s47, v{T3}
    s_bfm_b64 s[86:87], 48, 0
    s_mov_b64 s[88:89], s[86:87]
    s_mov_b64 s[98:99], s[86:87]
    s_mov_b64 s[76:77], s[86:87]
    s_mov_b64 s[74:75], s[86:87]
    s_mov_b64 s[92:93], s[26:27]
    @nopad
    L_pollQ:""")
    QM = [86, 88, 98, 76, 74]
    for rb in range(5):
        A(f"s_mov_b64 exec, s[{QM[rb]}:{QM[rb]+1}]")
        l = g.lab("L_pq")
        A(f"s_cbranch_execz {l}")
        A(f"global_load_dwordx4 v[{W+4*rb}:{W+4*rb+3}], v{T3}, s[92:93] offset:{rb*1024-2048} sc1")
        A(f"{l}:")
    if dual:
        A(f"""s_cmp_lg_u32 s84, 0
        s_cbranch_scc1 L_pq_w0
        s_mov_b32 s84, 1
        s_mov_b64 exec, -1
        global_store_dwordx4 v{T2}, v[{DD}:{DD+3}], s[90:91] sc1
        s_waitcnt vmcnt(1)
        s_branch L_pq_w1
        L_pq_w0:""")
    A("s_waitcnt vmcnt(0)\nL_pq_w1:\ns_mov_b64 exec, -1\n@pad\ns_nop 0\n@nopad")
    for rb in range(5):
        A(f"s_mov_b64 exec, s[{QM[rb]}:{QM[rb]+1}]")
        g.tagcheck(list(range(W + 4*rb, W + 4*rb + 4)), T0)
        A(f"s_mov_b64 s[{QM[rb]}:{QM[rb]+1}], vcc")
    A(f"""s_or_b64 s[50:51], s[{QM[0]}:{QM[0]+1}], s[{QM[1]}:{QM[1]+1}]
    s_or_b64 s[52:53], s[{QM[2]}:{QM[2]+1}], s[{QM[3]}:{QM[3]+1}]
    s_or_b64 s[50:51], s[50:51], s[{QM[4]}:{QM[4]+1}]
    s_or_b64 s[50:51], s[50:51], s[52:53]
    s_cbranch_scc0 L_gotQ""")
    if dual: g.pick(7)
    g.spin("L_pollQ", 0)
    A("L_gotQ:\ns_bfm_b64 exec, 48, 0\n@pad")
    if dual:
        A(f"""s_cmp_eq_u32 s92, s26
        s_cselect_b32 s47, 63, 0
        v_mov_b32 v{T1}, s47
        v_mov_b32 v{T0}, 0
        ds_write_b32 v{T0}, v{T1} offset:{L_DONE}""")
    g.stamp(5)
    A(f"v_lshlrev_b32 v{T0}, 3, v1")
    for rb in range(1, 5):
        for e in range(4):
            A(f"v_add_f32 v{W+e}, v{W+e}, v{W+4*rb+e}")
    A(f"""v_cvt_pk_bf16_f32 v{W}, v{W}, v{W+1}
    v_cvt_pk_bf16_f32 v{W+1}, v{W+2}, v{W+3}
    ds_write_b64 v{T0}, v[{W}:{W+1}] offset:{L_Q}
    s_mov_b64 exec, -1
    s_waitcnt lgkmcnt(0)
    s_barrier
    s_branch L_aux2
    @nopad""")

    Q = 8; ACC = 20; A0 = 32; A1 = 36
    SA, SB, T, MM, MC, LL, PA, PB = 40, 41, 42, 43, 44, 45, 46, 47
    KA, VA, KB, VB = 48, 72, 96, 120
    FL, OOB, ZERO = 144, 145, 146
    OA, OS, BP0, BP1, LA, LS, LY = 148, 149, 150, 151, 152, 153, 154
    CP = 156
    BD = 155
    OFFS = [0, 128, 256, 3072, 3200, 3328]

    def group(j, K, V, sreg):
        base = (K if j < 2 else V) + 12 * (j & 1)
        srd = 28 if j < 2 else 32
        for t in range(3):
            A(f"buffer_load_dwordx4 v[{base+4*t}:{base+4*t+3}], v2, s[{srd}:{srd+3}], s{sreg} offen offset:{OFFS[3*(j&1)+t]}{P}")

    def uoff(dst, src):
        A(f"""s_add_u32 s48, s{src}, s94
        s_and_b32 s48, s48, 255
        s_mul_i32 s48, s48, 6144
        s_add_u32 s{dst}, s40, s48""")

    A(f"""L_stream:
    s_sub_u32 s3, s3, 1
    s_lshl_b32 s42, s49, 2
    s_add_u32 s42, s42, s3
    s_lshl_b32 s40, s67, 5
    s_add_u32 s40, s40, s66
    s_mul_i32 s94, s40, {ph}
    s_mul_i32 s40, s40, 1572864
    v_lshrrev_b32 v2, 3, v1
    v_mul_u32_u24 v2, 384, v2
    v_and_b32 v3, 7, v1
    v_lshl_add_u32 v2, v3, 4, v2""")
    uoff(44, 42)
    A("""s_add_u32 s47, s42, 4
    s_and_b32 s47, s47, 15
    s_add_u32 s47, s47, 16""")
    uoff(43, 47)
    if cpf:
        A(f"""s_getpc_b64 s[50:51]
        L_pc:
        s_lshl_b32 s47, s3, 12
        s_sub_u32 s47, s47, L_pc-{KN}
        s_ashr_i32 s48, s47, 31
        s_add_u32 s50, s50, s47
        s_addc_u32 s51, s51, s48
        v_lshlrev_b32 v{CP}, 4, v1
        v_mov_b32 v{CP+1}, 0
        v_lshl_add_u64 v[{CP}:{CP+1}], v[{CP}:{CP+1}], 0, s[50:51]""")
        for j in range(4):
            A(f"global_load_dwordx4 v[{CP+4}:{CP+7}], v[{CP}:{CP+1}], off offset:{j*1024}")
    A("""s_mov_b32 s30, 100663296
    s_mov_b32 s31, 0x20000
    s_mov_b32 s34, 100663296
    s_mov_b32 s35, 0x20000""")

    def hop4(name, ret):
        A(f"""@nopad
        s_mov_b64 exec, 0
        s_cmp_eq_u32 s3, 0
        s_cbranch_scc1 {name}_0
        s_cmp_eq_u32 s3, 1
        s_cbranch_scc1 {name}_1
        s_cmp_eq_u32 s3, 2
        s_cbranch_scc1 {name}_2
        s_branch {name}_3
        {ret}:
        s_mov_b64 exec, -1
        @pad""")
    if warm & 2: hop4("WA", "L_wa_ret")
    A("s_waitcnt lgkmcnt(0)")
    if stamps:
        A("v_writelane_b32 v168, s60, 0")
    A("""s_mov_b32 s28, s6
    s_mov_b32 s29, s7
    s_mov_b32 s32, s8
    s_mov_b32 s33, s9""")
    if touch:
        A(f"buffer_load_dword v{FL}, v2, s[28:31], s44 offen{P}\nbuffer_load_dword v{FL}, v2, s[32:35], s44 offen{P}")
    if wprio: A(f"s_setprio {wprio}")
    seq = [(0, KB, VB, 44), (1, KB, VB, 44), (2, KB, VB, 44), (3, KB, VB, 44), (0, KA, VA, 43), (1, KA, VA, 43)]
    if fill4: seq += [(2, KA, VA, 43), (3, KA, VA, 43)]
    for n, (j, K, V, sr) in enumerate(seq):
        if n == pre:
            A("s_barrier")
        if n == 2:
            if warm & 2: hop4("WQ", "L_wq_ret")
            A(f"s_load_dword s80, s[26:27], {WS_E}")
            g.masks(M, T, PA)
            A(f"""s_add_u32 s98, s101, 17
            s_and_b32 s98, s98, 31
            s_cmp_ge_u32 s98, 30
            s_cselect_b32 s83, 1, 0
            s_add_u32 s98, s98, s96
            s_mul_i32 s69, s98, 205
            s_lshr_b32 s69, s69, 10
            s_mul_i32 s70, s69, 5
            s_sub_u32 s70, s98, s70
            s_mov_b32 s36, s12
            s_mov_b32 s37, s13
            s_mov_b32 s38, 7864320
            s_mov_b32 s39, 0x20000
            s_lshl_b32 s71, s69, 2
            s_add_u32 s71, s71, s3
            s_mul_i32 s72, s71, 40960
            s_lshl_b32 s47, s70, 8
            s_add_u32 s72, s72, s47
            s_add_u32 s73, s72, 5120
            v_lshrrev_b32 v3, 4, v1
            v_mul_u32_u24 v3, 10240, v3
            v_and_b32 v{T}, 15, v1
            v_lshl_add_u32 v3, v{T}, 4, v3
            s_lshl_b32 s47, s83, 30
            v_add_u32 v3, s47, v3
            {f"s_lshl_b32 s47, s3, 13" if wolate == 3 else ""}
            {f"v_lshl_add_u32 v3, v1, 4, s47" if wolate == 3 else ""}
            s_mov_b32 s41, 1
            s_mov_b32 s46, {LOG2E}
            s_mov_b32 s58, 399999
            s_add_u32 s90, s26, {WS_B}
            s_addc_u32 s91, s27, 0
            s_mov_b64 s[92:93], s[26:27]""")
            if touch: A(f"buffer_load_dword v{FL}, v3, s[36:39], s72 offen{P}")
        if n == 3:
            for r in range(12):
                A(f"v_mov_b32 v{ACC+r}, 0")
            A(f"""v_mov_b32 v{MM}, 0xff800000
            v_mov_b32 v{MC}, 0xff800000
            v_mov_b32 v{LL}, 0
            v_mov_b32 v{OOB}, 0x7ff00000
            v_mov_b32 v{ZERO}, 0
            s_mul_i32 s47, s71, 171
            s_lshr_b32 s47, s47, 10
            s_mul_i32 s48, s47, 6
            s_sub_u32 s48, s71, s48
            s_lshl_b32 s88, s47, 7
            s_add_u32 s88, s88, {WS_R}
            s_lshl_b32 s47, s47, 13
            s_add_u32 s47, s47, {WS_O}
            v_and_b32 v{OS}, 7, v1
            v_lshl_add_u32 v{OS}, v{OS}, 10, s47
            v_lshrrev_b32 v{OA}, 3, v1
            s_lshl_b32 s48, s48, 7
            v_lshl_add_u32 v{OA}, v{OA}, 4, s48
            v_add_u32 v{OA}, v{OA}, v{OS}
            v_lshrrev_b32 v{BP0}, 4, v1
            v_lshlrev_b32 v{BP0}, 6, v{BP0}
            v_and_b32 v{BP1}, 8, v1
            v_lshl_add_u32 v{BP0}, v{BP1}, 1, v{BP0}
            v_add_u32 v{BP1}, 32, v{BP0}
            s_mul_i32 s47, s3, 3072
            v_lshl_add_u32 v{LA}, v1, 4, s47
            s_lshl_b32 s47, s3, 3
            v_mov_b32 v{LS}, s47
            s_lshl_b32 s47, s3, 10
            v_lshl_add_u32 v{LY}, v1, 4, s47""")
            if rbd:
                A(f"""s_mul_i32 s47, s95, 384
                s_add_u32 s47, s47, {WS_D}
                v_lshl_add_u32 v{BD}, v1, 2, s47
                s_and_b32 s86, s101, 3
                s_lshl_b32 s47, s95, 3
                s_lshr_b32 s48, s101, 2
                s_add_u32 s47, s47, s48
                s_lshl_b32 s47, s47, 2
                s_add_u32 s87, s47, {WS_D}""")
        if n == 4 and warm & 4: hop4("WS", "L_ws_ret")
        if n >= 2:
            A(f"s_waitcnt vmcnt({pace})")
        group(j, K, V, sr)
    g.stamp(1)
    A(f"""s_add_u32 s85, s42, 8
    s_and_b32 s85, s85, 15
    s_add_u32 s85, s85, 32
    s_add_u32 s47, s42, 12
    s_and_b32 s47, s47, 15
    s_add_u32 s47, s47, 240""")
    uoff(44, 47)
    A(f"""s_mov_b32 s45, 0
    s_mov_b32 s100, 1
    s_mov_b32 s84, 16
    v_and_b32 v{T}, 7, v1
    v_lshlrev_b32 v{T}, 4, v{T}
    s_waitcnt lgkmcnt(0)
    s_add_u32 s82, s80, 1
    s_and_b32 s80, s82, {TAGM}
    s_add_u32 s0, s82, 173
    s_and_b32 s0, s0, {TAGM}
    s_add_u32 s1, s82, 346
    s_and_b32 s1, s1, {TAGM}
    s_add_u32 s14, s82, 519
    s_and_b32 s14, s14, {TAGM}
    s_mov_b32 s86, s82
    s_mov_b32 s87, s82
    s_barrier
    ds_read_b128 v[{Q}:{Q+3}], v{T} offset:{L_Q}
    ds_read_b128 v[{Q+4}:{Q+7}], v{T} offset:{L_Q+128}
    ds_read_b128 v[{Q+8}:{Q+11}], v{T} offset:{L_Q+256}
    ds_read_b32 v{PA}, v{ZERO} offset:{L_DONE}
    s_waitcnt lgkmcnt(0)
    v_readfirstlane_b32 s89, v{PA}""")
    g.stamp(2)

    def softmax_part():
        for ctl in ["quad_perm:[1,0,3,2]", "quad_perm:[2,3,0,1]", "row_half_mirror"]:
            g.dpp("v_add_f32", SA, SA, SA, ctl)
            g.dpp("v_add_f32", SB, SB, SB, ctl)
            A("s_nop 0")
        skip = g.lab("L_skip")
        A(f"""v_cvt_pk_bf16_f32 v{T}, v{SA}, v{SB}
        v_lshlrev_b32 v{SA}, 16, v{T}
        v_and_b32 v{SB}, 0xffff0000, v{T}
        v_mul_f32 v{SA}, {SCALE}, v{SA}
        v_mul_f32 v{SB}, {SCALE}, v{SB}
        v_cvt_pk_bf16_f32 v{T}, v{SA}, v{SB}
        v_lshlrev_b32 v{SA}, 16, v{T}
        v_and_b32 v{SB}, 0xffff0000, v{T}
        v_max_f32 v{T}, v{SA}, v{SB}
        v_cmp_gt_f32 vcc, v{T}, v{MM}
        s_cbranch_vccz {skip}""")
        g.dpp("v_max_f32", T, T, T, "row_ror:8")
        g.allred_16_32("v_max_f32", T, PA)
        A(f"""v_max_f32 v{MM}, v{MM}, v{T}
        v_mul_f32 v{PA}, s46, v{MM}
        v_sub_f32 v{PB}, v{MC}, v{PA}
        v_exp_f32 v{PB}, v{PB}
        v_mov_b32 v{MC}, v{PA}
        v_mul_f32 v{LL}, v{LL}, v{PB}""")
        for r in range(12):
            A(f"v_mul_f32 v{ACC+r}, v{ACC+r}, v{PB}")
        A(f"""{skip}:
        v_fma_f32 v{PA}, v{SA}, s46, -v{MC}
        v_fma_f32 v{PB}, v{SB}, s46, -v{MC}
        v_exp_f32 v{PA}, v{PA}
        v_exp_f32 v{PB}, v{PB}
        s_nop 0
        v_add_f32 v{LL}, v{LL}, v{PA}
        v_cvt_pk_bf16_f32 v{PA}, v{PA}, v{PA}
        v_add_f32 v{LL}, v{LL}, v{PB}
        v_cvt_pk_bf16_f32 v{PB}, v{PB}, v{PB}""")
        for r in range(4):
            A(f"v_and_b32 v{A0+r}, v{PA}, v{M+r}")
        for r in range(4):
            A(f"v_and_b32 v{A1+r}, v{PB}, v{M+r}")

    def consume(j, K, V):
        if j < 2:
            for r in range(12):
                A(f"v_dot2c_f32_bf16 v{SA+j}, v{K+12*j+r}, v{Q+r}")
        else:
            Ar = A0 if j == 2 else A1
            for t in range(3):
                b = V + 12 * (j - 2) + 4 * t
                A(f"v_mfma_f32_16x16x32_bf16 v[{ACC+4*t}:{ACC+4*t+3}], v[{Ar}:{Ar+3}], v[{b}:{b+3}], v[{ACC+4*t}:{ACC+4*t+3}]")

    def dummies(n):
        for j in range(n):
            A(f"buffer_load_dword v{FL}, v{OOB}, s[36:39], 0 offen")

    def advance():
        A("""s_add_u32 s48, s85, 4
        s_and_b32 s48, s48, 15
        s_andn2_b32 s85, s85, 15
        s_add_u32 s85, s85, s48
        s_add_u32 s85, s85, 16""")

    def prog():
        if stamps:
            A("""s_waitcnt lgkmcnt(0)
            s_mov_b32 m0, s84
            s_add_u32 s84, s84, 1
            s_min_u32 s84, s84, 63
            v_writelane_b32 v168, s60, m0""")

    if warm & 2: A("@end")
    if warm & 4: A("@chain WS 4 L_ws_ret")
    A(f"L_F:\nv_mov_b32 v{SA}, 0\nv_mov_b32 v{SB}, 0")
    for j in range(4):
        if j == 2:
            A("s_nop 2"); softmax_part()
            if wolate == 2: A("s_cmp_lg_u32 s45, 0\ns_cbranch_scc1 L_Fl")
        A(f"s_waitcnt vmcnt({15 - 3*j})")
        consume(j, KB, VB)
    if wolate != 2: A("s_cmp_lg_u32 s45, 0\ns_cbranch_scc1 L_exit")
    A("L_loop:")
    if stamps: A("s_memrealtime s[60:61]")
    if deep: A(f"ds_read_b32 v{FL}, v{ZERO} offset:{L_FLAG}")
    if rbd: A(f"s_lshr_b32 s47, s85, 4\ns_cmp_eq_u32 s47, {rbd+1}\ns_cbranch_scc1 L_board\nL_board_ret:")
    def load1(n, sreg):
        j, t = divmod(n, 3)
        base = (KA if j < 2 else VA) + 12 * (j & 1) + 4 * t
        srd = 28 if j < 2 else 32
        A(f"buffer_load_dwordx4 v[{base}:{base+3}], v2, s[{srd}:{srd+3}], s{sreg} offen offset:{OFFS[3*(j&1)+t]}{P}")

    assert 4 <= wn <= 8 and fill4 and not (deep or rd or rbd or th < 999)
    A(f"v_mov_b32 v{SA}, 0\nv_mov_b32 v{SB}, 0")
    stubs = []
    for j in range(4):
        if j == 2:
            softmax_part()
        A(f"s_waitcnt vmcnt({wn - 3})")
        consume(j, KA, VA)
        ns = range(3*j + wn, 3*j + 3 + wn)
        cur = [n for n in ns if n < 12]
        nxt = [n - 12 for n in ns if n >= 12]
        if cur:
            A(f"s_cmp_lg_u32 s41, 0\ns_cbranch_scc1 L_sk{j}")
            for n in cur: load1(n, 43)
            A(f"L_sk{j}:")
        if j == 1 and nxt:
            A("s_cmp_ge_u32 s85, 240\ns_cbranch_scc1 L_st1")
            uoff(99, 85)
            for n in nxt: load1(n, 99)
            A("L_rt1:")
            stubs.append(len(nxt))
        if j == 2:
            prog()
            A("s_cmp_ge_u32 s85, 240\ns_cbranch_scc1 L_last")
            if not stubs: uoff(99, 85)
            for n in nxt: load1(n, 99)
            advance()
        if j == 3:
            for n in nxt: load1(n, 99)
            A("s_mov_b32 s43, s99\ns_mov_b32 s41, 0")
        if j == 1 and not stubs: A("s_nop 0")
    WO = KA

    def wo_load(j):
        o = j * 1280
        A(f"buffer_load_dwordx4 v[{WO+4*j}:{WO+4*j+3}], v3, s[36:39], s{72 if o < 4096 else 73} offen offset:{o if o < 4096 else o-5120}{P}")
    if deep or rd:
        if rd: A(f"s_cmp_lt_u32 s85, {16*(rd+1)}\ns_cbranch_scc1 L_loop")
        else: A("s_cmp_eq_u32 s47, 0\ns_cbranch_scc1 L_loop")
        group(2, KA, VA, 43); group(3, KA, VA, 43)
        for j in range(4): group(j, KB, VB, 44)
        A("s_mov_b32 s100, 0\nL_deep:")
        if stamps: A("s_memrealtime s[60:61]")
        A(f"v_mov_b32 v{SA}, 0\nv_mov_b32 v{SB}, 0")
        for j in range(4):
            if j == 2: softmax_part()
            A("s_waitcnt vmcnt(9)")
            consume(j, KA, VA)
            if j == 0:
                prog()
                A("s_cmp_ge_u32 s85, 240\ns_cselect_b32 s45, 1, 0\ns_cbranch_scc1 L_dsub0")
                uoff(43, 85)
                group(0, KA, VA, 43)
                advance()
                A("L_dret0:")
            elif j < 3:
                A(f"s_cmp_lg_u32 s45, 0\ns_cbranch_scc1 L_dsub{j}")
                group(j, KA, VA, 43)
                A(f"L_dret{j}:")
            else:
                A("s_cmp_lg_u32 s45, 0\ns_cbranch_scc1 L_F")
                group(3, KA, VA, 43)
                A("s_branch L_deep")
        for j in range(3):
            A(f"L_dsub{j}:")
            if wolate:
                dummies(3)
            else:
                for jj in range(3*j, min(3*j+3, 8)): wo_load(jj)
                if j == 2: dummies(1)
            A(f"s_branch L_dret{j}")
    else:
        A("s_branch L_loop")
    if stubs:
        A("L_st1:")
        dummies(stubs[0])
        A("s_branch L_rt1")
    if rbd:
        A(f"""L_board:
        s_cmp_lg_u32 s3, 0
        s_cbranch_scc1 L_board_ret
        global_load_dword v{FL}, v{BD}, s[26:27] sc1
        s_cmp_lg_u32 s86, 0
        s_cbranch_scc1 L_board_ret
        v_mul_u32_u24 v{PA}, 384, v1
        v_add_u32 v{PA}, s87, v{PA}
        v_mov_b32 v{PB}, s82
        s_mov_b64 exec, 0xff
        global_store_dword v{PA}, v{PB}, s[26:27] sc1
        s_mov_b64 exec, -1
        s_branch L_board_ret
        L_judge:
        s_cmp_eq_u32 s47, {rbd+3}
        s_cbranch_scc1 L_judge2
        s_cmp_gt_u32 s47, {rbd+3}
        s_cbranch_scc1 L_early_ret
        s_cmp_lg_u32 s3, 0
        s_cbranch_scc1 L_early_ret
        v_cmp_eq_u32 vcc, s82, v{FL}
        s_bcnt1_i32_b64 s48, vcc
        s_cmp_lt_u32 s48, {nq}
        s_cbranch_scc1 L_early_ret
        v_mov_b32 v{FL}, 1
        ds_write_b32 v{ZERO}, v{FL} offset:{L_FLAG}
        s_branch L_early_ret
        L_judge2:
        ds_read_b32 v{FL}, v{ZERO} offset:{L_FLAG}
        s_waitcnt lgkmcnt(0)
        v_cmp_eq_u32 vcc, 1, v{FL}
        s_cbranch_vccz L_early_ret""")
    if th < 999 or rbd:
        A("L_early:\ns_mov_b32 s100, 0")
        for j in range(4): group(j, KB, VB, 44)
        A("s_branch L_early_ret")
    A("L_last:")
    g.stamp(3)
    A("s_mov_b32 s45, 1")
    if th < 999 or rbd:
        A("s_cmp_eq_u32 s100, 0\ns_cbranch_scc1 L_last3")
    for j in range(4): group(j, KB, VB, 44)
    WO = KA

    def wo_loads():
        for j in range(8):
            o = j * 1280
            A(f"buffer_load_dwordx4 v[{WO+4*j}:{WO+4*j+3}], v3, s[36:39], s{72 if o < 4096 else 73} offen offset:{o if o < 4096 else o-5120}{P}")
    if wolate:
        if wn < 6:
            for n in range(6 + wn, 12): pass
        dummies(6)
        A(f"s_waitcnt vmcnt({18 + (stubs[0] if stubs else 0)})")
    else:
        wo_loads()
        A("s_waitcnt vmcnt(20)")
    if th < 999 or rbd:
        A("s_branch L_last4\nL_last3:")
        if wolate:
            A("s_waitcnt vmcnt(0)")
        else:
            wo_loads()
            A("s_waitcnt vmcnt(8)")
        A("L_last4:")
    consume(3, KA, VA)
    A("s_branch L_F")
    if wolate == 2:
        A("L_Fl:")
        wo_loads()
        A("s_waitcnt vmcnt(17)")
        consume(2, KB, VB)
        A("s_waitcnt vmcnt(14)")
        consume(3, KB, VB)
    A("L_exit:")
    if wolate == 1: wo_loads()
    g.stamp(4)
    g.dpp("v_add_f32", LL, LL, LL, "row_ror:8")
    g.allred_16_32("v_add_f32", LL, T)
    O0, S0, XR = 108, 112, 96
    A(f"""v_mov_b32 v{T}, 1
    ds_write_b128 v{LA}, v[{ACC}:{ACC+3}] offset:{L_ACC}
    ds_write_b128 v{LA}, v[{ACC+4}:{ACC+7}] offset:{L_ACC+1024}
    ds_write_b128 v{LA}, v[{ACC+8}:{ACC+11}] offset:{L_ACC+2048}
    ds_write_b64 v{LS}, v[{MC}:{LL}] offset:{L_ST}""")
    if deep: A(f"ds_write_b32 v{ZERO}, v{T} offset:{L_DONE}")
    A(f"""s_waitcnt lgkmcnt(0)
    s_barrier
    s_cmp_lg_u32 s83, 0
    s_cbranch_scc1 L_sdone""")
    if wolate == 3:
        for j in range(8):
            A(f"ds_read_b128 v[{WO+4*j}:{WO+4*j+3}], v3 offset:{L_WO+1024*j}")
    if sready:
        A("""L_pollR:
        s_load_dwordx8 s[4:11], s[26:27], s88 glc
        s_mov_b64 s[92:93], s[26:27]
        s_sub_u32 s58, s58, 1
        s_waitcnt lgkmcnt(0)""")
        for j in range(0, 8, 2):
            A(f"s_xor_b64 s[{4+j}:{5+j}], s[{4+j}:{5+j}], s[86:87]")
        A("""s_or_b64 s[4:5], s[4:5], s[6:7]
        s_or_b64 s[8:9], s[8:9], s[10:11]
        s_or_b64 s[4:5], s[4:5], s[8:9]
        s_cbranch_scc0 L_pollO
        s_and_b32 s47, s58, 63
        s_cbranch_scc1 L_pollR
        s_mov_b64 s[92:93], s[90:91]""")
    def ohead(b):
        g.dpp("v_max_f32", T, b + 4, b + 4, "quad_perm:[1,0,3,2]")
        A("s_nop 1")
        g.dpp("v_max_f32", T, T, T, "quad_perm:[2,3,0,1]")
        A(f"""v_sub_f32 v{T}, v{b+4}, v{T}
        v_exp_f32 v{T}, v{T}
        s_nop 0
        v_mul_f32 v136, v{b+5}, v{T}""")
        for e in range(4):
            A(f"v_mul_f32 v{132+e}, v{b+e}, v{T}")
    if osets == 2:
        O1 = 124

        def oissue(b):
            A(f"""global_load_dwordx4 v[{b}:{b+3}], v{OA}, s[92:93] sc1
            global_load_dwordx4 v[{b+4}:{b+7}], v{OS}, s[92:93] offset:768 sc1""")
        oissue(O0)
        A(f"s_sleep {ostag}\nL_pollO:")
        oissue(O1)
        A("s_waitcnt vmcnt(2)")
        g.tagcheck(list(range(O0, O0 + 8)), T)
        A("s_cbranch_vccz L_gotO")
        g.pick("s89")
        oissue(O0)
        A("s_waitcnt vmcnt(2)")
        g.tagcheck(list(range(O1, O1 + 8)), T)
        A("s_cbranch_vccz L_gotO1")
        g.spin("L_pollO", 0)
        A("L_gotO1:")
        ohead(O1)
        A("s_branch L_ocommon")
    else:
        A(f"""L_pollO:
        global_load_dwordx4 v[{O0}:{O0+3}], v{OA}, s[92:93] sc1
        global_load_dwordx4 v[{S0}:{S0+3}], v{OS}, s[92:93] offset:768 sc1
        s_waitcnt vmcnt(0)""")
        g.tagcheck(list(range(O0, O0 + 8)), T)
        A("s_cbranch_vccz L_gotO")
        if dual: g.pick("s89")
        g.spin("L_pollO", sleep)
    A("L_gotO:")
    g.stamp(5)
    ohead(O0)
    A("L_ocommon:")
    O0, S0 = 132, 135
    for ctl in ["quad_perm:[1,0,3,2]", "quad_perm:[2,3,0,1]"]:
        g.dpp("v_add_f32", S0 + 1, S0 + 1, S0 + 1, ctl)
        for e in range(4):
            g.dpp("v_add_f32", O0 + e, O0 + e, O0 + e, ctl)
    A(f"""v_rcp_f32 v{T}, v{S0+1}
    s_nop 0""")
    for e in range(4):
        A(f"v_mul_f32 v{O0+e}, v{O0+e}, v{T}")
    for e in range(4):
        A(f"v_cvt_pk_bf16_f32 v{O0+e}, v{O0+e}, v{O0+e}")
    for rq in range(8):
        A(f"ds_bpermute_b32 v{XR+rq}, v{BP0 if rq < 4 else BP1}, v{O0+(rq&3)}")
    D = ACC
    AR = [A0, A1, 116, 120]
    for rq in range(8):
        A(f"s_waitcnt lgkmcnt({7-rq})")
        Ar = AR[rq % 4]
        for r in range(4):
            A(f"v_and_b32 v{Ar+r}, v{XR+rq}, v{M+r}")
        if rq >= 1:
            p = rq - 1
            c = "0" if p == 0 else f"v[{D}:{D+3}]"
            A(f"v_mfma_f32_16x16x32_bf16 v[{D}:{D+3}], v[{AR[p%4]}:{AR[p%4]+3}], v[{WO+4*p}:{WO+4*p+3}], {c}")
    A(f"""s_nop 0
    v_mfma_f32_16x16x32_bf16 v[{D}:{D+3}], v[{AR[3]}:{AR[3]+3}], v[{WO+28}:{WO+31}], v[{D}:{D+3}]
    s_nop 7
    ds_write_b128 v{LY}, v[{D}:{D+3}] offset:{L_YP}
    s_waitcnt lgkmcnt(0)
    s_barrier""")
    if warm & 4: A("@end")
    A("L_sdone:")
    g.stamp(6)
    g.stamp_flush()
    A("s_endpgm")

    A("L_aux2:")
    if aprio != prio: A(f"s_setprio {aprio}")
    g.stamp(6)
    A(f"""s_mul_i32 s96, s95, 15
    s_add_u32 s96, s96, s101
    s_sub_u32 s69, s101, 15
    s_sub_u32 s70, s101, 24
    s_cmp_ge_u32 s101, 30
    s_cselect_b32 s69, s70, s69
    s_cselect_b32 s48, 0, s69
    s_lshl_b32 s70, s95, 3
    s_add_u32 s70, s70, s69
    s_add_u32 s70, s70, 120
    s_cmp_lt_u32 s48, 6
    s_cselect_b32 s70, s70, 255
    s_cmp_lt_u32 s101, 15
    s_cselect_b32 s96, s96, s70
    s_mul_i32 s59, s95, 10
    s_sub_u32 s69, s101, 21
    s_add_u32 s59, s59, s69
    s_cmp_lt_u32 s69, 10
    s_cselect_b32 s59, s59, 255
    s_lshl_b32 s68, s66, 3
    s_lshl_b32 s47, s67, 2
    s_add_u32 s68, s68, s47
    s_add_u32 s68, s68, s49
    s_lshl_b32 s68, s68, 10
    s_add_u32 s68, s68, {WS_O}
    s_add_u32 s98, s101, 17
    s_and_b32 s98, s98, 31
    s_cmp_ge_u32 s98, 30
    s_cselect_b32 s83, 1, 0
    s_mul_i32 s74, s95, 30
    s_add_u32 s74, s74, s98
    s_lshl_b32 s74, s74, 10
    s_add_u32 s74, s74, {WS_Y}
    s_lshl_b32 s47, s96, 10
    s_add_u32 s75, s47, {WS_G}
    s_add_u32 s48, s47, {WS_Y + 120*1024}
    s_cmp_lt_u32 s96, 120
    s_cselect_b32 s75, s75, s48
    s_mul_i32 s69, s96, 205
    s_lshr_b32 s69, s69, 10
    s_mul_i32 s70, s69, 5
    s_sub_u32 s70, s96, s70
    s_mov_b32 s63, 0
    s_cmp_lt_u32 s96, 120
    s_cbranch_scc1 L_gtask
    L_wo:""")
    if wolate == 3:
        A(f"""s_cmp_lg_u32 s83, 0
        s_cbranch_scc1 L_wo_done
        s_mul_i32 s47, s95, 30
        s_add_u32 s47, s47, s98
        s_mul_i32 s48, s47, 205
        s_lshr_b32 s48, s48, 10
        s_mul_i32 s72, s48, 5
        s_sub_u32 s72, s47, s72
        s_lshl_b32 s72, s72, 8
        s_mul_i32 s48, s48, 163840
        s_add_u32 s72, s72, s48
        s_mov_b32 s36, s12
        s_mov_b32 s37, s13
        v_lshrrev_b32 v{T0}, 4, v1
        v_mul_u32_u24 v{T0}, 10240, v{T0}
        v_and_b32 v{T1}, 15, v1
        v_lshl_add_u32 v{T0}, v{T1}, 4, v{T0}
        s_mov_b32 s73, {L_WO}
        s_mov_b32 s77, 1280
        L_wo_loop:
        s_mov_b32 m0, s73
        s_add_u32 s73, s73, 1024
        buffer_load_dwordx4 v{T0}, s[36:39], s72 offen{P} lds
        s_and_b32 s47, s73, 0x1c00
        s_cmp_eq_u32 s47, {L_WO & 0x1c00}
        s_cselect_b32 s47, {40960 - 7*1280}, s77
        s_add_u32 s72, s72, s47
        s_waitcnt vmcnt({ww - 1})
        s_cmp_lt_u32 s73, {L_WO + 32768}
        s_cbranch_scc1 L_wo_loop
        s_waitcnt vmcnt(0)
        L_wo_done:""")
    A(f"""s_sub_u32 s47, s96, 120
    s_cmp_lt_u32 s47, 60
    s_cbranch_scc0 L_ffn_done""")
    A(f"""s_sub_u32 s76, s69, 24
    s_mul_i32 s47, s76, 10240
    s_add_u32 s47, s47, {WS_G + 4096}
    v_lshl_add_u32 v{T0}, v1, 4, s47
    v_add_u32 v{T1}, 5120, v{T0}
    L_pollG:
    s_sleep {lsleep}""")
    for j in range(5):
        A(f"global_load_dwordx4 v[{W+4*j}:{W+4*j+3}], v{T0}, s[26:27] offset:{j*1024-4096} sc1")
    for j in range(5):
        A(f"global_load_dwordx4 v[{W+20+4*j}:{W+20+4*j+3}], v{T1}, s[26:27] offset:{j*1024-4096} sc1")
    A("s_waitcnt vmcnt(0)")
    g.tagcheck(list(range(W, W + 40)), T2)
    A("s_cbranch_vccz L_gotG")
    g.spin("L_pollG", lsleep)
    A("L_gotG:")
    for f in range(2):
        for j in range(1, 5):
            for e in range(4):
                A(f"v_add_f32 v{W+20*f+e}, v{W+20*f+e}, v{W+20*f+4*j+e}")
    S0_, S1_ = W, W + 20
    GG, UU = W + 4, W + 8
    for e in range(4):
        A(f"v_mov_b32 v{GG+e}, v{S0_+e}\nv_mov_b32 v{UU+e}, v{S1_+e}")
    A("s_nop 1")
    for e in range(4):
        A(f"v_mov_b32_dpp v{GG+e}, v{S1_+e} row_ror:8 row_mask:0xf bank_mask:0xc")
        A(f"v_mov_b32_dpp v{UU+e}, v{S0_+e} row_ror:8 row_mask:0xf bank_mask:0x3")
    for e in range(4):
        gg, uu = GG + e, UU + e
        g.rbf(gg); g.rbf(uu)
        A(f"""v_mul_f32 v{T2}, v{gg}, v{gg}
        v_mul_f32 v{T2}, v{T2}, v{gg}
        v_mov_b32 v{T3}, v{gg}
        v_fmac_f32 v{T3}, 0x3d372713, v{T2}
        v_mul_f32 v{T3}, 0xc0135761, v{T3}
        v_exp_f32 v{T3}, v{T3}
        s_nop 0
        v_add_f32 v{T3}, 1.0, v{T3}
        v_rcp_f32 v{T3}, v{T3}
        s_nop 0
        v_mul_f32 v{gg}, v{gg}, v{T3}""")
        g.rbf(gg)
        A(f"v_mul_f32 v{gg}, v{gg}, v{uu}")
    A(f"""v_cvt_pk_bf16_f32 v{GG}, v{GG}, v{GG+1}
    v_cvt_pk_bf16_f32 v{GG+1}, v{GG+2}, v{GG+3}""")

    def wr_h():
        A(f"""v_and_b32 v{T1}, 15, v1
        v_lshlrev_b32 v{T1}, 4, v{T1}
        v_and_b32 v{T2}, 32, v1
        v_lshl_add_u32 v{T1}, v{T2}, 3, v{T1}
        v_bfe_u32 v{T2}, v1, 4, 1
        v_lshl_add_u32 v{T1}, v{T2}, 3, v{T1}
        ds_write_b64 v{T1}, v[{GG}:{GG+1}] offset:{L_X}""")

    xbuf_roundtrip(wr_h)
    A(f"""v_lshrrev_b32 v{T0}, 4, v1
    v_mul_u32_u24 v2, 40960, v{T0}
    v_and_b32 v{T1}, 15, v1
    v_lshl_add_u32 v2, v{T1}, 4, v2
    s_mul_i32 s47, s76, 163840
    s_lshl_b32 s48, s70, 8
    s_add_u32 s47, s47, s48
    v_add_u32 v2, s47, v2
    v_mov_b32 v3, 0
    s_mov_b32 s62, 1280
    v_lshl_add_u64 v[2:3], v[2:3], 0, s[20:21]""")
    nat_off(T2, T1)
    A(f"""v_add_u32 v{T2}, s75, v{T2}
    s_waitcnt lgkmcnt(0)
    s_branch L_tile2
    L_gtask:
    v_lshrrev_b32 v{T0}, 4, v1
    v_mul_u32_u24 v2, 98304, v{T0}
    v_and_b32 v{T1}, 7, v1
    v_lshl_add_u32 v2, v{T1}, 4, v2
    s_mul_i32 s47, s70, 393216
    s_lshl_b32 s48, s69, 7
    s_add_u32 s47, s47, s48
    v_add_u32 v2, s47, v2
    v_mov_b32 v3, 0
    s_mov_b32 s62, 3072
    v_and_b32 v{T1}, 8, v1
    v_cmp_eq_u32 vcc, 0, v{T1}
    v_mov_b32 v{T0}, s18
    v_mov_b32 v{T1}, s19
    v_mov_b32 v{T2}, s16
    v_mov_b32 v{T3}, s17
    v_cndmask_b32 v{T0}, v{T0}, v{T2}, vcc
    v_cndmask_b32 v{T1}, v{T1}, v{T3}, vcc
    v_lshl_add_u64 v[2:3], v[2:3], 0, v[{T0}:{T1}]
    v_lshl_add_u32 v{T2}, v1, 4, s75
    L_tile2:""")
    def t2_issue(i):
        A(f"global_load_dwordx4 v[{W+4*i}:{W+4*i+3}], v[2:3], off{P}")
        if i < 31:
            A("v_lshl_add_u64 v[2:3], v[2:3], 0, s[62:63]")
    for i in range(fw): t2_issue(i)
    tile_compute(fw, t2_issue)
    A(f"v_mov_b32 v{T1}, {TAGM}\ns_nop 7")
    g.tagput(range(DD, DD + 4), T1)
    A(f"""global_store_dwordx4 v{T2}, v[{DD}:{DD+3}], s[26:27] sc1
    s_cmp_lt_u32 s96, 120
    s_cbranch_scc1 L_wo
    L_ffn_done:""")
    g.stamp(7)
    GV, XO, YA = 8, 12, 16
    A(f"""s_cmp_ge_u32 s59, 80
    s_cbranch_scc1 L_c_done
    s_cmp_ge_u32 s59, 40
    s_cselect_b32 s78, 1, 0
    s_mul_i32 s47, s78, 40
    s_sub_u32 s77, s59, s47
    s_lshr_b32 s47, s77, 3
    s_lshl_b32 s47, s47, 10
    s_and_b32 s48, s77, 7
    s_lshl_b32 s48, s48, 6
    s_add_u32 s47, s47, s48
    s_lshl_b32 s48, s78, 9
    s_add_u32 s47, s47, s48
    s_add_u32 s47, s47, {WS_Y}
    v_lshrrev_b32 v{T0}, 2, v1
    v_mul_u32_u24 v{T0}, 5120, v{T0}
    v_and_b32 v{T1}, 3, v1
    v_lshl_add_u32 v{T0}, v{T1}, 4, v{T0}
    v_add_u32 v{YA}, s47, v{T0}
    v_add_u32 v{YA+1}, 81920, v{YA}
    v_add_u32 v{YA+2}, 81920, v{YA+1}
    v_add_u32 v{T0}, 81920, v{YA+2}
    s_mul_i32 s47, s78, 1280
    s_lshl_b32 s48, s77, 5
    s_add_u32 s47, s47, s48
    v_lshl_add_u32 v{YA+3}, v{T1}, 3, s47
    v_bfe_u32 v{T1}, v1, 4, 1
    v_lshl_add_u32 v{YA+3}, v{T1}, 2, v{YA+3}
    v_lshrrev_b32 v{T1}, 5, v1
    v_lshl_add_u32 v{YA+3}, v{T1}, 1, v{YA+3}
    global_load_ushort v{XO}, v{YA+3}, s[4:5]
    v_mov_b32 v{GV}, 0
    v_mov_b32 v{GV+1}, 0
    v_mov_b32 v{GV+2}, 0
    v_mov_b32 v{GV+3}, 0
    s_bfm_b64 exec, 48, 0
    L_pollF:
    s_sleep {2*lsleep}
    global_load_dwordx4 v[{GV}:{GV+3}], v{T0}, s[26:27] sc1
    s_waitcnt vmcnt(0)""")
    g.tagcheck(list(range(GV, GV + 4)), T2)
    A("s_cbranch_vccz L_gotF")
    g.spin("L_pollF", lsleep)
    A("L_gotF:\ns_mov_b64 exec, -1\ns_nop 1")

    def red16(base):
        A(f"""v_permlane32_swap_b32 v{base}, v{base+1}
        v_permlane32_swap_b32 v{base+2}, v{base+3}
        s_nop 0
        v_add_f32 v{base}, v{base}, v{base+1}
        v_add_f32 v{base+2}, v{base+2}, v{base+3}
        s_nop 1
        v_permlane16_swap_b32 v{base}, v{base+2}
        s_nop 0
        v_add_f32 v{base}, v{base}, v{base+2}
        s_nop 1""")
        g.dpp("v_add_f32", base, base, base, "row_ror:4")
        A("s_nop 1")
        g.dpp("v_add_f32", base, base, base, "row_ror:8")

    red16(GV)
    A(f"v_lshlrev_b32 v{XO}, 16, v{XO}")
    g.rbf(GV)
    A(f"""v_mul_f32 v{T3}, 0xbfb8aa3b, v{GV}
    v_exp_f32 v{T3}, v{T3}
    s_nop 0
    v_add_f32 v{T3}, 1.0, v{T3}
    v_rcp_f32 v{T3}, v{T3}
    s_nop 0
    v_mul_f32 v{GV}, v{GV}, v{T3}""")
    g.rbf(GV)
    A("L_c_done:")
    g.stamp(8)
    MA = 20
    A(f"""v_lshrrev_b32 v{MA}, 4, v1
    v_lshlrev_b32 v{MA}, 10, v{MA}
    v_bfe_u32 v{T0}, v1, 1, 3
    v_lshl_add_u32 v{MA}, v{T0}, 4, v{MA}
    v_and_b32 v{T0}, 1, v1
    v_lshl_add_u32 v{MA}, v{T0}, 8, v{MA}
    v_mov_b32 v{MA+1}, 0
    v_lshl_add_u32 v{MA+2}, v1, 4, s68
    v_mov_b32 v{MA+3}, {TAGM}
    v_cmp_eq_u32 s[50:51], 48, v1""")
    nat_off(2, T1)
    A(f"""v_add_u32 v2, s74, v2
    v_lshlrev_b32 v{DD}, 4, v1""")
    if sready:
        A(f"""s_lshl_b32 s47, s66, 5
        s_lshl_b32 s48, s67, 2
        s_add_u32 s47, s47, s48
        s_add_u32 s47, s47, s49
        s_lshl_b32 s47, s47, 2
        s_add_u32 s47, s47, {WS_R}
        v_mov_b32 v3, s47
        v_mov_b32 v{T3}, s82""")
    if deep:
        A(f"""s_lshl_b32 s47, s95, 7
        s_add_u32 s47, s47, {WS_D}
        v_lshl_add_u32 v{T0}, v1, 2, s47
        s_lshl_b32 s48, s101, 2
        s_add_u32 s47, s47, s48
        v_mov_b32 v3, s47
        s_bfm_b64 exec, 32, 0
        L_pollD:
        s_sleep {dsleep}
        global_load_dword v{T1}, v{T0}, s[26:27] sc1
        ds_read_b32 v{T2}, v{MA+1} offset:{L_DONE}
        s_waitcnt vmcnt(0) lgkmcnt(0)
        v_cmp_ne_u32 vcc, 0, v{T2}
        s_cbranch_vccnz L_gotD
        v_cmp_eq_u32 vcc, s82, v{T1}
        s_bcnt1_i32_b64 s47, vcc
        s_cmp_ge_u32 s47, {ndone}
        s_cbranch_scc1 L_setD""")
        g.spin("L_pollD", 0)
        A(f"""L_setD:
        v_mov_b32 v{T1}, 1
        ds_write_b32 v{MA+1}, v{T1} offset:{L_FLAG}
        L_gotD:
        s_mov_b64 exec, -1
        v_mov_b32 v{T3}, s82""")
    if aprio != prio: A(f"s_setprio {prio}")
    if warm & 8: A("s_mov_b64 exec, 0\ns_branch WT_0\nL_wt_ret:\ns_mov_b64 exec, -1\ns_branch L_wt_go\n@chain WT 1 L_wt_ret\nL_wt_go:")
    A(f"""s_barrier
    ds_read_b128 v[{AX0}:{AX0+3}], v{MA+1} offset:{L_ST}
    ds_read_b128 v[{AX1}:{AX1+3}], v{MA+1} offset:{L_ST+16}""")
    g.stamp(9)
    for w in range(4):
        A(f"ds_read_b128 v[{W+8*w}:{W+8*w+3}], v{MA} offset:{L_ACC+3072*w}")
        A(f"ds_read_b128 v[{W+8*w+4}:{W+8*w+7}], v{MA} offset:{L_ACC+3072*w+640}")
    ms = [AX0, AX0 + 2, AX1, AX1 + 2]
    OD = W + 32
    A(f"""s_waitcnt lgkmcnt(8)
    v_max_f32 v{T0}, v{ms[0]}, v{ms[1]}
    v_max3_f32 v{T0}, v{T0}, v{ms[2]}, v{ms[3]}
    v_and_b32 v{T0}, s81, v{T0}""")
    for w in range(4):
        A(f"v_sub_f32 v{ms[w]}, v{ms[w]}, v{T0}")
    for w in range(4):
        A(f"v_exp_f32 v{ms[w]}, v{ms[w]}")
    A(f"s_nop 0\nv_mul_f32 v{T1}, v{ms[0]}, v{ms[0]+1}")
    for w in range(1, 4):
        A(f"v_fmac_f32 v{T1}, v{ms[w]}, v{ms[w]+1}")
    for w in range(4):
        A(f"s_waitcnt lgkmcnt({6-2*w})")
        for e in range(4):
            A(f"v_add_f32 v{W+8*w+e}, v{W+8*w+e}, v{W+8*w+4+e}")
        for e in range(4):
            if w == 0:
                A(f"v_mul_f32 v{OD+e}, v{ms[0]}, v{W+e}")
            else:
                A(f"v_fmac_f32 v{OD+e}, v{ms[w]}, v{W+8*w+e}")
    A(f"""v_cndmask_b32 v{OD}, v{OD}, v{T0}, s[50:51]
    v_cndmask_b32 v{OD+1}, v{OD+1}, v{T1}, s[50:51]""")
    g.tagput(range(OD, OD + 4), MA + 3)
    A(f"""s_bfm_b64 exec, 49, 0
    global_store_dwordx4 v{MA+2}, v[{OD}:{OD+3}], s[26:27]{'' if dual else ' sc1'}""")
    if sready: A(f"s_mov_b64 exec, 1\nglobal_store_dword v3, v{T3}, s[26:27]\ns_bfm_b64 exec, 49, 0")
    if dual: A(f"global_store_dwordx4 v{MA+2}, v[{OD}:{OD+3}], s[90:91] sc1")
    A("s_mov_b64 exec, -1")
    g.stamp(10)
    A(f"""s_cmp_lg_u32 s83, 0
    s_cbranch_scc1 L_noy
    s_barrier""")
    for w in range(4):
        A(f"ds_read_b128 v[{W+4*w}:{W+4*w+3}], v{DD} offset:{L_YP+1024*w}")
    for w in range(1, 4):
        A(f"s_waitcnt lgkmcnt({3-w})")
        for e in range(4):
            A(f"v_add_f32 v{W+e}, v{W+e}, v{W+4*w+e}")
    g.tagput(range(W, W + 4), MA + 3)
    A(f"""global_store_dwordx4 v2, v[{W}:{W+3}], s[26:27] sc1
    L_noy:""")
    g.stamp(11)
    A(f"""s_cmp_ge_u32 s59, 80
    s_cbranch_scc1 L_adone""")
    YS = [W + 16 + 12 * j for j in range(ysets)]

    def yissue(j):
        for k in range(3):
            A(f"global_load_dwordx4 v[{YS[j]+4*k}:{YS[j]+4*k+3}], v{YA+k}, s[26:27] sc1")
    if ymiss < 64:
        A("L_pollY1:")
        yissue(0)
        A("s_waitcnt vmcnt(0)")
        g.tagcheck(list(range(YS[0], YS[0] + 12)), T2)
        A(f"""s_cbranch_vccz L_gotY0
        s_bcnt1_i32_b64 s47, vcc
        s_cmp_le_u32 s47, {ymiss}
        s_cbranch_scc1 L_pollY2""")
        g.spin("L_pollY1", ysleep)
        A("L_pollY2:")
    for j in range(ysets - 1):
        yissue(j)
        A(f"s_sleep {ystag}")
    A("L_pollY:")
    for j in range(ysets):
        yissue((j + ysets - 1) % ysets)
        A(f"s_waitcnt vmcnt({3*(ysets-1)})")
        g.tagcheck(list(range(YS[j], YS[j] + 12)), T2)
        A(f"s_cbranch_vccz L_gotY{j}")
    g.spin("L_pollY", sleep if ysets == 1 else 0)
    Y0 = YS[0]
    for j in range(ysets - 1, -1, -1):
        A(f"L_gotY{j}:")
        for e in range(4):
            A(f"v_add_f32 v{T0+e}, v{YS[j]+e}, v{YS[j]+4+e}")
        for e in range(4):
            A(f"v_add_f32 v{T0+e}, v{T0+e}, v{YS[j]+8+e}")
        if j > 0: A("s_branch L_gotY")
    A("L_gotY:")
    g.stamp(12)
    A("s_nop 1")
    red16(T0)
    g.rbf(T0)
    A(f"v_mul_f32 v{T0}, v{T0}, v{GV}")
    g.rbf(T0)
    A(f"""v_add_f32 v{T0}, v{T0}, v{XO}
    s_mov_b32 exec_lo, 0x000f000f
    s_mov_b32 exec_hi, 0x000f000f
    v_cvt_pk_bf16_f32 v{T0}, v{T0}, v{T0}
    global_store_short v{YA+3}, v{T0}, s[22:23]
    s_cmp_lg_u32 s59, 79
    s_cbranch_scc1 L_adone
    s_mov_b64 exec, 1
    v_mov_b32 v{T2}, {WS_E}
    v_mov_b32 v{T1}, s82
    global_store_dword v{T2}, v{T1}, s[26:27]{' sc1' if dbg else ''}
    L_adone:
    s_mov_b64 exec, -1""")
    if warm & 8: A("@end")
    g.stamp(13)
    g.stamp_flush(True)
    A("L_end:\ns_endpgm")
    if cpf:
        A(f".fill (16384 - (. - {KN}))/4, 4, 0xbf810000")

    g.L = [x for x in insert_pads(g.L, space) if x.strip() not in ("@nopad", "@pad")]
    nv = 176 if stamps else 168
    out = [HDR + f"; @launch grid=(256,1,1) block=(320,1,1) lds={LDS_BYTES + (32768 if wolate == 3 else 0)}",
           '.amdgcn_target "amdgcn-amd-amdhsa--gfx950"', ".text", f".globl {KN}", ".p2align 8",
           f".type {KN},@function", f"{KN}:"] + g.L + [
        '.section .rodata,"a"', ".p2align 6", f".amdhsa_kernel {KN}",
        f"  .amdhsa_next_free_vgpr {nv}", "  .amdhsa_next_free_sgpr 102", f"  .amdhsa_accum_offset {nv}",
        "  .amdhsa_group_segment_fixed_size 0", "  .amdhsa_kernarg_size 96", "  .amdhsa_user_sgpr_count 2",
        "  .amdhsa_user_sgpr_kernarg_segment_ptr 1", "  .amdhsa_system_sgpr_workgroup_id_x 1",
        "  .amdhsa_float_denorm_mode_32 3", ".end_amdhsa_kernel"]
    return "\n".join(out) + "\n"


if __name__ == "__main__":
    kw = {}
    for kv in sys.argv[2:]:
        k, v = kv.split("=")
        kw[k] = int(v) if v.lstrip("-").isdigit() else v.replace("+", " ")
    open(sys.argv[1], "w").write(gen(**kw))
```

```python
import sys
KN = "recurrent_scan__gqa_block_cached__geglu_ffn__decode_kernel"

HDR = """; Kernarg layout for this problem (96 bytes, ptrs only, base s[0:1]):
;
"""

WS_Q = 0x00000
WS_E = 0x3F000
WS_O = 0x40000
WS_Y = 0x80000
WS_G = 0x100000
WS_D = 0x140000
WS_R = 0x141000
WS_B = 0x180000
WS_STAMP = 0x200000
TAGM = 0x1ff
TAGS = [80, 0, 1, 14]
L_X = 0
L_Q = 512
L_FLAG = 896
L_DONE = 900
L_ST = 960
L_YP = 1024
L_ACC = 5120
L_WO = 5120 + 12288 + 2048
LDS_BYTES = 5120 + 12288 + 2048

LOG2E = 0x3FB8AA3B
SCALE = 0x3D93CD3A


class G:
    def __init__(self, stamps, dbg):
        self.L = []
        self.stamps = stamps
        self.dbg = dbg
        self.nlab = 0

    def A(self, s):
        for x in s.split("\n"):
            x = x.strip()
            if x:
                self.L.append("    " + x if not x.endswith(":") else x)

    def lab(self, p="L"):
        self.nlab += 1
        return f"{p}_{self.nlab}"

    def stamp(self, idx):
        if not self.stamps:
            return
        self.A(f"""s_memrealtime s[60:61]
        s_waitcnt lgkmcnt(0)
        v_writelane_b32 v168, s60, {idx}""")

    def stamp_flush(self, aux=False):
        if not self.stamps:
            return
        if self.dbg:
            sel = ([(2, 1, 0), (3, 3, 0), (6, 8, 0), (7, 9, 0), (8, 9, 1), (9, 10, 0), (11, 11, 0), (12, 12, 0), (13, 13, 0), (14, 2, 0)] if aux
                   else [(0, 0, 1), (1, 0, 0), (4, 2, 0), (5, 2, 1), (10, 5, 0), (15, 1, 0)])
            self.A("s_mov_b64 exec, 1")
            lw = self.lab("L_dw"); lo = self.lab("L_dwo")
            self.A(f"""v_mov_b32 v170, {WS_E}
            s_mov_b32 s58, 20000
            {lw}:
            s_sleep 64
            global_load_dword v169, v170, s[26:27] sc1
            s_waitcnt vmcnt(0)
            v_and_b32 v169, {TAGM}, v169
            v_cmp_eq_u32 vcc, s80, v169
            s_cbranch_vccnz {lo}
            s_sub_u32 s58, s58, 1
            s_cmp_gt_i32 s58, 0
            s_cbranch_scc1 {lw}
            {lo}:
            s_sleep 64""")
            for slot, idx, inv in sel:
                l = self.lab("L_dbg")
                self.A(f"v_readlane_b32 s47, v168, {idx}\ns_nop 3\ns_cmp_eq_u32 s47, 0\ns_cbranch_scc1 {l}")
                if inv: self.A("s_not_b32 s47, s47")
                self.A(f"v_mov_b32 v169, s47\nv_mov_b32 v170, {slot*4}\nglobal_atomic_umax v170, v169, s[24:25]\n{l}:")
            self.A("s_mov_b64 exec, -1")
            return
        self.A(f"""s_getreg_b32 s47, hwreg(HW_REG_HW_ID)
        s_getreg_b32 s48, hwreg(HW_REG_XCC_ID)
        s_lshl_b32 s48, s48, 24
        s_and_b32 s47, s47, 0xffffff
        s_or_b32 s47, s47, s48
        s_or_b32 s47, s47, 0x80000000
        v_writelane_b32 v168, s47, 15
        s_mul_i32 s47, s2, 5
        s_add_u32 s47, s47, s79
        s_lshl_b32 s47, s47, 8
        s_add_u32 s47, s47, {WS_STAMP}
        v_lshl_add_u32 v169, v1, 2, s47
        global_store_dword v169, v168, s[26:27]""")

    def spin(self, back, sleep):
        if sleep: self.A(f"s_sleep {sleep}")
        self.A(f"""s_sub_u32 s58, s58, 1
        s_cmp_gt_i32 s58, 0
        s_cbranch_scc1 {back}""")

    def pick(self, mask):
        self.A(f"""s_and_b32 s47, s58, {mask}
        s_cmp_eq_u32 s47, 0
        s_cselect_b64 s[92:93], s[90:91], s[26:27]""")

    def allred_16_32(self, op, v, t):
        self.A(f"""v_mov_b32 v{t}, v{v}
        s_nop 1
        v_permlane16_swap_b32 v{v}, v{t}
        s_nop 0
        {op} v{v}, v{v}, v{t}
        v_mov_b32 v{t}, v{v}
        s_nop 1
        v_permlane32_swap_b32 v{v}, v{t}
        s_nop 0
        {op} v{v}, v{v}, v{t}""")

    def dpp(self, op, d, a, b, ctl, bank="0xf"):
        self.A(f"{op}_dpp v{d}, v{a}, v{b} {ctl} row_mask:0xf bank_mask:{bank}")

    def tagcheck(self, regs, t):
        for j, r in enumerate(regs):
            self.A(f"v_xor_b32 v{r}, s{TAGS[j & 3]}, v{r}")
        self.A(f"v_or_b32 v{t}, v{regs[0]}, v{regs[1]}")
        for j in range(2, len(regs), 2):
            self.A(f"v_or3_b32 v{t}, v{t}, v{regs[j]}, v{regs[j+1]}")
        self.A(f"v_and_b32 v{t}, {TAGM}, v{t}\nv_cmp_ne_u32 vcc, 0, v{t}")

    def tagput(self, regs, tg):
        for r in regs:
            self.A(f"v_add_u32 v{r}, {(TAGM+1)//2}, v{r}")
        for j, r in enumerate(regs):
            self.A(f"v_bfi_b32 v{r}, v{tg}, s{TAGS[j & 3]}, v{r}")

    def rbf(self, v):
        self.A(f"""v_cvt_pk_bf16_f32 v{v}, v{v}, v{v}
        v_and_b32 v{v}, 0xffff0000, v{v}""")

    def masks(self, M, t0, t1):
        self.A(f"""v_and_b32 v{t0}, 1, v1
        v_lshlrev_b32 v{t0}, 4, v{t0}
        v_mov_b32 v{t1}, 0xffff
        v_lshlrev_b32 v{t0}, v{t0}, v{t1}
        v_bfe_u32 v{t1}, v1, 1, 2
        v_cmp_eq_u32 s[50:51], 0, v{t1}
        v_cmp_eq_u32 s[52:53], 1, v{t1}
        v_cmp_eq_u32 s[54:55], 2, v{t1}
        v_cmp_eq_u32 s[56:57], 3, v{t1}
        s_nop 0
        v_cndmask_b32 v{M}, 0, v{t0}, s[50:51]
        v_cndmask_b32 v{M+1}, 0, v{t0}, s[52:53]
        v_cndmask_b32 v{M+2}, 0, v{t0}, s[54:55]
        v_cndmask_b32 v{M+3}, 0, v{t0}, s[56:57]""")


def isize(line):
    t = line.strip()
    if not t or t.endswith(":") or t.startswith((";", "@", ".")):
        return 0
    op = t.split()[0]
    if op.startswith(("buffer_", "global_", "ds_", "s_load", "s_memrealtime", "s_memtime", "v_mfma", "v_perm_b32", "v_cvt_pk", "v_lshl_add", "v_and_or",
                      "v_or3", "v_pk_", "v_bfi", "v_max3", "v_fma_", "v_bfe", "v_writelane", "v_readlane", "v_add3")) or "_dpp" in op:
        return 8
    if op.startswith(("v_cmp", "v_cndmask")) and "s[" in t:
        return 8
    import re
    args = t[len(op):]
    for m in re.finditer(r"(?<![\w\[:])(-?0x[0-9a-fA-F]+|-?\d+)(?![\w\]:.])", args):
        v = int(m.group(1), 0)
        if not (-16 <= v <= 64) and not op.startswith(("s_waitcnt", "s_nop", "s_sleep", "s_setprio")):
            return 8
    return 4


def insert_pads(L, space):
    out = []
    i = 0
    while i < len(L):
        t = L[i].strip()
        if not t.startswith("@chain"):
            out.append(L[i]); i += 1; continue
        _, name, n, ret = t.split(); n = int(n)
        j = i + 1
        body = []
        while L[j].strip() != "@end":
            body.append(L[j]); j += 1
        pos = []; acc = space; ok = True
        for k, ln in enumerate(body):
            tt = ln.strip()
            if tt == "@nopad":
                if ok and acc > 64: pos.append(k); acc = 0
                ok = False
                continue
            if tt == "@pad":
                ok = True
                continue
            sz = isize(ln)
            if ok and sz and acc + sz > space:
                pos.append(k); acc = 0
            acc += sz
        per = -(-len(pos) // n)
        lab = {}
        for q, k in enumerate(pos):
            c = q // per
            first = q % per == 0
            last = q % per == per - 1 or q == len(pos) - 1
            me = f"{name}_{c}" if first else f"{name}_p{q}"
            nxt = ret if last else f"{name}_p{q+1}"
            lab[k] = [f"{me}:", f"    s_cbranch_execz {nxt}"]
        extra = [f"{name}_{c}:" for c in range((len(pos) - 1) // per + 1, n)]
        if extra: lab[pos[-1]] = extra + lab[pos[-1]]
        for k, ln in enumerate(body):
            if k in lab: out += lab[k]
            if ln.strip() not in ("@nopad", "@pad"): out.append(ln)
        i = j + 1
    return out


def gen(tb=9, stamps=0, pol="nt", sleep=1, lsleep=16, prio=3, pace=3, pre=0, ph=97, deep=0, ndone=6, dsleep=16,
        th=999, dbg=0, cpf=0, dual=1, fill4=1, wolate=2, warm=14, space=192, fw=8, ysets=3, ystag=5, rbd=0, nq=32, rd=0, sready=0, ymiss=64, ysleep=12, touch=0, wprio=1, aprio=0, ww=8, osets=1, ostag=2, wn=6, qcount=0, blate=0, qdelay=0, gs0=0, fs0=0, al=0, xe=0, xm=0xf0):
    global TAGM
    TAGM = (1 << tb) - 1
    g = G(stamps, dbg)
    A = g.A
    P = (" " + pol) if pol else ""
    M = 4
    A(f"""s_cmp_ge_u32 s2, 256
    s_cbranch_scc1 L_end
    s_load_dwordx16 s[4:19], s[0:1], 0
    s_load_dwordx8 s[20:27], s[0:1], 64
    v_lshrrev_b32 v2, 6, v0
    v_and_b32 v1, 63, v0
    v_readfirstlane_b32 s3, v2""")
    if stamps:
        A("v_mov_b32 v168, 0\ns_memrealtime s[60:61]\ns_mov_b32 s79, s3")
    A("""s_lshr_b32 s101, s2, 3
    s_and_b32 s95, s2, 7
    s_and_b32 s66, s101, 3
    s_lshl_b32 s47, s95, 2
    s_add_u32 s66, s66, s47
    s_bfe_u32 s67, s101, 0x10002
    s_lshr_b32 s49, s101, 3
    s_mul_i32 s96, s95, 30
    s_cmp_lg_u32 s3, 0
    s_cbranch_scc1 L_stream""")

    XP = 8; AX0 = 24; AX1 = 28; W = 32; DD = 160; T0, T1, T2, T3 = 164, 165, 166, 167
    A(f"""s_setprio {prio}
    s_add_u32 s97, s96, s101
    s_mul_i32 s69, s97, 205
    s_lshr_b32 s69, s69, 10
    s_mul_i32 s70, s69, 5
    s_sub_u32 s70, s97, s70
    v_lshrrev_b32 v{T0}, 4, v1
    v_and_b32 v{T1}, 7, v1
    v_bfe_u32 v{T2}, v1, 3, 1
    v_mul_u32_u24 v{T2}, 1280, v{T2}
    v_lshl_add_u32 v{T3}, v{T0}, 3, v{T1}
    v_lshl_add_u32 v{DD}, v{T3}, 4, v{T2}
    v_lshl_add_u32 v{DD+1}, v{T3}, 3, v{T2}
    s_lshl_b32 s47, s70, 8
    v_add_u32 v{DD+1}, s47, v{DD+1}
    v_mul_u32_u24 v2, 393216, v{T0}
    v_and_b32 v{T1}, 15, v1
    v_lshl_add_u32 v2, v{T1}, 4, v2
    s_mul_i32 s62, s70, 1572864
    s_lshl_b32 s48, s69, 8
    s_add_u32 s62, s62, s48
    v_mov_b32 v{XP+8}, 0
    v_mov_b32 v{XP+9}, 0
    v_mov_b32 v{XP+10}, 0
    v_mov_b32 v{XP+11}, 0
    s_mov_b32 s38, 7864320
    s_mov_b32 s39, 0x20000""")
    if warm & 1: A("s_mov_b64 exec, 0\ns_branch WI_0\nL_wi_ret:\ns_mov_b64 exec, -1")
    A("s_waitcnt lgkmcnt(0)")
    if stamps:
        A("v_writelane_b32 v168, s60, 0")
    A(f"""s_mov_b32 s36, s10
    s_mov_b32 s37, s11
    global_load_dwordx4 v[{XP}:{XP+3}], v{DD}, s[4:5]
    global_load_dwordx4 v[{XP+4}:{XP+7}], v{DD}, s[4:5] offset:512
    global_load_dwordx2 v[{XP+12}:{XP+13}], v{DD+1}, s[4:5]
    s_bfm_b64 exec, 32, 0
    global_load_dwordx4 v[{XP+8}:{XP+11}], v{DD}, s[4:5] offset:1024
    s_mov_b64 exec, -1
    s_load_dword s80, s[26:27], {WS_E}
    s_cmp_ge_u32 s101, 30
    s_cbranch_scc1 L_noq1""")
    if warm & 1: A("@chain WI 1 L_wi_ret")
    for i in range(32):
        A(f"buffer_load_dwordx4 v[{W+4*i}:{W+4*i+3}], v2, s[36:39], s62 offen{P}")
        if i < 31:
            A("s_add_u32 s62, s62, 12288")
    if warm & 1: A("@end")
    A(f"""L_noq1:
    s_barrier""")
    if warm & 2: A("@chain WA 4 L_wa_ret")
    g.stamp(1)
    g.masks(M, T0, T1)
    A(f"""s_mov_b32 s81, {(~TAGM) & 0xffffffff}
    s_mov_b32 s64, 0x01000100
    s_mov_b32 s65, 0x03020302
    s_mov_b32 s58, 399999
    s_add_u32 s90, s26, {WS_B}
    s_addc_u32 s91, s27, 0
    v_mov_b32 v{T0}, 0
    v_mov_b32 v{T1}, 0
    ds_write_b64 v{T0}, v[{T0}:{T1}] offset:{L_FLAG}
    s_waitcnt lgkmcnt(0)
    s_add_u32 s82, s80, 1
    s_and_b32 s80, s82, {TAGM}
    s_add_u32 s0, s82, 173
    s_and_b32 s0, s0, {TAGM}
    s_add_u32 s1, s82, 346
    s_and_b32 s1, s1, {TAGM}
    s_add_u32 s14, s82, 519
    s_and_b32 s14, s14, {TAGM}
    s_mov_b32 s84, 1
    s_cmp_ge_u32 s101, 30
    s_cbranch_scc1 L_qgather""")
    SUM, VAR, MEAN = T0, T1, T2
    A(f"""s_mov_b32 s47, 0x3f803f80
    s_waitcnt vmcnt(32)""")
    for r in range(12):
        A(f"v_dot2c_f32_bf16 v{SUM}, s47, v{XP+r}")
    A("s_nop 2")

    def allred_stats(v, t):
        for ctl in ["quad_perm:[1,0,3,2]", "quad_perm:[2,3,0,1]", "row_half_mirror"]:
            g.dpp("v_add_f32", v, v, v, ctl)
            A("s_nop 1")
        g.allred_16_32("v_add_f32", v, t)

    allred_stats(SUM, T3)
    A(f"v_mul_f32 v{MEAN}, 0x3acccccd, v{SUM}")
    for r in range(12):
        if r == 8:
            A("s_bfm_b64 exec, 32, 0")
        A(f"""v_lshlrev_b32 v{AX1}, 16, v{XP+r}
        v_and_b32 v{AX1+1}, 0xffff0000, v{XP+r}
        v_sub_f32 v{AX1}, v{AX1}, v{MEAN}
        v_sub_f32 v{AX1+1}, v{AX1+1}, v{MEAN}
        v_fmac_f32 v{VAR}, v{AX1}, v{AX1}
        v_fmac_f32 v{VAR}, v{AX1+1}, v{AX1+1}""")
    A("s_mov_b64 exec, -1\ns_nop 1")
    allred_stats(VAR, T3)
    A(f"v_mul_f32 v{VAR}, 0x3acccccd, v{VAR}")
    g.rbf(VAR)
    g.rbf(MEAN)
    A(f"v_add_f32 v{VAR}, 0x3727c5ac, v{VAR}")
    g.rbf(VAR)
    A(f"v_sqrt_f32 v{VAR}, v{VAR}\ns_nop 0")
    g.rbf(VAR)
    A(f"v_rcp_f32 v{VAR}, v{VAR}")
    for k in range(2):
        r = XP + 12 + k
        A(f"""v_lshlrev_b32 v{AX1}, 16, v{r}
        v_and_b32 v{AX1+1}, 0xffff0000, v{r}
        v_sub_f32 v{AX1}, v{AX1}, v{MEAN}
        v_sub_f32 v{AX1+1}, v{AX1+1}, v{MEAN}
        v_cvt_pk_bf16_f32 v{r}, v{AX1}, v{AX1+1}
        v_lshlrev_b32 v{AX1}, 16, v{r}
        v_and_b32 v{AX1+1}, 0xffff0000, v{r}
        v_mul_f32 v{AX1}, v{AX1}, v{VAR}
        v_mul_f32 v{AX1+1}, v{AX1+1}, v{VAR}
        v_cvt_pk_bf16_f32 v{r}, v{AX1}, v{AX1+1}""")

    def xbuf_roundtrip(src):
        A(f"""v_lshrrev_b32 v{T0}, 4, v1
        v_lshlrev_b32 v{T0}, 6, v{T0}
        v_and_b32 v{T1}, 8, v1
        v_lshl_add_u32 v{T0}, v{T1}, 5, v{T0}""")
        src()
        A("s_waitcnt lgkmcnt(0)")
        for j in range(4):
            A(f"ds_read_b128 v[{XP+4*j}:{XP+4*j+3}], v{T0} offset:{L_X+16*j}")

    def wr_x():
        A(f"""v_and_b32 v{T1}, 7, v1
        v_lshl_add_u32 v{T1}, v{T1}, 3, v{T0}
        ds_write_b64 v{T1}, v[{XP+12}:{XP+13}] offset:{L_X}""")

    def tile_compute(win=32, issue=None):
        for i in range(32):
            Ar = AX0 if i % 2 == 0 else AX1
            if issue and i > 0 and i - 1 + win < 32:
                issue(i - 1 + win)
            A(f"v_perm_b32 v{T3}, v{XP+(i>>1)}, v{XP+(i>>1)}, s{64+(i&1)}")
            for r in range(4):
                A(f"v_and_b32 v{Ar+r}, v{T3}, v{M+r}")
            A(f"s_waitcnt vmcnt({min(31-i, win-1)})")
            A("s_nop 0")
            c = "0" if i == 0 else f"v[{DD}:{DD+3}]"
            A(f"v_mfma_f32_16x16x32_bf16 v[{DD}:{DD+3}], v[{Ar}:{Ar+3}], v[{W+4*i}:{W+4*i+3}], {c}")

    def nat_off(dst, tmp):
        A(f"""v_and_b32 v{dst}, 15, v1
        v_lshlrev_b32 v{dst}, 5, v{dst}
        v_and_b32 v{tmp}, 16, v1
        v_add_u32 v{dst}, v{dst}, v{tmp}
        v_and_b32 v{tmp}, 32, v1
        v_lshl_add_u32 v{dst}, v{tmp}, 4, v{dst}""")

    if warm & 2: A("@end\n@chain WQ 4 L_wq_ret")
    xbuf_roundtrip(wr_x)
    nat_off(T2, T1)
    A(f"""s_lshl_b32 s47, s97, 10
    v_add_u32 v{T2}, s47, v{T2}
    v_mov_b32 v{T1}, {TAGM}
    s_mov_b32 s84, 0
    s_waitcnt lgkmcnt(0)""")
    g.stamp(2)
    tile_compute()
    A("s_nop 7")
    g.tagput(range(DD, DD + 4), T1)
    A(f"global_store_dwordx4 v{T2}, v[{DD}:{DD+3}], s[26:27]{'' if dual else ' sc1'}")
    g.stamp(3)
    A(f"""L_qgather:
    s_mul_i32 s47, s66, 192
    v_lshl_add_u32 v{T0}, v1, 2, s47
    v_lshrrev_b32 v{T3}, 7, v{T0}
    v_mul_u32_u24 v{T3}, 5120, v{T3}
    v_and_b32 v{T0}, 127, v{T0}
    v_lshl_add_u32 v{T3}, v{T0}, 2, v{T3}
    s_lshl_b32 s47, s67, 9
    s_add_u32 s47, s47, {WS_Q + 2048}
    v_add_u32 v{T3}, s47, v{T3}
    s_bfm_b64 s[86:87], 48, 0
    s_mov_b64 s[88:89], s[86:87]
    s_mov_b64 s[98:99], s[86:87]
    s_mov_b64 s[76:77], s[86:87]
    s_mov_b64 s[74:75], s[86:87]
    s_mov_b64 s[92:93], s[26:27]
    {f"s_sleep {qdelay}" if qdelay else ""}
    @nopad
    L_pollQ:""")
    QM = [86, 88, 98, 76, 74]
    for rb in range(5):
        A(f"s_mov_b64 exec, s[{QM[rb]}:{QM[rb]+1}]")
        l = g.lab("L_pq")
        A(f"s_cbranch_execz {l}")
        A(f"global_load_dwordx4 v[{W+4*rb}:{W+4*rb+3}], v{T3}, s[92:93] offset:{rb*1024-2048} sc1")
        A(f"{l}:")
    if dual:
        if blate: A(f"s_cmp_gt_u32 s58, {399999 - blate}\ns_cbranch_scc1 L_pq_w0")
        A(f"""s_cmp_lg_u32 s84, 0
        s_cbranch_scc1 L_pq_w0
        s_mov_b32 s84, 1
        s_mov_b64 exec, -1
        global_store_dwordx4 v{T2}, v[{DD}:{DD+3}], s[90:91] sc1
        s_waitcnt vmcnt(1)
        s_branch L_pq_w1
        L_pq_w0:""")
    A("s_waitcnt vmcnt(0)\nL_pq_w1:\ns_mov_b64 exec, -1\n@pad\ns_nop 0\n@nopad")
    if qcount:
        A("""s_memrealtime s[60:61]
        s_sub_u32 s47, 400015, s58
        s_min_u32 s47, s47, 40
        s_mov_b32 m0, s47
        s_waitcnt lgkmcnt(0)
        v_writelane_b32 v168, s60, m0""")
    for rb in range(5):
        A(f"s_mov_b64 exec, s[{QM[rb]}:{QM[rb]+1}]")
        g.tagcheck(list(range(W + 4*rb, W + 4*rb + 4)), T0)
        A(f"s_mov_b64 s[{QM[rb]}:{QM[rb]+1}], vcc")
    A(f"""s_or_b64 s[50:51], s[{QM[0]}:{QM[0]+1}], s[{QM[1]}:{QM[1]+1}]
    s_or_b64 s[52:53], s[{QM[2]}:{QM[2]+1}], s[{QM[3]}:{QM[3]+1}]
    s_or_b64 s[50:51], s[50:51], s[{QM[4]}:{QM[4]+1}]
    s_or_b64 s[50:51], s[50:51], s[52:53]
    s_cbranch_scc0 L_gotQ""")
    if dual: g.pick(7)
    g.spin("L_pollQ", 0)
    A("L_gotQ:\ns_bfm_b64 exec, 48, 0\n@pad")
    if dual:
        A(f"""s_cmp_eq_u32 s92, s26
        s_cselect_b32 s47, 63, 0
        v_mov_b32 v{T1}, s47
        v_mov_b32 v{T0}, 0
        ds_write_b32 v{T0}, v{T1} offset:{L_DONE}""")
    g.stamp(5)
    A(f"v_lshlrev_b32 v{T0}, 3, v1")
    for rb in range(1, 5):
        for e in range(4):
            A(f"v_add_f32 v{W+e}, v{W+e}, v{W+4*rb+e}")
    A(f"""v_cvt_pk_bf16_f32 v{W}, v{W}, v{W+1}
    v_cvt_pk_bf16_f32 v{W+1}, v{W+2}, v{W+3}
    ds_write_b64 v{T0}, v[{W}:{W+1}] offset:{L_Q}
    s_mov_b64 exec, -1
    s_waitcnt lgkmcnt(0)
    s_barrier""")
    if blate:
        A(f"""s_cmp_lg_u32 s84, 0
        s_cbranch_scc1 L_aux2
        global_store_dwordx4 v{T2}, v[{DD}:{DD+3}], s[90:91] sc1""")
    A(f"""s_branch L_aux2
    @nopad""")

    Q = 8; ACC = 20; A0 = 32; A1 = 36
    SA, SB, T, MM, MC, LL, PA, PB = 40, 41, 42, 43, 44, 45, 46, 47
    KA, VA, KB, VB = 48, 72, 96, 120
    FL, OOB, ZERO = 144, 145, 146
    OA, OS, BP0, BP1, LA, LS, LY = 148, 149, 150, 151, 152, 153, 154
    CP = 156
    BD = 155
    OFFS = [0, 128, 256, 3072, 3200, 3328]

    def group(j, K, V, sreg):
        base = (K if j < 2 else V) + 12 * (j & 1)
        srd = 28 if j < 2 else 32
        for t in range(3):
            A(f"buffer_load_dwordx4 v[{base+4*t}:{base+4*t+3}], v2, s[{srd}:{srd+3}], s{sreg} offen offset:{OFFS[3*(j&1)+t]}{P}")

    def uoff(dst, src):
        A(f"""s_add_u32 s48, s{src}, s94
        s_and_b32 s48, s48, 255
        s_mul_i32 s48, s48, 6144
        s_add_u32 s{dst}, s40, s48""")

    A(f"""L_stream:
    s_sub_u32 s3, s3, 1
    s_lshl_b32 s42, s49, 2
    s_add_u32 s42, s42, s3
    s_lshl_b32 s40, s67, 5
    s_add_u32 s40, s40, s66
    s_mul_i32 s94, s40, {ph}
    s_mul_i32 s40, s40, 1572864
    v_lshrrev_b32 v2, 3, v1
    v_mul_u32_u24 v2, 384, v2
    v_and_b32 v3, 7, v1
    v_lshl_add_u32 v2, v3, 4, v2""")
    uoff(44, 42)
    A("""s_add_u32 s47, s42, 4
    s_and_b32 s47, s47, 15
    s_add_u32 s47, s47, 16""")
    uoff(43, 47)
    if cpf:
        A(f"""s_getpc_b64 s[50:51]
        L_pc:
        s_lshl_b32 s47, s3, 12
        s_sub_u32 s47, s47, L_pc-{KN}
        s_ashr_i32 s48, s47, 31
        s_add_u32 s50, s50, s47
        s_addc_u32 s51, s51, s48
        v_lshlrev_b32 v{CP}, 4, v1
        v_mov_b32 v{CP+1}, 0
        v_lshl_add_u64 v[{CP}:{CP+1}], v[{CP}:{CP+1}], 0, s[50:51]""")
        for j in range(4):
            A(f"global_load_dwordx4 v[{CP+4}:{CP+7}], v[{CP}:{CP+1}], off offset:{j*1024}")
    A("""s_mov_b32 s30, 100663296
    s_mov_b32 s31, 0x20000
    s_mov_b32 s34, 100663296
    s_mov_b32 s35, 0x20000""")

    def hop4(name, ret):
        A(f"""@nopad
        s_mov_b64 exec, 0
        s_cmp_eq_u32 s3, 0
        s_cbranch_scc1 {name}_0
        s_cmp_eq_u32 s3, 1
        s_cbranch_scc1 {name}_1
        s_cmp_eq_u32 s3, 2
        s_cbranch_scc1 {name}_2
        s_branch {name}_3
        {ret}:
        s_mov_b64 exec, -1
        @pad""")
    if warm & 2: hop4("WA", "L_wa_ret")
    A("s_waitcnt lgkmcnt(0)")
    if stamps:
        A("v_writelane_b32 v168, s60, 0")
    A("""s_mov_b32 s28, s6
    s_mov_b32 s29, s7
    s_mov_b32 s32, s8
    s_mov_b32 s33, s9""")
    if touch:
        A(f"buffer_load_dword v{FL}, v2, s[28:31], s44 offen{P}\nbuffer_load_dword v{FL}, v2, s[32:35], s44 offen{P}")
    if wprio: A(f"s_setprio {wprio}")
    seq = [(0, KB, VB, 44), (1, KB, VB, 44), (2, KB, VB, 44), (3, KB, VB, 44), (0, KA, VA, 43), (1, KA, VA, 43)]
    if fill4: seq += [(2, KA, VA, 43), (3, KA, VA, 43)]
    for n, (j, K, V, sr) in enumerate(seq):
        if n == pre:
            A("s_barrier")
        if n == 2:
            if warm & 2: hop4("WQ", "L_wq_ret")
            A(f"s_load_dword s80, s[26:27], {WS_E}")
            g.masks(M, T, PA)
            A(f"""s_add_u32 s98, s101, 17
            s_and_b32 s98, s98, 31
            s_cmp_ge_u32 s98, 30
            s_cselect_b32 s83, 1, 0
            s_add_u32 s98, s98, s96
            s_mul_i32 s69, s98, 205
            s_lshr_b32 s69, s69, 10
            s_mul_i32 s70, s69, 5
            s_sub_u32 s70, s98, s70
            s_mov_b32 s36, s12
            s_mov_b32 s37, s13
            s_mov_b32 s38, 7864320
            s_mov_b32 s39, 0x20000
            s_lshl_b32 s71, s69, 2
            s_add_u32 s71, s71, s3
            s_mul_i32 s72, s71, 40960
            s_lshl_b32 s47, s70, 8
            s_add_u32 s72, s72, s47
            s_add_u32 s73, s72, 5120
            v_lshrrev_b32 v3, 4, v1
            v_mul_u32_u24 v3, 10240, v3
            v_and_b32 v{T}, 15, v1
            v_lshl_add_u32 v3, v{T}, 4, v3
            s_lshl_b32 s47, s83, 30
            v_add_u32 v3, s47, v3
            {f"s_lshl_b32 s47, s3, 13" if wolate == 3 else ""}
            {f"v_lshl_add_u32 v3, v1, 4, s47" if wolate == 3 else ""}
            s_mov_b32 s41, 1
            s_mov_b32 s46, {LOG2E}
            s_mov_b32 s58, 399999
            s_add_u32 s90, s26, {WS_B}
            s_addc_u32 s91, s27, 0
            s_mov_b64 s[92:93], s[26:27]""")
            if touch: A(f"buffer_load_dword v{FL}, v3, s[36:39], s72 offen{P}")
        if n == 3:
            for r in range(12):
                A(f"v_mov_b32 v{ACC+r}, 0")
            A(f"""v_mov_b32 v{MM}, 0xff800000
            v_mov_b32 v{MC}, 0xff800000
            v_mov_b32 v{LL}, 0
            v_mov_b32 v{OOB}, 0x7ff00000
            v_mov_b32 v{ZERO}, 0
            s_mul_i32 s47, s71, 171
            s_lshr_b32 s47, s47, 10
            s_mul_i32 s48, s47, 6
            s_sub_u32 s48, s71, s48
            {"s_lshl_b32 s88, s47, 7" if sready else ""}
            {f"s_add_u32 s88, s88, {WS_R}" if sready else ""}
            s_lshl_b32 s47, s47, 13
            s_add_u32 s47, s47, {WS_O}
            v_and_b32 v{OS}, 7, v1
            v_lshl_add_u32 v{OS}, v{OS}, 10, s47
            v_lshrrev_b32 v{OA}, 3, v1
            s_lshl_b32 s48, s48, 7
            v_lshl_add_u32 v{OA}, v{OA}, 4, s48
            v_add_u32 v{OA}, v{OA}, v{OS}
            v_lshrrev_b32 v{BP0}, 4, v1
            v_lshlrev_b32 v{BP0}, 6, v{BP0}
            v_and_b32 v{BP1}, 8, v1
            v_lshl_add_u32 v{BP0}, v{BP1}, 1, v{BP0}
            v_add_u32 v{BP1}, 32, v{BP0}
            s_mul_i32 s47, s3, 3072
            v_lshl_add_u32 v{LA}, v1, 4, s47
            s_lshl_b32 s47, s3, 3
            v_mov_b32 v{LS}, s47
            s_lshl_b32 s47, s3, 10
            v_lshl_add_u32 v{LY}, v1, 4, s47""")
            if rbd:
                A(f"""s_mul_i32 s47, s95, 384
                s_add_u32 s47, s47, {WS_D}
                v_lshl_add_u32 v{BD}, v1, 2, s47
                s_and_b32 s86, s101, 3
                s_lshl_b32 s47, s95, 3
                s_lshr_b32 s48, s101, 2
                s_add_u32 s47, s47, s48
                s_lshl_b32 s47, s47, 2
                s_add_u32 s87, s47, {WS_D}""")
        if n == 4 and warm & 4: hop4("WS", "L_ws_ret")
        if n >= 2:
            A(f"s_waitcnt vmcnt({pace})")
        group(j, K, V, sr)
    g.stamp(1)
    A(f"""s_add_u32 s85, s42, 8
    s_and_b32 s85, s85, 15
    s_add_u32 s85, s85, 32
    s_add_u32 s47, s42, 12
    s_and_b32 s47, s47, 15
    s_add_u32 s47, s47, 240""")
    uoff(44, 47)
    A(f"""s_mov_b32 s45, 0
    {"s_mov_b32 s100, 1" if (xe or deep or rd or rbd or th < 999) else ""}
    {"s_mov_b32 s84, 16" if stamps else ""}
    v_and_b32 v{T}, 7, v1
    v_lshlrev_b32 v{T}, 4, v{T}
    s_waitcnt lgkmcnt(0)
    s_add_u32 s82, s80, 1
    s_and_b32 s80, s82, {TAGM}
    s_add_u32 s0, s82, 173
    s_and_b32 s0, s0, {TAGM}
    s_add_u32 s1, s82, 346
    s_and_b32 s1, s1, {TAGM}
    s_add_u32 s14, s82, 519
    s_and_b32 s14, s14, {TAGM}
    {f"s_lshr_b32 s47, {xm}, s95" if xe else ""}
    {"s_and_b32 s47, s47, 1" if xe else ""}
    {f"s_cselect_b32 s86, {xe + 1}, 0" if xe else ""}
    s_barrier
    ds_read_b128 v[{Q}:{Q+3}], v{T} offset:{L_Q}
    ds_read_b128 v[{Q+4}:{Q+7}], v{T} offset:{L_Q+128}
    ds_read_b128 v[{Q+8}:{Q+11}], v{T} offset:{L_Q+256}
    ds_read_b32 v{PA}, v{ZERO} offset:{L_DONE}
    s_waitcnt lgkmcnt(0)
    v_readfirstlane_b32 s89, v{PA}""")
    g.stamp(2)

    def softmax_part():
        for ctl in ["quad_perm:[1,0,3,2]", "quad_perm:[2,3,0,1]", "row_half_mirror"]:
            g.dpp("v_add_f32", SA, SA, SA, ctl)
            g.dpp("v_add_f32", SB, SB, SB, ctl)
            A("s_nop 0")
        skip = g.lab("L_skip")
        A(f"""v_cvt_pk_bf16_f32 v{T}, v{SA}, v{SB}
        v_lshlrev_b32 v{SA}, 16, v{T}
        v_and_b32 v{SB}, 0xffff0000, v{T}
        v_mul_f32 v{SA}, {SCALE}, v{SA}
        v_mul_f32 v{SB}, {SCALE}, v{SB}
        v_cvt_pk_bf16_f32 v{T}, v{SA}, v{SB}
        v_lshlrev_b32 v{SA}, 16, v{T}
        v_and_b32 v{SB}, 0xffff0000, v{T}
        v_max_f32 v{T}, v{SA}, v{SB}
        v_cmp_gt_f32 vcc, v{T}, v{MM}
        s_cbranch_vccz {skip}""")
        g.dpp("v_max_f32", T, T, T, "row_ror:8")
        g.allred_16_32("v_max_f32", T, PA)
        A(f"""v_max_f32 v{MM}, v{MM}, v{T}
        v_mul_f32 v{PA}, s46, v{MM}
        v_sub_f32 v{PB}, v{MC}, v{PA}
        v_exp_f32 v{PB}, v{PB}
        v_mov_b32 v{MC}, v{PA}
        v_mul_f32 v{LL}, v{LL}, v{PB}""")
        for r in range(12):
            A(f"v_mul_f32 v{ACC+r}, v{ACC+r}, v{PB}")
        A(f"""{skip}:
        v_fma_f32 v{PA}, v{SA}, s46, -v{MC}
        v_fma_f32 v{PB}, v{SB}, s46, -v{MC}
        v_exp_f32 v{PA}, v{PA}
        v_exp_f32 v{PB}, v{PB}
        s_nop 0
        v_add_f32 v{LL}, v{LL}, v{PA}
        v_cvt_pk_bf16_f32 v{PA}, v{PA}, v{PA}
        v_add_f32 v{LL}, v{LL}, v{PB}
        v_cvt_pk_bf16_f32 v{PB}, v{PB}, v{PB}""")
        for r in range(4):
            A(f"v_and_b32 v{A0+r}, v{PA}, v{M+r}")
        for r in range(4):
            A(f"v_and_b32 v{A1+r}, v{PB}, v{M+r}")

    def consume(j, K, V):
        if j < 2:
            for r in range(12):
                A(f"v_dot2c_f32_bf16 v{SA+j}, v{K+12*j+r}, v{Q+r}")
        else:
            Ar = A0 if j == 2 else A1
            for t in range(3):
                b = V + 12 * (j - 2) + 4 * t
                A(f"v_mfma_f32_16x16x32_bf16 v[{ACC+4*t}:{ACC+4*t+3}], v[{Ar}:{Ar+3}], v[{b}:{b+3}], v[{ACC+4*t}:{ACC+4*t+3}]")

    def dummies(n):
        for j in range(n):
            A(f"buffer_load_dword v{FL}, v{OOB}, s[36:39], 0 offen")

    def advance():
        A("""s_add_u32 s48, s85, 4
        s_and_b32 s48, s48, 15
        s_andn2_b32 s85, s85, 15
        s_add_u32 s85, s85, s48
        s_add_u32 s85, s85, 16""")

    def prog():
        if stamps:
            A("""s_waitcnt lgkmcnt(0)
            s_mov_b32 m0, s84
            s_add_u32 s84, s84, 1
            s_min_u32 s84, s84, 63
            v_writelane_b32 v168, s60, m0""")

    if warm & 2: A("@end")
    if warm & 4: A("@chain WS 4 L_ws_ret")
    A(f"L_F:\nv_mov_b32 v{SA}, 0\nv_mov_b32 v{SB}, 0")
    for j in range(4):
        if j == 2:
            A("s_nop 2"); softmax_part()
            if wolate == 2: A("s_cmp_lg_u32 s45, 0\ns_cbranch_scc1 L_Fl")
        A(f"s_waitcnt vmcnt({15 - 3*j})")
        consume(j, KB, VB)
    if wolate != 2: A("s_cmp_lg_u32 s45, 0\ns_cbranch_scc1 L_exit")
    if al: A(f".p2align {al}")
    A("L_loop:")
    if stamps: A("s_memrealtime s[60:61]")
    if deep: A(f"ds_read_b32 v{FL}, v{ZERO} offset:{L_FLAG}")
    if rbd: A(f"s_lshr_b32 s47, s85, 4\ns_cmp_eq_u32 s47, {rbd+1}\ns_cbranch_scc1 L_board\nL_board_ret:")
    def load1(n, sreg):
        j, t = divmod(n, 3)
        base = (KA if j < 2 else VA) + 12 * (j & 1) + 4 * t
        srd = 28 if j < 2 else 32
        A(f"buffer_load_dwordx4 v[{base}:{base+3}], v2, s[{srd}:{srd+3}], s{sreg} offen offset:{OFFS[3*(j&1)+t]}{P}")

    assert 4 <= wn <= 8 and fill4 and not (deep or rd or rbd or th < 999)
    A(f"v_mov_b32 v{SA}, 0\nv_mov_b32 v{SB}, 0")
    stubs = []
    for j in range(4):
        if j == 2:
            softmax_part()
        A(f"s_waitcnt vmcnt({wn - 3})")
        consume(j, KA, VA)
        ns = range(3*j + wn, 3*j + 3 + wn)
        cur = [n for n in ns if n < 12]
        nxt = [n - 12 for n in ns if n >= 12]
        if cur:
            A(f"s_cmp_lg_u32 s41, 0\ns_cbranch_scc1 L_sk{j}")
            for n in cur: load1(n, 43)
            A(f"L_sk{j}:")
        if j == 1 and nxt:
            A("s_cmp_ge_u32 s85, 240\ns_cbranch_scc1 L_st1")
            uoff(99, 85)
            for n in nxt: load1(n, 99)
            A("L_rt1:")
            stubs.append(len(nxt))
        if j == 2:
            prog()
            A("s_cmp_ge_u32 s85, 240\ns_cbranch_scc1 L_last")
            if not stubs: uoff(99, 85)
            for n in nxt: load1(n, 99)
            advance()
        if j == 3:
            for n in nxt: load1(n, 99)
            A("s_mov_b32 s43, s99\ns_mov_b32 s41, 0")
        if j == 1 and xe:
            A("s_lshr_b32 s47, s85, 4\ns_cmp_eq_u32 s47, s86\ns_cbranch_scc1 L_early\nL_early_ret:")
        if j == 1 and not stubs: A("s_nop 0")
    WO = KA

    def wo_load(j):
        o = j * 1280
        A(f"buffer_load_dwordx4 v[{WO+4*j}:{WO+4*j+3}], v3, s[36:39], s{72 if o < 4096 else 73} offen offset:{o if o < 4096 else o-5120}{P}")
    if deep or rd:
        if rd: A(f"s_cmp_lt_u32 s85, {16*(rd+1)}\ns_cbranch_scc1 L_loop")
        else: A("s_cmp_eq_u32 s47, 0\ns_cbranch_scc1 L_loop")
        group(2, KA, VA, 43); group(3, KA, VA, 43)
        for j in range(4): group(j, KB, VB, 44)
        A("s_mov_b32 s100, 0\nL_deep:")
        if stamps: A("s_memrealtime s[60:61]")
        A(f"v_mov_b32 v{SA}, 0\nv_mov_b32 v{SB}, 0")
        for j in range(4):
            if j == 2: softmax_part()
            A("s_waitcnt vmcnt(9)")
            consume(j, KA, VA)
            if j == 0:
                prog()
                A("s_cmp_ge_u32 s85, 240\ns_cselect_b32 s45, 1, 0\ns_cbranch_scc1 L_dsub0")
                uoff(43, 85)
                group(0, KA, VA, 43)
                advance()
                A("L_dret0:")
            elif j < 3:
                A(f"s_cmp_lg_u32 s45, 0\ns_cbranch_scc1 L_dsub{j}")
                group(j, KA, VA, 43)
                A(f"L_dret{j}:")
            else:
                A("s_cmp_lg_u32 s45, 0\ns_cbranch_scc1 L_F")
                group(3, KA, VA, 43)
                A("s_branch L_deep")
        for j in range(3):
            A(f"L_dsub{j}:")
            if wolate:
                dummies(3)
            else:
                for jj in range(3*j, min(3*j+3, 8)): wo_load(jj)
                if j == 2: dummies(1)
            A(f"s_branch L_dret{j}")
    else:
        A("s_branch L_loop")
    if stubs:
        A("L_st1:")
        dummies(stubs[0])
        A("s_branch L_rt1")
    if rbd:
        A(f"""L_board:
        s_cmp_lg_u32 s3, 0
        s_cbranch_scc1 L_board_ret
        global_load_dword v{FL}, v{BD}, s[26:27] sc1
        s_cmp_lg_u32 s86, 0
        s_cbranch_scc1 L_board_ret
        v_mul_u32_u24 v{PA}, 384, v1
        v_add_u32 v{PA}, s87, v{PA}
        v_mov_b32 v{PB}, s82
        s_mov_b64 exec, 0xff
        global_store_dword v{PA}, v{PB}, s[26:27] sc1
        s_mov_b64 exec, -1
        s_branch L_board_ret
        L_judge:
        s_cmp_eq_u32 s47, {rbd+3}
        s_cbranch_scc1 L_judge2
        s_cmp_gt_u32 s47, {rbd+3}
        s_cbranch_scc1 L_early_ret
        s_cmp_lg_u32 s3, 0
        s_cbranch_scc1 L_early_ret
        v_cmp_eq_u32 vcc, s82, v{FL}
        s_bcnt1_i32_b64 s48, vcc
        s_cmp_lt_u32 s48, {nq}
        s_cbranch_scc1 L_early_ret
        v_mov_b32 v{FL}, 1
        ds_write_b32 v{ZERO}, v{FL} offset:{L_FLAG}
        s_branch L_early_ret
        L_judge2:
        ds_read_b32 v{FL}, v{ZERO} offset:{L_FLAG}
        s_waitcnt lgkmcnt(0)
        v_cmp_eq_u32 vcc, 1, v{FL}
        s_cbranch_vccz L_early_ret""")
    if th < 999 or rbd or xe:
        A("L_early:\ns_mov_b32 s100, 0")
        for j in range(4): group(j, KB, VB, 44)
        A("s_branch L_early_ret")
    A("L_last:")
    g.stamp(3)
    A("s_mov_b32 s45, 1")
    if th < 999 or rbd or xe:
        A("s_cmp_eq_u32 s100, 0\ns_cbranch_scc1 L_last3")
    for j in range(4): group(j, KB, VB, 44)
    WO = KA

    def wo_loads():
        for j in range(8):
            o = j * 1280
            A(f"buffer_load_dwordx4 v[{WO+4*j}:{WO+4*j+3}], v3, s[36:39], s{72 if o < 4096 else 73} offen offset:{o if o < 4096 else o-5120}{P}")
    if wolate:
        if wn < 6:
            for n in range(6 + wn, 12): pass
        dummies(6)
        A(f"s_waitcnt vmcnt({18 + (stubs[0] if stubs else 0)})")
    else:
        wo_loads()
        A("s_waitcnt vmcnt(20)")
    if th < 999 or rbd or xe:
        A("s_branch L_last4\nL_last3:")
        if wolate:
            dummies(6)
            A("s_waitcnt vmcnt(6)")
        else:
            wo_loads()
            A("s_waitcnt vmcnt(8)")
        A("L_last4:")
    consume(3, KA, VA)
    A("s_branch L_F")
    if wolate == 2:
        A("L_Fl:")
        wo_loads()
        g.dpp("v_add_f32", LL, LL, LL, "row_ror:8")
        g.allred_16_32("v_add_f32", LL, T)
        A(f"ds_write_b64 v{LS}, v[{MC}:{LL}] offset:{L_ST}")
        A("s_waitcnt vmcnt(17)")
        consume(2, KB, VB)
        A("s_waitcnt vmcnt(14)")
        consume(3, KB, VB)
    A("L_exit:")
    if wolate == 1: wo_loads()
    g.stamp(4)
    if wolate != 2:
        g.dpp("v_add_f32", LL, LL, LL, "row_ror:8")
        g.allred_16_32("v_add_f32", LL, T)
    else:
        A("s_nop 6")
    O0, S0, XR = 108, 112, 96
    A(f"""{f"v_mov_b32 v{T}, 1" if deep else ""}
    ds_write_b128 v{LA}, v[{ACC}:{ACC+3}] offset:{L_ACC}
    ds_write_b128 v{LA}, v[{ACC+4}:{ACC+7}] offset:{L_ACC+1024}
    ds_write_b128 v{LA}, v[{ACC+8}:{ACC+11}] offset:{L_ACC+2048}
    {f"ds_write_b64 v{LS}, v[{MC}:{LL}] offset:{L_ST}" if wolate != 2 else ""}""")
    if deep: A(f"ds_write_b32 v{ZERO}, v{T} offset:{L_DONE}")
    A(f"""s_waitcnt lgkmcnt(0)
    s_barrier
    s_cmp_lg_u32 s83, 0
    s_cbranch_scc1 L_sdone""")
    if wolate == 3:
        for j in range(8):
            A(f"ds_read_b128 v[{WO+4*j}:{WO+4*j+3}], v3 offset:{L_WO+1024*j}")
    if sready:
        A("""L_pollR:
        s_load_dwordx8 s[4:11], s[26:27], s88 glc
        s_mov_b64 s[92:93], s[26:27]
        s_sub_u32 s58, s58, 1
        s_waitcnt lgkmcnt(0)""")
        for j in range(0, 8, 2):
            A(f"s_xor_b64 s[{4+j}:{5+j}], s[{4+j}:{5+j}], s[86:87]")
        A("""s_or_b64 s[4:5], s[4:5], s[6:7]
        s_or_b64 s[8:9], s[8:9], s[10:11]
        s_or_b64 s[4:5], s[4:5], s[8:9]
        s_cbranch_scc0 L_pollO
        s_and_b32 s47, s58, 63
        s_cbranch_scc1 L_pollR
        s_mov_b64 s[92:93], s[90:91]""")
    def ohead(b):
        g.dpp("v_max_f32", T, b + 4, b + 4, "quad_perm:[1,0,3,2]")
        A("s_nop 1")
        g.dpp("v_max_f32", T, T, T, "quad_perm:[2,3,0,1]")
        A(f"""v_sub_f32 v{T}, v{b+4}, v{T}
        v_exp_f32 v{T}, v{T}
        s_nop 0
        v_mul_f32 v136, v{b+5}, v{T}""")
        for e in range(4):
            A(f"v_mul_f32 v{132+e}, v{b+e}, v{T}")
    if osets == 2:
        O1 = 124

        def oissue(b):
            A(f"""global_load_dwordx4 v[{b}:{b+3}], v{OA}, s[92:93] sc1
            global_load_dwordx4 v[{b+4}:{b+7}], v{OS}, s[92:93] offset:768 sc1""")
        oissue(O0)
        A(f"s_sleep {ostag}\nL_pollO:")
        oissue(O1)
        A("s_waitcnt vmcnt(2)")
        g.tagcheck(list(range(O0, O0 + 8)), T)
        A("s_cbranch_vccz L_gotO")
        g.pick("s89")
        oissue(O0)
        A("s_waitcnt vmcnt(2)")
        g.tagcheck(list(range(O1, O1 + 8)), T)
        A("s_cbranch_vccz L_gotO1")
        g.spin("L_pollO", 0)
        A("L_gotO1:")
        ohead(O1)
        A("s_branch L_ocommon")
    else:
        A(f"""L_pollO:
        global_load_dwordx4 v[{O0}:{O0+3}], v{OA}, s[92:93] sc1
        global_load_dwordx4 v[{S0}:{S0+3}], v{OS}, s[92:93] offset:768 sc1
        s_waitcnt vmcnt(0)""")
        g.tagcheck(list(range(O0, O0 + 8)), T)
        A("s_cbranch_vccz L_gotO")
        if dual: g.pick("s89")
        g.spin("L_pollO", sleep)
    A("L_gotO:")
    g.stamp(5)
    ohead(O0)
    A("L_ocommon:")
    O0, S0 = 132, 135
    for ctl in ["quad_perm:[1,0,3,2]", "quad_perm:[2,3,0,1]"]:
        g.dpp("v_add_f32", S0 + 1, S0 + 1, S0 + 1, ctl)
        for e in range(4):
            g.dpp("v_add_f32", O0 + e, O0 + e, O0 + e, ctl)
    A(f"""v_rcp_f32 v{T}, v{S0+1}
    s_nop 0""")
    for e in range(4):
        A(f"v_mul_f32 v{O0+e}, v{O0+e}, v{T}")
    for e in range(4):
        A(f"v_cvt_pk_bf16_f32 v{O0+e}, v{O0+e}, v{O0+e}")
    for rq in range(8):
        A(f"ds_bpermute_b32 v{XR+rq}, v{BP0 if rq < 4 else BP1}, v{O0+(rq&3)}")
    D = ACC
    AR = [A0, A1, 116, 120]
    for rq in range(8):
        A(f"s_waitcnt lgkmcnt({7-rq})")
        Ar = AR[rq % 4]
        for r in range(4):
            A(f"v_and_b32 v{Ar+r}, v{XR+rq}, v{M+r}")
        if rq >= 1:
            p = rq - 1
            c = "0" if p == 0 else f"v[{D}:{D+3}]"
            A(f"v_mfma_f32_16x16x32_bf16 v[{D}:{D+3}], v[{AR[p%4]}:{AR[p%4]+3}], v[{WO+4*p}:{WO+4*p+3}], {c}")
    A(f"""s_nop 0
    v_mfma_f32_16x16x32_bf16 v[{D}:{D+3}], v[{AR[3]}:{AR[3]+3}], v[{WO+28}:{WO+31}], v[{D}:{D+3}]
    s_nop 7
    ds_write_b128 v{LY}, v[{D}:{D+3}] offset:{L_YP}
    s_waitcnt lgkmcnt(0)
    s_barrier""")
    if warm & 4: A("@end")
    A("L_sdone:")
    g.stamp(6)
    g.stamp_flush()
    A("s_endpgm")

    A("L_aux2:")
    if aprio != prio: A(f"s_setprio {aprio}")
    g.stamp(6)
    A(f"""s_mul_i32 s96, s95, 15
    s_add_u32 s96, s96, s101
    s_sub_u32 s69, s101, 15
    s_sub_u32 s70, s101, 24
    s_cmp_ge_u32 s101, 30
    s_cselect_b32 s69, s70, s69
    s_cselect_b32 s48, 0, s69
    s_lshl_b32 s70, s95, 3
    s_add_u32 s70, s70, s69
    s_add_u32 s70, s70, 120
    s_cmp_lt_u32 s48, 6
    s_cselect_b32 s70, s70, 255
    s_cmp_lt_u32 s101, 15
    s_cselect_b32 s96, s96, s70
    s_mul_i32 s59, s95, 10
    s_sub_u32 s69, s101, 21
    s_add_u32 s59, s59, s69
    s_cmp_lt_u32 s69, 10
    s_cselect_b32 s59, s59, 255
    s_lshl_b32 s68, s66, 3
    s_lshl_b32 s47, s67, 2
    s_add_u32 s68, s68, s47
    s_add_u32 s68, s68, s49
    s_lshl_b32 s68, s68, 10
    s_add_u32 s68, s68, {WS_O}
    s_add_u32 s98, s101, 17
    s_and_b32 s98, s98, 31
    s_cmp_ge_u32 s98, 30
    s_cselect_b32 s83, 1, 0
    s_mul_i32 s74, s95, 30
    s_add_u32 s74, s74, s98
    s_lshl_b32 s74, s74, 10
    s_add_u32 s74, s74, {WS_Y}
    s_lshl_b32 s47, s96, 10
    s_add_u32 s75, s47, {WS_G}
    s_add_u32 s48, s47, {WS_Y + 120*1024}
    s_cmp_lt_u32 s96, 120
    s_cselect_b32 s75, s75, s48
    s_mul_i32 s69, s96, 205
    s_lshr_b32 s69, s69, 10
    s_mul_i32 s70, s69, 5
    s_sub_u32 s70, s96, s70
    s_mov_b32 s63, 0
    s_cmp_lt_u32 s96, 120
    s_cbranch_scc1 L_gtask
    L_wo:""")
    if wolate == 3:
        A(f"""s_cmp_lg_u32 s83, 0
        s_cbranch_scc1 L_wo_done
        s_mul_i32 s47, s95, 30
        s_add_u32 s47, s47, s98
        s_mul_i32 s48, s47, 205
        s_lshr_b32 s48, s48, 10
        s_mul_i32 s72, s48, 5
        s_sub_u32 s72, s47, s72
        s_lshl_b32 s72, s72, 8
        s_mul_i32 s48, s48, 163840
        s_add_u32 s72, s72, s48
        s_mov_b32 s36, s12
        s_mov_b32 s37, s13
        v_lshrrev_b32 v{T0}, 4, v1
        v_mul_u32_u24 v{T0}, 10240, v{T0}
        v_and_b32 v{T1}, 15, v1
        v_lshl_add_u32 v{T0}, v{T1}, 4, v{T0}
        s_mov_b32 s73, {L_WO}
        s_mov_b32 s77, 1280
        L_wo_loop:
        s_mov_b32 m0, s73
        s_add_u32 s73, s73, 1024
        buffer_load_dwordx4 v{T0}, s[36:39], s72 offen{P} lds
        s_and_b32 s47, s73, 0x1c00
        s_cmp_eq_u32 s47, {L_WO & 0x1c00}
        s_cselect_b32 s47, {40960 - 7*1280}, s77
        s_add_u32 s72, s72, s47
        s_waitcnt vmcnt({ww - 1})
        s_cmp_lt_u32 s73, {L_WO + 32768}
        s_cbranch_scc1 L_wo_loop
        s_waitcnt vmcnt(0)
        L_wo_done:""")
    A(f"""s_sub_u32 s47, s96, 120
    s_cmp_lt_u32 s47, 60
    s_cbranch_scc0 L_ffn_done""")
    A(f"""s_sub_u32 s76, s69, 24
    s_mul_i32 s47, s76, 10240
    s_add_u32 s47, s47, {WS_G + 4096}
    v_lshl_add_u32 v{T0}, v1, 4, s47
    v_add_u32 v{T1}, 5120, v{T0}
    {f"s_sleep {gs0}" if gs0 else ""}
    L_pollG:
    s_sleep {lsleep}""")
    for j in range(5):
        A(f"global_load_dwordx4 v[{W+4*j}:{W+4*j+3}], v{T0}, s[26:27] offset:{j*1024-4096} sc1")
    for j in range(5):
        A(f"global_load_dwordx4 v[{W+20+4*j}:{W+20+4*j+3}], v{T1}, s[26:27] offset:{j*1024-4096} sc1")
    A("s_waitcnt vmcnt(0)")
    g.tagcheck(list(range(W, W + 40)), T2)
    A("s_cbranch_vccz L_gotG")
    g.spin("L_pollG", lsleep)
    A("L_gotG:")
    for f in range(2):
        for j in range(1, 5):
            for e in range(4):
                A(f"v_add_f32 v{W+20*f+e}, v{W+20*f+e}, v{W+20*f+4*j+e}")
    S0_, S1_ = W, W + 20
    GG, UU = W + 4, W + 8
    for e in range(4):
        A(f"v_mov_b32 v{GG+e}, v{S0_+e}\nv_mov_b32 v{UU+e}, v{S1_+e}")
    A("s_nop 1")
    for e in range(4):
        A(f"v_mov_b32_dpp v{GG+e}, v{S1_+e} row_ror:8 row_mask:0xf bank_mask:0xc")
        A(f"v_mov_b32_dpp v{UU+e}, v{S0_+e} row_ror:8 row_mask:0xf bank_mask:0x3")
    for e in range(4):
        gg, uu = GG + e, UU + e
        g.rbf(gg); g.rbf(uu)
        A(f"""v_mul_f32 v{T2}, v{gg}, v{gg}
        v_mul_f32 v{T2}, v{T2}, v{gg}
        v_mov_b32 v{T3}, v{gg}
        v_fmac_f32 v{T3}, 0x3d372713, v{T2}
        v_mul_f32 v{T3}, 0xc0135761, v{T3}
        v_exp_f32 v{T3}, v{T3}
        s_nop 0
        v_add_f32 v{T3}, 1.0, v{T3}
        v_rcp_f32 v{T3}, v{T3}
        s_nop 0
        v_mul_f32 v{gg}, v{gg}, v{T3}""")
        g.rbf(gg)
        A(f"v_mul_f32 v{gg}, v{gg}, v{uu}")
    A(f"""v_cvt_pk_bf16_f32 v{GG}, v{GG}, v{GG+1}
    v_cvt_pk_bf16_f32 v{GG+1}, v{GG+2}, v{GG+3}""")

    def wr_h():
        A(f"""v_and_b32 v{T1}, 15, v1
        v_lshlrev_b32 v{T1}, 4, v{T1}
        v_and_b32 v{T2}, 32, v1
        v_lshl_add_u32 v{T1}, v{T2}, 3, v{T1}
        v_bfe_u32 v{T2}, v1, 4, 1
        v_lshl_add_u32 v{T1}, v{T2}, 3, v{T1}
        ds_write_b64 v{T1}, v[{GG}:{GG+1}] offset:{L_X}""")

    xbuf_roundtrip(wr_h)
    A(f"""v_lshrrev_b32 v{T0}, 4, v1
    v_mul_u32_u24 v2, 40960, v{T0}
    v_and_b32 v{T1}, 15, v1
    v_lshl_add_u32 v2, v{T1}, 4, v2
    s_mul_i32 s47, s76, 163840
    s_lshl_b32 s48, s70, 8
    s_add_u32 s47, s47, s48
    v_add_u32 v2, s47, v2
    v_mov_b32 v3, 0
    s_mov_b32 s62, 1280
    v_lshl_add_u64 v[2:3], v[2:3], 0, s[20:21]""")
    nat_off(T2, T1)
    A(f"""v_add_u32 v{T2}, s75, v{T2}
    s_waitcnt lgkmcnt(0)
    s_branch L_tile2
    L_gtask:
    v_lshrrev_b32 v{T0}, 4, v1
    v_mul_u32_u24 v2, 98304, v{T0}
    v_and_b32 v{T1}, 7, v1
    v_lshl_add_u32 v2, v{T1}, 4, v2
    s_mul_i32 s47, s70, 393216
    s_lshl_b32 s48, s69, 7
    s_add_u32 s47, s47, s48
    v_add_u32 v2, s47, v2
    v_mov_b32 v3, 0
    s_mov_b32 s62, 3072
    v_and_b32 v{T1}, 8, v1
    v_cmp_eq_u32 vcc, 0, v{T1}
    v_mov_b32 v{T0}, s18
    v_mov_b32 v{T1}, s19
    v_mov_b32 v{T2}, s16
    v_mov_b32 v{T3}, s17
    v_cndmask_b32 v{T0}, v{T0}, v{T2}, vcc
    v_cndmask_b32 v{T1}, v{T1}, v{T3}, vcc
    v_lshl_add_u64 v[2:3], v[2:3], 0, v[{T0}:{T1}]
    v_lshl_add_u32 v{T2}, v1, 4, s75
    L_tile2:""")
    def t2_issue(i):
        A(f"global_load_dwordx4 v[{W+4*i}:{W+4*i+3}], v[2:3], off{P}")
        if i < 31:
            A("v_lshl_add_u64 v[2:3], v[2:3], 0, s[62:63]")
    for i in range(fw): t2_issue(i)
    tile_compute(fw, t2_issue)
    A(f"v_mov_b32 v{T1}, {TAGM}\ns_nop 7")
    g.tagput(range(DD, DD + 4), T1)
    A(f"""global_store_dwordx4 v{T2}, v[{DD}:{DD+3}], s[26:27] sc1
    s_cmp_lt_u32 s96, 120
    s_cbranch_scc1 L_wo
    L_ffn_done:""")
    g.stamp(7)
    GV, XO, YA = 8, 12, 16
    A(f"""s_cmp_ge_u32 s59, 80
    s_cbranch_scc1 L_c_done
    s_cmp_ge_u32 s59, 40
    s_cselect_b32 s78, 1, 0
    s_mul_i32 s47, s78, 40
    s_sub_u32 s77, s59, s47
    s_lshr_b32 s47, s77, 3
    s_lshl_b32 s47, s47, 10
    s_and_b32 s48, s77, 7
    s_lshl_b32 s48, s48, 6
    s_add_u32 s47, s47, s48
    s_lshl_b32 s48, s78, 9
    s_add_u32 s47, s47, s48
    s_add_u32 s47, s47, {WS_Y}
    v_lshrrev_b32 v{T0}, 2, v1
    v_mul_u32_u24 v{T0}, 5120, v{T0}
    v_and_b32 v{T1}, 3, v1
    v_lshl_add_u32 v{T0}, v{T1}, 4, v{T0}
    v_add_u32 v{YA}, s47, v{T0}
    v_add_u32 v{YA+1}, 81920, v{YA}
    v_add_u32 v{YA+2}, 81920, v{YA+1}
    v_add_u32 v{T0}, 81920, v{YA+2}
    s_mul_i32 s47, s78, 1280
    s_lshl_b32 s48, s77, 5
    s_add_u32 s47, s47, s48
    v_lshl_add_u32 v{YA+3}, v{T1}, 3, s47
    v_bfe_u32 v{T1}, v1, 4, 1
    v_lshl_add_u32 v{YA+3}, v{T1}, 2, v{YA+3}
    v_lshrrev_b32 v{T1}, 5, v1
    v_lshl_add_u32 v{YA+3}, v{T1}, 1, v{YA+3}
    global_load_ushort v{XO}, v{YA+3}, s[4:5]
    v_mov_b32 v{GV}, 0
    v_mov_b32 v{GV+1}, 0
    v_mov_b32 v{GV+2}, 0
    v_mov_b32 v{GV+3}, 0
    s_bfm_b64 exec, 48, 0
    {f"s_sleep {fs0}" if fs0 else ""}
    L_pollF:
    s_sleep {2*lsleep}
    global_load_dwordx4 v[{GV}:{GV+3}], v{T0}, s[26:27] sc1
    s_waitcnt vmcnt(0)""")
    g.tagcheck(list(range(GV, GV + 4)), T2)
    A("s_cbranch_vccz L_gotF")
    g.spin("L_pollF", lsleep)
    A("L_gotF:\ns_mov_b64 exec, -1\ns_nop 1")

    def red16(base):
        A(f"""v_permlane32_swap_b32 v{base}, v{base+1}
        v_permlane32_swap_b32 v{base+2}, v{base+3}
        s_nop 0
        v_add_f32 v{base}, v{base}, v{base+1}
        v_add_f32 v{base+2}, v{base+2}, v{base+3}
        s_nop 1
        v_permlane16_swap_b32 v{base}, v{base+2}
        s_nop 0
        v_add_f32 v{base}, v{base}, v{base+2}
        s_nop 1""")
        g.dpp("v_add_f32", base, base, base, "row_ror:4")
        A("s_nop 1")
        g.dpp("v_add_f32", base, base, base, "row_ror:8")

    red16(GV)
    A(f"v_lshlrev_b32 v{XO}, 16, v{XO}")
    g.rbf(GV)
    A(f"""v_mul_f32 v{T3}, 0xbfb8aa3b, v{GV}
    v_exp_f32 v{T3}, v{T3}
    s_nop 0
    v_add_f32 v{T3}, 1.0, v{T3}
    v_rcp_f32 v{T3}, v{T3}
    s_nop 0
    v_mul_f32 v{GV}, v{GV}, v{T3}""")
    g.rbf(GV)
    A("L_c_done:")
    g.stamp(8)
    MA = 20
    A(f"""v_lshrrev_b32 v{MA}, 4, v1
    v_lshlrev_b32 v{MA}, 10, v{MA}
    v_bfe_u32 v{T0}, v1, 1, 3
    v_lshl_add_u32 v{MA}, v{T0}, 4, v{MA}
    v_and_b32 v{T0}, 1, v1
    v_lshl_add_u32 v{MA}, v{T0}, 8, v{MA}
    v_mov_b32 v{MA+1}, 0
    v_lshl_add_u32 v{MA+2}, v1, 4, s68
    v_mov_b32 v{MA+3}, {TAGM}
    v_cmp_eq_u32 s[50:51], 48, v1""")
    nat_off(2, T1)
    A(f"""v_add_u32 v2, s74, v2
    v_lshlrev_b32 v{DD}, 4, v1""")
    if sready:
        A(f"""s_lshl_b32 s47, s66, 5
        s_lshl_b32 s48, s67, 2
        s_add_u32 s47, s47, s48
        s_add_u32 s47, s47, s49
        s_lshl_b32 s47, s47, 2
        s_add_u32 s47, s47, {WS_R}
        v_mov_b32 v3, s47
        v_mov_b32 v{T3}, s82""")
    if deep:
        A(f"""s_lshl_b32 s47, s95, 7
        s_add_u32 s47, s47, {WS_D}
        v_lshl_add_u32 v{T0}, v1, 2, s47
        s_lshl_b32 s48, s101, 2
        s_add_u32 s47, s47, s48
        v_mov_b32 v3, s47
        s_bfm_b64 exec, 32, 0
        L_pollD:
        s_sleep {dsleep}
        global_load_dword v{T1}, v{T0}, s[26:27] sc1
        ds_read_b32 v{T2}, v{MA+1} offset:{L_DONE}
        s_waitcnt vmcnt(0) lgkmcnt(0)
        v_cmp_ne_u32 vcc, 0, v{T2}
        s_cbranch_vccnz L_gotD
        v_cmp_eq_u32 vcc, s82, v{T1}
        s_bcnt1_i32_b64 s47, vcc
        s_cmp_ge_u32 s47, {ndone}
        s_cbranch_scc1 L_setD""")
        g.spin("L_pollD", 0)
        A(f"""L_setD:
        v_mov_b32 v{T1}, 1
        ds_write_b32 v{MA+1}, v{T1} offset:{L_FLAG}
        L_gotD:
        s_mov_b64 exec, -1
        v_mov_b32 v{T3}, s82""")
    if aprio != prio: A(f"s_setprio {prio}")
    if warm & 8: A("s_mov_b64 exec, 0\ns_branch WT_0\nL_wt_ret:\ns_mov_b64 exec, -1\ns_branch L_wt_go\n@chain WT 1 L_wt_ret\nL_wt_go:")
    A(f"""s_barrier
    ds_read_b128 v[{AX0}:{AX0+3}], v{MA+1} offset:{L_ST}
    ds_read_b128 v[{AX1}:{AX1+3}], v{MA+1} offset:{L_ST+16}""")
    g.stamp(9)
    for w in range(4):
        A(f"ds_read_b128 v[{W+8*w}:{W+8*w+3}], v{MA} offset:{L_ACC+3072*w}")
        A(f"ds_read_b128 v[{W+8*w+4}:{W+8*w+7}], v{MA} offset:{L_ACC+3072*w+640}")
    ms = [AX0, AX0 + 2, AX1, AX1 + 2]
    OD = W + 32
    A(f"""s_waitcnt lgkmcnt(8)
    v_max_f32 v{T0}, v{ms[0]}, v{ms[1]}
    v_max3_f32 v{T0}, v{T0}, v{ms[2]}, v{ms[3]}
    v_and_b32 v{T0}, s81, v{T0}""")
    for w in range(4):
        A(f"v_sub_f32 v{ms[w]}, v{ms[w]}, v{T0}")
    for w in range(4):
        A(f"v_exp_f32 v{ms[w]}, v{ms[w]}")
    A(f"s_nop 0\nv_mul_f32 v{T1}, v{ms[0]}, v{ms[0]+1}")
    for w in range(1, 4):
        A(f"v_fmac_f32 v{T1}, v{ms[w]}, v{ms[w]+1}")
    for w in range(4):
        A(f"s_waitcnt lgkmcnt({6-2*w})")
        for e in (0, 2):
            a_ = W + 8*w + e
            A(f"v_pk_add_f32 v[{a_}:{a_+1}], v[{a_}:{a_+1}], v[{a_+4}:{a_+5}]")
        for e in (0, 2):
            a_ = W + 8*w + e
            if w == 0:
                A(f"v_pk_mul_f32 v[{OD+e}:{OD+e+1}], v[{ms[0]}:{ms[0]+1}], v[{a_}:{a_+1}] op_sel_hi:[0,1]")
            else:
                A(f"v_pk_fma_f32 v[{OD+e}:{OD+e+1}], v[{ms[w]}:{ms[w]+1}], v[{a_}:{a_+1}], v[{OD+e}:{OD+e+1}] op_sel_hi:[0,1,1]")
    A(f"""v_cndmask_b32 v{OD}, v{OD}, v{T0}, s[50:51]
    v_cndmask_b32 v{OD+1}, v{OD+1}, v{T1}, s[50:51]""")
    g.tagput(range(OD, OD + 4), MA + 3)
    A(f"""s_bfm_b64 exec, 49, 0
    global_store_dwordx4 v{MA+2}, v[{OD}:{OD+3}], s[26:27]{'' if dual else ' sc1'}""")
    if sready: A(f"s_mov_b64 exec, 1\nglobal_store_dword v3, v{T3}, s[26:27]\ns_bfm_b64 exec, 49, 0")
    if dual: A(f"global_store_dwordx4 v{MA+2}, v[{OD}:{OD+3}], s[90:91] sc1")
    A("s_mov_b64 exec, -1")
    g.stamp(10)
    A(f"""s_cmp_lg_u32 s83, 0
    s_cbranch_scc1 L_noy
    s_barrier""")
    for w in range(4):
        A(f"ds_read_b128 v[{W+4*w}:{W+4*w+3}], v{DD} offset:{L_YP+1024*w}")
    for w in range(1, 4):
        A(f"s_waitcnt lgkmcnt({3-w})")
        for e in (0, 2):
            A(f"v_pk_add_f32 v[{W+e}:{W+e+1}], v[{W+e}:{W+e+1}], v[{W+4*w+e}:{W+4*w+e+1}]")
    g.tagput(range(W, W + 4), MA + 3)
    A(f"""global_store_dwordx4 v2, v[{W}:{W+3}], s[26:27] sc1
    L_noy:""")
    g.stamp(11)
    A(f"""s_cmp_ge_u32 s59, 80
    s_cbranch_scc1 L_adone""")
    YS = [W + 16 + 12 * j for j in range(ysets)]

    def yissue(j):
        for k in range(3):
            A(f"global_load_dwordx4 v[{YS[j]+4*k}:{YS[j]+4*k+3}], v{YA+k}, s[26:27] sc1")
    if ymiss < 64:
        A("L_pollY1:")
        yissue(0)
        A("s_waitcnt vmcnt(0)")
        g.tagcheck(list(range(YS[0], YS[0] + 12)), T2)
        A(f"""s_cbranch_vccz L_gotY0
        s_bcnt1_i32_b64 s47, vcc
        s_cmp_le_u32 s47, {ymiss}
        s_cbranch_scc1 L_pollY2""")
        g.spin("L_pollY1", ysleep)
        A("L_pollY2:")
    for j in range(ysets - 1):
        yissue(j)
        A(f"s_sleep {ystag}")
    A("L_pollY:")
    for j in range(ysets):
        yissue((j + ysets - 1) % ysets)
        A(f"s_waitcnt vmcnt({3*(ysets-1)})")
        g.tagcheck(list(range(YS[j], YS[j] + 12)), T2)
        A(f"s_cbranch_vccz L_gotY{j}")
    g.spin("L_pollY", sleep if ysets == 1 else 0)
    Y0 = YS[0]
    for j in range(ysets - 1, -1, -1):
        A(f"L_gotY{j}:")
        for e in (0, 2):
            A(f"v_pk_add_f32 v[{T0+e}:{T0+e+1}], v[{YS[j]+e}:{YS[j]+e+1}], v[{YS[j]+4+e}:{YS[j]+5+e}]")
        for e in (0, 2):
            A(f"v_pk_add_f32 v[{T0+e}:{T0+e+1}], v[{T0+e}:{T0+e+1}], v[{YS[j]+8+e}:{YS[j]+9+e}]")
        if j > 0: A("s_branch L_gotY")
    A("L_gotY:")
    g.stamp(12)
    A("s_nop 1")
    red16(T0)
    g.rbf(T0)
    A(f"v_mul_f32 v{T0}, v{T0}, v{GV}")
    g.rbf(T0)
    A(f"""v_add_f32 v{T0}, v{T0}, v{XO}
    s_mov_b32 exec_lo, 0x000f000f
    s_mov_b32 exec_hi, 0x000f000f
    v_cvt_pk_bf16_f32 v{T0}, v{T0}, v{T0}
    global_store_short v{YA+3}, v{T0}, s[22:23]
    s_cmp_lg_u32 s59, 79
    s_cbranch_scc1 L_adone
    s_mov_b64 exec, 1
    v_mov_b32 v{T2}, {WS_E}
    v_mov_b32 v{T1}, s82
    global_store_dword v{T2}, v{T1}, s[26:27]{' sc1' if dbg else ''}
    L_adone:
    s_mov_b64 exec, -1""")
    if warm & 8: A("@end")
    g.stamp(13)
    g.stamp_flush(True)
    A("L_end:\ns_endpgm")
    if cpf:
        A(f".fill (16384 - (. - {KN}))/4, 4, 0xbf810000")

    g.L = [x for x in insert_pads(g.L, space) if x.strip() not in ("@nopad", "@pad")]
    nv = 176 if stamps else 168
    out = [HDR + f"; @launch grid=(256,1,1) block=(320,1,1) lds={LDS_BYTES + (32768 if wolate == 3 else 0)}",
           '.amdgcn_target "amdgcn-amd-amdhsa--gfx950"', ".text", f".globl {KN}", ".p2align 8",
           f".type {KN},@function", f"{KN}:"] + g.L + [
        '.section .rodata,"a"', ".p2align 6", f".amdhsa_kernel {KN}",
        f"  .amdhsa_next_free_vgpr {nv}", "  .amdhsa_next_free_sgpr 102", f"  .amdhsa_accum_offset {nv}",
        "  .amdhsa_group_segment_fixed_size 0", "  .amdhsa_kernarg_size 96", "  .amdhsa_user_sgpr_count 2",
        "  .amdhsa_user_sgpr_kernarg_segment_ptr 1", "  .amdhsa_system_sgpr_workgroup_id_x 1",
        "  .amdhsa_float_denorm_mode_32 3", ".end_amdhsa_kernel"]
    return "\n".join(out) + "\n"


if __name__ == "__main__":
    kw = {}
    for kv in sys.argv[2:]:
        k, v = kv.split("=")
        kw[k] = int(v) if v.lstrip("-").isdigit() else v.replace("+", " ")
    open(sys.argv[1], "w").write(gen(**kw))
```

```python
import sys
KN = "recurrent_scan__gqa_block_cached__geglu_ffn__decode_kernel"

HDR = """; Kernarg layout for this problem (96 bytes, ptrs only, base s[0:1]):
;
"""

WS_Q = 0x00000
WS_E = 0x3F000
WS_O = 0x40000
WS_Y = 0x80000
WS_G = 0x100000
WS_D = 0x140000
WS_R = 0x141000
WS_B = 0x180000
WS_STAMP = 0x200000
TAGM = 0x1ff
TAGS = [80, 0, 1, 14]
L_X = 0
L_Q = 512
L_FLAG = 896
L_DONE = 900
L_ST = 960
L_YP = 1024
L_ACC = 5120
L_WO = 5120 + 12288 + 2048
LDS_BYTES = 5120 + 12288 + 2048

LOG2E = 0x3FB8AA3B
SCALE = 0x3D93CD3A


class G:
    def __init__(self, stamps, dbg):
        self.L = []
        self.stamps = stamps
        self.dbg = dbg
        self.nlab = 0

    def A(self, s):
        for x in s.split("\n"):
            x = x.strip()
            if x:
                self.L.append("    " + x if not x.endswith(":") else x)

    def lab(self, p="L"):
        self.nlab += 1
        return f"{p}_{self.nlab}"

    def stamp(self, idx):
        if not self.stamps:
            return
        self.A(f"""s_memrealtime s[60:61]
        s_waitcnt lgkmcnt(0)
        v_writelane_b32 v168, s60, {idx}""")

    def stamp_flush(self, aux=False):
        if not self.stamps:
            return
        if self.dbg:
            sel = ([(2, 1, 0), (3, 3, 0), (6, 8, 0), (7, 9, 0), (8, 9, 1), (9, 10, 0), (11, 11, 0), (12, 12, 0), (13, 13, 0), (14, 2, 0)] if aux
                   else [(0, 0, 1), (1, 0, 0), (4, 2, 0), (5, 2, 1), (10, 5, 0), (15, 1, 0)])
            self.A("s_mov_b64 exec, 1")
            lw = self.lab("L_dw"); lo = self.lab("L_dwo")
            self.A(f"""v_mov_b32 v170, {WS_E}
            s_mov_b32 s58, 20000
            {lw}:
            s_sleep 64
            global_load_dword v169, v170, s[26:27] sc1
            s_waitcnt vmcnt(0)
            v_and_b32 v169, {TAGM}, v169
            v_cmp_eq_u32 vcc, s80, v169
            s_cbranch_vccnz {lo}
            s_sub_u32 s58, s58, 1
            s_cmp_gt_i32 s58, 0
            s_cbranch_scc1 {lw}
            {lo}:
            s_sleep 64""")
            for slot, idx, inv in sel:
                l = self.lab("L_dbg")
                self.A(f"v_readlane_b32 s47, v168, {idx}\ns_nop 3\ns_cmp_eq_u32 s47, 0\ns_cbranch_scc1 {l}")
                if inv: self.A("s_not_b32 s47, s47")
                self.A(f"v_mov_b32 v169, s47\nv_mov_b32 v170, {slot*4}\nglobal_atomic_umax v170, v169, s[24:25]\n{l}:")
            self.A("s_mov_b64 exec, -1")
            return
        self.A(f"""s_getreg_b32 s47, hwreg(HW_REG_HW_ID)
        s_getreg_b32 s48, hwreg(HW_REG_XCC_ID)
        s_lshl_b32 s48, s48, 24
        s_and_b32 s47, s47, 0xffffff
        s_or_b32 s47, s47, s48
        s_or_b32 s47, s47, 0x80000000
        v_writelane_b32 v168, s47, 15
        s_mul_i32 s47, s2, 5
        s_add_u32 s47, s47, s79
        s_lshl_b32 s47, s47, 8
        s_add_u32 s47, s47, {WS_STAMP}
        v_lshl_add_u32 v169, v1, 2, s47
        global_store_dword v169, v168, s[26:27]""")

    def spin(self, back, sleep):
        if sleep: self.A(f"s_sleep {sleep}")
        self.A(f"""s_sub_u32 s58, s58, 1
        s_cmp_gt_i32 s58, 0
        s_cbranch_scc1 {back}""")

    def pick(self, mask):
        self.A(f"""s_and_b32 s47, s58, {mask}
        s_cmp_eq_u32 s47, 0
        s_cselect_b64 s[92:93], s[90:91], s[26:27]""")

    def allred_16_32(self, op, v, t):
        self.A(f"""v_mov_b32 v{t}, v{v}
        s_nop 1
        v_permlane16_swap_b32 v{v}, v{t}
        s_nop 0
        {op} v{v}, v{v}, v{t}
        v_mov_b32 v{t}, v{v}
        s_nop 1
        v_permlane32_swap_b32 v{v}, v{t}
        s_nop 0
        {op} v{v}, v{v}, v{t}""")

    def dpp(self, op, d, a, b, ctl, bank="0xf"):
        self.A(f"{op}_dpp v{d}, v{a}, v{b} {ctl} row_mask:0xf bank_mask:{bank}")

    def tagcheck(self, regs, t):
        for j, r in enumerate(regs):
            self.A(f"v_xor_b32 v{r}, s{TAGS[j & 3]}, v{r}")
        self.A(f"v_or_b32 v{t}, v{regs[0]}, v{regs[1]}")
        for j in range(2, len(regs), 2):
            self.A(f"v_or3_b32 v{t}, v{t}, v{regs[j]}, v{regs[j+1]}")
        self.A(f"v_and_b32 v{t}, {TAGM}, v{t}\nv_cmp_ne_u32 vcc, 0, v{t}")

    def tagput(self, regs, tg):
        for r in regs:
            self.A(f"v_add_u32 v{r}, {(TAGM+1)//2}, v{r}")
        for j, r in enumerate(regs):
            self.A(f"v_bfi_b32 v{r}, v{tg}, s{TAGS[j & 3]}, v{r}")

    def rbf(self, v):
        self.A(f"""v_cvt_pk_bf16_f32 v{v}, v{v}, v{v}
        v_and_b32 v{v}, 0xffff0000, v{v}""")

    def masks(self, M, t0, t1):
        self.A(f"""v_and_b32 v{t0}, 1, v1
        v_lshlrev_b32 v{t0}, 4, v{t0}
        v_mov_b32 v{t1}, 0xffff
        v_lshlrev_b32 v{t0}, v{t0}, v{t1}
        v_bfe_u32 v{t1}, v1, 1, 2
        v_cmp_eq_u32 s[50:51], 0, v{t1}
        v_cmp_eq_u32 s[52:53], 1, v{t1}
        v_cmp_eq_u32 s[54:55], 2, v{t1}
        v_cmp_eq_u32 s[56:57], 3, v{t1}
        s_nop 0
        v_cndmask_b32 v{M}, 0, v{t0}, s[50:51]
        v_cndmask_b32 v{M+1}, 0, v{t0}, s[52:53]
        v_cndmask_b32 v{M+2}, 0, v{t0}, s[54:55]
        v_cndmask_b32 v{M+3}, 0, v{t0}, s[56:57]""")


def isize(line):
    t = line.strip()
    if not t or t.endswith(":") or t.startswith((";", "@", ".")):
        return 0
    op = t.split()[0]
    if op.startswith(("buffer_", "global_", "ds_", "s_load", "s_memrealtime", "s_memtime", "v_mfma", "v_perm_b32", "v_cvt_pk", "v_lshl_add", "v_and_or",
                      "v_or3", "v_pk_", "v_bfi", "v_max3", "v_fma_", "v_bfe", "v_writelane", "v_readlane", "v_add3")) or "_dpp" in op:
        return 8
    if op.startswith(("v_cmp", "v_cndmask")) and "s[" in t:
        return 8
    import re
    args = t[len(op):]
    for m in re.finditer(r"(?<![\w\[:])(-?0x[0-9a-fA-F]+|-?\d+)(?![\w\]:.])", args):
        v = int(m.group(1), 0)
        if not (-16 <= v <= 64) and not op.startswith(("s_waitcnt", "s_nop", "s_sleep", "s_setprio")):
            return 8
    return 4


def insert_pads(L, space):
    out = []
    i = 0
    while i < len(L):
        t = L[i].strip()
        if not t.startswith("@chain"):
            out.append(L[i]); i += 1; continue
        _, name, n, ret = t.split(); n = int(n)
        j = i + 1
        body = []
        while L[j].strip() != "@end":
            body.append(L[j]); j += 1
        pos = []; acc = space; ok = True
        for k, ln in enumerate(body):
            tt = ln.strip()
            if tt == "@nopad":
                if ok and acc > 64: pos.append(k); acc = 0
                ok = False
                continue
            if tt == "@pad":
                ok = True
                continue
            sz = isize(ln)
            if ok and sz and acc + sz > space:
                pos.append(k); acc = 0
            acc += sz
        per = -(-len(pos) // n)
        lab = {}
        for q, k in enumerate(pos):
            c = q // per
            first = q % per == 0
            last = q % per == per - 1 or q == len(pos) - 1
            me = f"{name}_{c}" if first else f"{name}_p{q}"
            nxt = ret if last else f"{name}_p{q+1}"
            lab[k] = [f"{me}:", f"    s_cbranch_execz {nxt}"]
        extra = [f"{name}_{c}:" for c in range((len(pos) - 1) // per + 1, n)]
        if extra: lab[pos[-1]] = extra + lab[pos[-1]]
        for k, ln in enumerate(body):
            if k in lab: out += lab[k]
            if ln.strip() not in ("@nopad", "@pad"): out.append(ln)
        i = j + 1
    return out


def gen(tb=9, stamps=0, pol="nt", sleep=1, lsleep=16, prio=3, pace=3, pre=0, ph=97, deep=0, ndone=6, dsleep=16,
        th=999, dbg=0, cpf=0, dual=1, fill4=1, wolate=2, warm=14, space=192, fw=8, ysets=3, ystag=5, rbd=0, nq=32, rd=0, sready=0, ymiss=64, ysleep=12, touch=0, wprio=1, aprio=0, ww=8, osets=1, ostag=2, wn=6, qcount=0, blate=0, qdelay=0, gs0=0, fs0=0, al=0, xe=0, xm=0xf0, polk=None, polv=None, polw=None):
    global TAGM
    TAGM = (1 << tb) - 1
    g = G(stamps, dbg)
    A = g.A
    P = (" " + pol) if pol else ""
    PK = P if polk is None else ((" " + polk) if polk else "")
    PV = P if polv is None else ((" " + polv) if polv else "")
    if polw is not None: P = (" " + polw) if polw else ""
    M = 4
    A(f"""s_cmp_ge_u32 s2, 256
    s_cbranch_scc1 L_end
    s_load_dwordx16 s[4:19], s[0:1], 0
    s_load_dwordx8 s[20:27], s[0:1], 64
    v_lshrrev_b32 v2, 6, v0
    v_and_b32 v1, 63, v0
    v_readfirstlane_b32 s3, v2""")
    if stamps:
        A("v_mov_b32 v168, 0\ns_memrealtime s[60:61]\ns_mov_b32 s79, s3")
    A("""s_lshr_b32 s101, s2, 3
    s_and_b32 s95, s2, 7
    s_and_b32 s66, s101, 3
    s_lshl_b32 s47, s95, 2
    s_add_u32 s66, s66, s47
    s_bfe_u32 s67, s101, 0x10002
    s_lshr_b32 s49, s101, 3
    s_mul_i32 s96, s95, 30
    s_cmp_lg_u32 s3, 0
    s_cbranch_scc1 L_stream""")

    XP = 8; AX0 = 24; AX1 = 28; W = 32; DD = 160; T0, T1, T2, T3 = 164, 165, 166, 167
    A(f"""s_setprio {prio}
    s_add_u32 s97, s96, s101
    s_mul_i32 s69, s97, 205
    s_lshr_b32 s69, s69, 10
    s_mul_i32 s70, s69, 5
    s_sub_u32 s70, s97, s70
    v_lshrrev_b32 v{T0}, 4, v1
    v_and_b32 v{T1}, 7, v1
    v_bfe_u32 v{T2}, v1, 3, 1
    v_mul_u32_u24 v{T2}, 1280, v{T2}
    v_lshl_add_u32 v{T3}, v{T0}, 3, v{T1}
    v_lshl_add_u32 v{DD}, v{T3}, 4, v{T2}
    v_lshl_add_u32 v{DD+1}, v{T3}, 3, v{T2}
    s_lshl_b32 s47, s70, 8
    v_add_u32 v{DD+1}, s47, v{DD+1}
    v_mul_u32_u24 v2, 393216, v{T0}
    v_and_b32 v{T1}, 15, v1
    v_lshl_add_u32 v2, v{T1}, 4, v2
    s_mul_i32 s62, s70, 1572864
    s_lshl_b32 s48, s69, 8
    s_add_u32 s62, s62, s48
    v_mov_b32 v{XP+8}, 0
    v_mov_b32 v{XP+9}, 0
    v_mov_b32 v{XP+10}, 0
    v_mov_b32 v{XP+11}, 0
    s_mov_b32 s38, 7864320
    s_mov_b32 s39, 0x20000""")
    if warm & 1: A("s_mov_b64 exec, 0\ns_branch WI_0\nL_wi_ret:\ns_mov_b64 exec, -1")
    A("s_waitcnt lgkmcnt(0)")
    if stamps:
        A("v_writelane_b32 v168, s60, 0")
    A(f"""s_mov_b32 s36, s10
    s_mov_b32 s37, s11
    global_load_dwordx4 v[{XP}:{XP+3}], v{DD}, s[4:5]
    global_load_dwordx4 v[{XP+4}:{XP+7}], v{DD}, s[4:5] offset:512
    global_load_dwordx2 v[{XP+12}:{XP+13}], v{DD+1}, s[4:5]
    s_bfm_b64 exec, 32, 0
    global_load_dwordx4 v[{XP+8}:{XP+11}], v{DD}, s[4:5] offset:1024
    s_mov_b64 exec, -1
    s_load_dword s80, s[26:27], {WS_E}
    s_cmp_ge_u32 s101, 30
    s_cbranch_scc1 L_noq1""")
    if warm & 1: A("@chain WI 1 L_wi_ret")
    for i in range(32):
        A(f"buffer_load_dwordx4 v[{W+4*i}:{W+4*i+3}], v2, s[36:39], s62 offen{P}")
        if i < 31:
            A("s_add_u32 s62, s62, 12288")
    if warm & 1: A("@end")
    A(f"""L_noq1:
    s_barrier""")
    if warm & 2: A("@chain WA 4 L_wa_ret")
    g.stamp(1)
    g.masks(M, T0, T1)
    A(f"""s_mov_b32 s81, {(~TAGM) & 0xffffffff}
    s_mov_b32 s64, 0x01000100
    s_mov_b32 s65, 0x03020302
    s_mov_b32 s58, 399999
    s_add_u32 s90, s26, {WS_B}
    s_addc_u32 s91, s27, 0
    v_mov_b32 v{T0}, 0
    v_mov_b32 v{T1}, 0
    ds_write_b64 v{T0}, v[{T0}:{T1}] offset:{L_FLAG}
    s_waitcnt lgkmcnt(0)
    s_add_u32 s82, s80, 1
    s_and_b32 s80, s82, {TAGM}
    s_add_u32 s0, s82, 173
    s_and_b32 s0, s0, {TAGM}
    s_add_u32 s1, s82, 346
    s_and_b32 s1, s1, {TAGM}
    s_add_u32 s14, s82, 519
    s_and_b32 s14, s14, {TAGM}
    s_mov_b32 s84, 1
    s_cmp_ge_u32 s101, 30
    s_cbranch_scc1 L_qgather""")
    SUM, VAR, MEAN = T0, T1, T2
    A(f"""s_mov_b32 s47, 0x3f803f80
    s_waitcnt vmcnt(32)""")
    for r in range(12):
        A(f"v_dot2c_f32_bf16 v{SUM}, s47, v{XP+r}")
    A("s_nop 2")

    def allred_stats(v, t):
        for ctl in ["quad_perm:[1,0,3,2]", "quad_perm:[2,3,0,1]", "row_half_mirror"]:
            g.dpp("v_add_f32", v, v, v, ctl)
            A("s_nop 1")
        g.allred_16_32("v_add_f32", v, t)

    allred_stats(SUM, T3)
    A(f"v_mul_f32 v{MEAN}, 0x3acccccd, v{SUM}")
    for r in range(12):
        if r == 8:
            A("s_bfm_b64 exec, 32, 0")
        A(f"""v_lshlrev_b32 v{AX1}, 16, v{XP+r}
        v_and_b32 v{AX1+1}, 0xffff0000, v{XP+r}
        v_sub_f32 v{AX1}, v{AX1}, v{MEAN}
        v_sub_f32 v{AX1+1}, v{AX1+1}, v{MEAN}
        v_fmac_f32 v{VAR}, v{AX1}, v{AX1}
        v_fmac_f32 v{VAR}, v{AX1+1}, v{AX1+1}""")
    A("s_mov_b64 exec, -1\ns_nop 1")
    allred_stats(VAR, T3)
    A(f"v_mul_f32 v{VAR}, 0x3acccccd, v{VAR}")
    g.rbf(VAR)
    g.rbf(MEAN)
    A(f"v_add_f32 v{VAR}, 0x3727c5ac, v{VAR}")
    g.rbf(VAR)
    A(f"v_sqrt_f32 v{VAR}, v{VAR}\ns_nop 0")
    g.rbf(VAR)
    A(f"v_rcp_f32 v{VAR}, v{VAR}")
    for k in range(2):
        r = XP + 12 + k
        A(f"""v_lshlrev_b32 v{AX1}, 16, v{r}
        v_and_b32 v{AX1+1}, 0xffff0000, v{r}
        v_sub_f32 v{AX1}, v{AX1}, v{MEAN}
        v_sub_f32 v{AX1+1}, v{AX1+1}, v{MEAN}
        v_cvt_pk_bf16_f32 v{r}, v{AX1}, v{AX1+1}
        v_lshlrev_b32 v{AX1}, 16, v{r}
        v_and_b32 v{AX1+1}, 0xffff0000, v{r}
        v_mul_f32 v{AX1}, v{AX1}, v{VAR}
        v_mul_f32 v{AX1+1}, v{AX1+1}, v{VAR}
        v_cvt_pk_bf16_f32 v{r}, v{AX1}, v{AX1+1}""")

    def xbuf_roundtrip(src):
        A(f"""v_lshrrev_b32 v{T0}, 4, v1
        v_lshlrev_b32 v{T0}, 6, v{T0}
        v_and_b32 v{T1}, 8, v1
        v_lshl_add_u32 v{T0}, v{T1}, 5, v{T0}""")
        src()
        A("s_waitcnt lgkmcnt(0)")
        for j in range(4):
            A(f"ds_read_b128 v[{XP+4*j}:{XP+4*j+3}], v{T0} offset:{L_X+16*j}")

    def wr_x():
        A(f"""v_and_b32 v{T1}, 7, v1
        v_lshl_add_u32 v{T1}, v{T1}, 3, v{T0}
        ds_write_b64 v{T1}, v[{XP+12}:{XP+13}] offset:{L_X}""")

    def tile_compute(win=32, issue=None):
        for i in range(32):
            Ar = AX0 if i % 2 == 0 else AX1
            if issue and i > 0 and i - 1 + win < 32:
                issue(i - 1 + win)
            A(f"v_perm_b32 v{T3}, v{XP+(i>>1)}, v{XP+(i>>1)}, s{64+(i&1)}")
            for r in range(4):
                A(f"v_and_b32 v{Ar+r}, v{T3}, v{M+r}")
            A(f"s_waitcnt vmcnt({min(31-i, win-1)})")
            A("s_nop 0")
            c = "0" if i == 0 else f"v[{DD}:{DD+3}]"
            A(f"v_mfma_f32_16x16x32_bf16 v[{DD}:{DD+3}], v[{Ar}:{Ar+3}], v[{W+4*i}:{W+4*i+3}], {c}")

    def nat_off(dst, tmp):
        A(f"""v_and_b32 v{dst}, 15, v1
        v_lshlrev_b32 v{dst}, 5, v{dst}
        v_and_b32 v{tmp}, 16, v1
        v_add_u32 v{dst}, v{dst}, v{tmp}
        v_and_b32 v{tmp}, 32, v1
        v_lshl_add_u32 v{dst}, v{tmp}, 4, v{dst}""")

    if warm & 2: A("@end\n@chain WQ 4 L_wq_ret")
    xbuf_roundtrip(wr_x)
    nat_off(T2, T1)
    A(f"""s_lshl_b32 s47, s97, 10
    v_add_u32 v{T2}, s47, v{T2}
    v_mov_b32 v{T1}, {TAGM}
    s_mov_b32 s84, 0
    s_waitcnt lgkmcnt(0)""")
    g.stamp(2)
    tile_compute()
    A("s_nop 7")
    g.tagput(range(DD, DD + 4), T1)
    A(f"global_store_dwordx4 v{T2}, v[{DD}:{DD+3}], s[26:27]{'' if dual else ' sc1'}")
    g.stamp(3)
    A(f"""L_qgather:
    s_mul_i32 s47, s66, 192
    v_lshl_add_u32 v{T0}, v1, 2, s47
    v_lshrrev_b32 v{T3}, 7, v{T0}
    v_mul_u32_u24 v{T3}, 5120, v{T3}
    v_and_b32 v{T0}, 127, v{T0}
    v_lshl_add_u32 v{T3}, v{T0}, 2, v{T3}
    s_lshl_b32 s47, s67, 9
    s_add_u32 s47, s47, {WS_Q + 2048}
    v_add_u32 v{T3}, s47, v{T3}
    s_bfm_b64 s[86:87], 48, 0
    s_mov_b64 s[88:89], s[86:87]
    s_mov_b64 s[98:99], s[86:87]
    s_mov_b64 s[76:77], s[86:87]
    s_mov_b64 s[74:75], s[86:87]
    s_mov_b64 s[92:93], s[26:27]
    {f"s_sleep {qdelay}" if qdelay else ""}
    @nopad
    L_pollQ:""")
    QM = [86, 88, 98, 76, 74]
    for rb in range(5):
        A(f"s_mov_b64 exec, s[{QM[rb]}:{QM[rb]+1}]")
        l = g.lab("L_pq")
        A(f"s_cbranch_execz {l}")
        A(f"global_load_dwordx4 v[{W+4*rb}:{W+4*rb+3}], v{T3}, s[92:93] offset:{rb*1024-2048} sc1")
        A(f"{l}:")
    if dual:
        if blate: A(f"s_cmp_gt_u32 s58, {399999 - blate}\ns_cbranch_scc1 L_pq_w0")
        A(f"""s_cmp_lg_u32 s84, 0
        s_cbranch_scc1 L_pq_w0
        s_mov_b32 s84, 1
        s_mov_b64 exec, -1
        global_store_dwordx4 v{T2}, v[{DD}:{DD+3}], s[90:91] sc1
        s_waitcnt vmcnt(1)
        s_branch L_pq_w1
        L_pq_w0:""")
    A("s_waitcnt vmcnt(0)\nL_pq_w1:\ns_mov_b64 exec, -1\n@pad\ns_nop 0\n@nopad")
    if qcount:
        A("""s_memrealtime s[60:61]
        s_sub_u32 s47, 400015, s58
        s_min_u32 s47, s47, 40
        s_mov_b32 m0, s47
        s_waitcnt lgkmcnt(0)
        v_writelane_b32 v168, s60, m0""")
    for rb in range(5):
        A(f"s_mov_b64 exec, s[{QM[rb]}:{QM[rb]+1}]")
        g.tagcheck(list(range(W + 4*rb, W + 4*rb + 4)), T0)
        A(f"s_mov_b64 s[{QM[rb]}:{QM[rb]+1}], vcc")
    A(f"""s_or_b64 s[50:51], s[{QM[0]}:{QM[0]+1}], s[{QM[1]}:{QM[1]+1}]
    s_or_b64 s[52:53], s[{QM[2]}:{QM[2]+1}], s[{QM[3]}:{QM[3]+1}]
    s_or_b64 s[50:51], s[50:51], s[{QM[4]}:{QM[4]+1}]
    s_or_b64 s[50:51], s[50:51], s[52:53]
    s_cbranch_scc0 L_gotQ""")
    if dual: g.pick(7)
    g.spin("L_pollQ", 0)
    A("L_gotQ:\ns_bfm_b64 exec, 48, 0\n@pad")
    if dual:
        A(f"""s_cmp_eq_u32 s92, s26
        s_cselect_b32 s47, 63, 0
        v_mov_b32 v{T1}, s47
        v_mov_b32 v{T0}, 0
        ds_write_b32 v{T0}, v{T1} offset:{L_DONE}""")
    g.stamp(5)
    A(f"v_lshlrev_b32 v{T0}, 3, v1")
    for rb in range(1, 5):
        for e in range(4):
            A(f"v_add_f32 v{W+e}, v{W+e}, v{W+4*rb+e}")
    A(f"""v_cvt_pk_bf16_f32 v{W}, v{W}, v{W+1}
    v_cvt_pk_bf16_f32 v{W+1}, v{W+2}, v{W+3}
    ds_write_b64 v{T0}, v[{W}:{W+1}] offset:{L_Q}
    s_mov_b64 exec, -1
    s_waitcnt lgkmcnt(0)
    s_barrier""")
    if blate:
        A(f"""s_cmp_lg_u32 s84, 0
        s_cbranch_scc1 L_aux2
        global_store_dwordx4 v{T2}, v[{DD}:{DD+3}], s[90:91] sc1""")
    A(f"""s_branch L_aux2
    @nopad""")

    Q = 8; ACC = 20; A0 = 32; A1 = 36
    SA, SB, T, MM, MC, LL, PA, PB = 40, 41, 42, 43, 44, 45, 46, 47
    KA, VA, KB, VB = 48, 72, 96, 120
    FL, OOB, ZERO = 144, 145, 146
    OA, OS, BP0, BP1, LA, LS, LY = 148, 149, 150, 151, 152, 153, 154
    CP = 156
    BD = 155
    OFFS = [0, 128, 256, 3072, 3200, 3328]

    def group(j, K, V, sreg):
        base = (K if j < 2 else V) + 12 * (j & 1)
        srd = 28 if j < 2 else 32
        for t in range(3):
            A(f"buffer_load_dwordx4 v[{base+4*t}:{base+4*t+3}], v2, s[{srd}:{srd+3}], s{sreg} offen offset:{OFFS[3*(j&1)+t]}{PK if j < 2 else PV}")

    def uoff(dst, src):
        A(f"""s_add_u32 s48, s{src}, s94
        s_and_b32 s48, s48, 255
        s_mul_i32 s48, s48, 6144
        s_add_u32 s{dst}, s40, s48""")

    A(f"""L_stream:
    s_sub_u32 s3, s3, 1
    s_lshl_b32 s42, s49, 2
    s_add_u32 s42, s42, s3
    s_lshl_b32 s40, s67, 5
    s_add_u32 s40, s40, s66
    s_mul_i32 s94, s40, {ph}
    s_mul_i32 s40, s40, 1572864
    v_lshrrev_b32 v2, 3, v1
    v_mul_u32_u24 v2, 384, v2
    v_and_b32 v3, 7, v1
    v_lshl_add_u32 v2, v3, 4, v2""")
    uoff(44, 42)
    A("""s_add_u32 s47, s42, 4
    s_and_b32 s47, s47, 15
    s_add_u32 s47, s47, 16""")
    uoff(43, 47)
    if cpf:
        A(f"""s_getpc_b64 s[50:51]
        L_pc:
        s_lshl_b32 s47, s3, 12
        s_sub_u32 s47, s47, L_pc-{KN}
        s_ashr_i32 s48, s47, 31
        s_add_u32 s50, s50, s47
        s_addc_u32 s51, s51, s48
        v_lshlrev_b32 v{CP}, 4, v1
        v_mov_b32 v{CP+1}, 0
        v_lshl_add_u64 v[{CP}:{CP+1}], v[{CP}:{CP+1}], 0, s[50:51]""")
        for j in range(4):
            A(f"global_load_dwordx4 v[{CP+4}:{CP+7}], v[{CP}:{CP+1}], off offset:{j*1024}")
    A("""s_mov_b32 s30, 100663296
    s_mov_b32 s31, 0x20000
    s_mov_b32 s34, 100663296
    s_mov_b32 s35, 0x20000""")

    def hop4(name, ret):
        A(f"""@nopad
        s_mov_b64 exec, 0
        s_cmp_eq_u32 s3, 0
        s_cbranch_scc1 {name}_0
        s_cmp_eq_u32 s3, 1
        s_cbranch_scc1 {name}_1
        s_cmp_eq_u32 s3, 2
        s_cbranch_scc1 {name}_2
        s_branch {name}_3
        {ret}:
        s_mov_b64 exec, -1
        @pad""")
    if warm & 2: hop4("WA", "L_wa_ret")
    A("s_waitcnt lgkmcnt(0)")
    if stamps:
        A("v_writelane_b32 v168, s60, 0")
    A("""s_mov_b32 s28, s6
    s_mov_b32 s29, s7
    s_mov_b32 s32, s8
    s_mov_b32 s33, s9""")
    if touch:
        A(f"buffer_load_dword v{FL}, v2, s[28:31], s44 offen{P}\nbuffer_load_dword v{FL}, v2, s[32:35], s44 offen{P}")
    if wprio: A(f"s_setprio {wprio}")
    seq = [(0, KB, VB, 44), (1, KB, VB, 44), (2, KB, VB, 44), (3, KB, VB, 44), (0, KA, VA, 43), (1, KA, VA, 43)]
    if fill4: seq += [(2, KA, VA, 43), (3, KA, VA, 43)]
    for n, (j, K, V, sr) in enumerate(seq):
        if n == pre:
            A("s_barrier")
        if n == 2:
            if warm & 2: hop4("WQ", "L_wq_ret")
            A(f"s_load_dword s80, s[26:27], {WS_E}")
            g.masks(M, T, PA)
            A(f"""s_add_u32 s98, s101, 17
            s_and_b32 s98, s98, 31
            s_cmp_ge_u32 s98, 30
            s_cselect_b32 s83, 1, 0
            s_add_u32 s98, s98, s96
            s_mul_i32 s69, s98, 205
            s_lshr_b32 s69, s69, 10
            s_mul_i32 s70, s69, 5
            s_sub_u32 s70, s98, s70
            s_mov_b32 s36, s12
            s_mov_b32 s37, s13
            s_mov_b32 s38, 7864320
            s_mov_b32 s39, 0x20000
            s_lshl_b32 s71, s69, 2
            s_add_u32 s71, s71, s3
            s_mul_i32 s72, s71, 40960
            s_lshl_b32 s47, s70, 8
            s_add_u32 s72, s72, s47
            s_add_u32 s73, s72, 5120
            v_lshrrev_b32 v3, 4, v1
            v_mul_u32_u24 v3, 10240, v3
            v_and_b32 v{T}, 15, v1
            v_lshl_add_u32 v3, v{T}, 4, v3
            s_lshl_b32 s47, s83, 30
            v_add_u32 v3, s47, v3
            {f"s_lshl_b32 s47, s3, 13" if wolate == 3 else ""}
            {f"v_lshl_add_u32 v3, v1, 4, s47" if wolate == 3 else ""}
            s_mov_b32 s41, 1
            s_mov_b32 s46, {LOG2E}
            s_mov_b32 s58, 399999
            s_add_u32 s90, s26, {WS_B}
            s_addc_u32 s91, s27, 0
            s_mov_b64 s[92:93], s[26:27]""")
            if touch: A(f"buffer_load_dword v{FL}, v3, s[36:39], s72 offen{P}")
        if n == 3:
            for r in range(12):
                A(f"v_mov_b32 v{ACC+r}, 0")
            A(f"""v_mov_b32 v{MM}, 0xff800000
            v_mov_b32 v{MC}, 0xff800000
            v_mov_b32 v{LL}, 0
            v_mov_b32 v{OOB}, 0x7ff00000
            v_mov_b32 v{ZERO}, 0
            s_mul_i32 s47, s71, 171
            s_lshr_b32 s47, s47, 10
            s_mul_i32 s48, s47, 6
            s_sub_u32 s48, s71, s48
            {"s_lshl_b32 s88, s47, 7" if sready else ""}
            {f"s_add_u32 s88, s88, {WS_R}" if sready else ""}
            s_lshl_b32 s47, s47, 13
            s_add_u32 s47, s47, {WS_O}
            v_and_b32 v{OS}, 7, v1
            v_lshl_add_u32 v{OS}, v{OS}, 10, s47
            v_lshrrev_b32 v{OA}, 3, v1
            s_lshl_b32 s48, s48, 7
            v_lshl_add_u32 v{OA}, v{OA}, 4, s48
            v_add_u32 v{OA}, v{OA}, v{OS}
            v_lshrrev_b32 v{BP0}, 4, v1
            v_lshlrev_b32 v{BP0}, 6, v{BP0}
            v_and_b32 v{BP1}, 8, v1
            v_lshl_add_u32 v{BP0}, v{BP1}, 1, v{BP0}
            v_add_u32 v{BP1}, 32, v{BP0}
            s_mul_i32 s47, s3, 3072
            v_lshl_add_u32 v{LA}, v1, 4, s47
            s_lshl_b32 s47, s3, 3
            v_mov_b32 v{LS}, s47
            s_lshl_b32 s47, s3, 10
            v_lshl_add_u32 v{LY}, v1, 4, s47""")
            if rbd:
                A(f"""s_mul_i32 s47, s95, 384
                s_add_u32 s47, s47, {WS_D}
                v_lshl_add_u32 v{BD}, v1, 2, s47
                s_and_b32 s86, s101, 3
                s_lshl_b32 s47, s95, 3
                s_lshr_b32 s48, s101, 2
                s_add_u32 s47, s47, s48
                s_lshl_b32 s47, s47, 2
                s_add_u32 s87, s47, {WS_D}""")
        if n == 4 and warm & 4: hop4("WS", "L_ws_ret")
        if n >= 2:
            A(f"s_waitcnt vmcnt({pace})")
        group(j, K, V, sr)
    g.stamp(1)
    A(f"""s_add_u32 s85, s42, 8
    s_and_b32 s85, s85, 15
    s_add_u32 s85, s85, 32
    s_add_u32 s47, s42, 12
    s_and_b32 s47, s47, 15
    s_add_u32 s47, s47, 240""")
    uoff(44, 47)
    A(f"""s_mov_b32 s45, 0
    {"s_mov_b32 s100, 1" if (xe or deep or rd or rbd or th < 999) else ""}
    {"s_mov_b32 s84, 16" if stamps else ""}
    v_and_b32 v{T}, 7, v1
    v_lshlrev_b32 v{T}, 4, v{T}
    s_waitcnt lgkmcnt(0)
    s_add_u32 s82, s80, 1
    s_and_b32 s80, s82, {TAGM}
    s_add_u32 s0, s82, 173
    s_and_b32 s0, s0, {TAGM}
    s_add_u32 s1, s82, 346
    s_and_b32 s1, s1, {TAGM}
    s_add_u32 s14, s82, 519
    s_and_b32 s14, s14, {TAGM}
    {f"s_lshr_b32 s47, {xm}, s95" if xe else ""}
    {"s_and_b32 s47, s47, 1" if xe else ""}
    {f"s_cselect_b32 s86, {xe + 1}, 0" if xe else ""}
    s_barrier
    ds_read_b128 v[{Q}:{Q+3}], v{T} offset:{L_Q}
    ds_read_b128 v[{Q+4}:{Q+7}], v{T} offset:{L_Q+128}
    ds_read_b128 v[{Q+8}:{Q+11}], v{T} offset:{L_Q+256}
    ds_read_b32 v{PA}, v{ZERO} offset:{L_DONE}
    s_waitcnt lgkmcnt(0)
    v_readfirstlane_b32 s89, v{PA}""")
    g.stamp(2)

    def softmax_part():
        for ctl in ["quad_perm:[1,0,3,2]", "quad_perm:[2,3,0,1]", "row_half_mirror"]:
            g.dpp("v_add_f32", SA, SA, SA, ctl)
            g.dpp("v_add_f32", SB, SB, SB, ctl)
            A("s_nop 0")
        skip = g.lab("L_skip")
        A(f"""v_cvt_pk_bf16_f32 v{T}, v{SA}, v{SB}
        v_lshlrev_b32 v{SA}, 16, v{T}
        v_and_b32 v{SB}, 0xffff0000, v{T}
        v_mul_f32 v{SA}, {SCALE}, v{SA}
        v_mul_f32 v{SB}, {SCALE}, v{SB}
        v_cvt_pk_bf16_f32 v{T}, v{SA}, v{SB}
        v_lshlrev_b32 v{SA}, 16, v{T}
        v_and_b32 v{SB}, 0xffff0000, v{T}
        v_max_f32 v{T}, v{SA}, v{SB}
        v_cmp_gt_f32 vcc, v{T}, v{MM}
        s_cbranch_vccz {skip}""")
        g.dpp("v_max_f32", T, T, T, "row_ror:8")
        g.allred_16_32("v_max_f32", T, PA)
        A(f"""v_max_f32 v{MM}, v{MM}, v{T}
        v_mul_f32 v{PA}, s46, v{MM}
        v_sub_f32 v{PB}, v{MC}, v{PA}
        v_exp_f32 v{PB}, v{PB}
        v_mov_b32 v{MC}, v{PA}
        v_mul_f32 v{LL}, v{LL}, v{PB}""")
        for r in range(12):
            A(f"v_mul_f32 v{ACC+r}, v{ACC+r}, v{PB}")
        A(f"""{skip}:
        v_fma_f32 v{PA}, v{SA}, s46, -v{MC}
        v_fma_f32 v{PB}, v{SB}, s46, -v{MC}
        v_exp_f32 v{PA}, v{PA}
        v_exp_f32 v{PB}, v{PB}
        s_nop 0
        v_add_f32 v{LL}, v{LL}, v{PA}
        v_cvt_pk_bf16_f32 v{PA}, v{PA}, v{PA}
        v_add_f32 v{LL}, v{LL}, v{PB}
        v_cvt_pk_bf16_f32 v{PB}, v{PB}, v{PB}""")
        for r in range(4):
            A(f"v_and_b32 v{A0+r}, v{PA}, v{M+r}")
        for r in range(4):
            A(f"v_and_b32 v{A1+r}, v{PB}, v{M+r}")

    def consume(j, K, V):
        if j < 2:
            for r in range(12):
                A(f"v_dot2c_f32_bf16 v{SA+j}, v{K+12*j+r}, v{Q+r}")
        else:
            Ar = A0 if j == 2 else A1
            for t in range(3):
                b = V + 12 * (j - 2) + 4 * t
                A(f"v_mfma_f32_16x16x32_bf16 v[{ACC+4*t}:{ACC+4*t+3}], v[{Ar}:{Ar+3}], v[{b}:{b+3}], v[{ACC+4*t}:{ACC+4*t+3}]")

    def dummies(n):
        for j in range(n):
            A(f"buffer_load_dword v{FL}, v{OOB}, s[36:39], 0 offen")

    def advance():
        A("""s_add_u32 s48, s85, 4
        s_and_b32 s48, s48, 15
        s_andn2_b32 s85, s85, 15
        s_add_u32 s85, s85, s48
        s_add_u32 s85, s85, 16""")

    def prog():
        if stamps:
            A("""s_waitcnt lgkmcnt(0)
            s_mov_b32 m0, s84
            s_add_u32 s84, s84, 1
            s_min_u32 s84, s84, 63
            v_writelane_b32 v168, s60, m0""")

    if warm & 2: A("@end")
    if warm & 4: A("@chain WS 4 L_ws_ret")
    A(f"L_F:\nv_mov_b32 v{SA}, 0\nv_mov_b32 v{SB}, 0")
    for j in range(4):
        if j == 2:
            A("s_nop 2"); softmax_part()
            if wolate == 2: A("s_cmp_lg_u32 s45, 0\ns_cbranch_scc1 L_Fl")
        A(f"s_waitcnt vmcnt({15 - 3*j})")
        consume(j, KB, VB)
    if wolate != 2: A("s_cmp_lg_u32 s45, 0\ns_cbranch_scc1 L_exit")
    if al: A(f".p2align {al}")
    A("L_loop:")
    if stamps: A("s_memrealtime s[60:61]")
    if deep: A(f"ds_read_b32 v{FL}, v{ZERO} offset:{L_FLAG}")
    if rbd: A(f"s_lshr_b32 s47, s85, 4\ns_cmp_eq_u32 s47, {rbd+1}\ns_cbranch_scc1 L_board\nL_board_ret:")
    def load1(n, sreg):
        j, t = divmod(n, 3)
        base = (KA if j < 2 else VA) + 12 * (j & 1) + 4 * t
        srd = 28 if j < 2 else 32
        A(f"buffer_load_dwordx4 v[{base}:{base+3}], v2, s[{srd}:{srd+3}], s{sreg} offen offset:{OFFS[3*(j&1)+t]}{PK if j < 2 else PV}")

    assert 4 <= wn <= 8 and fill4 and not (deep or rd or rbd or th < 999)
    A(f"v_mov_b32 v{SA}, 0\nv_mov_b32 v{SB}, 0")
    stubs = []
    for j in range(4):
        if j == 2:
            softmax_part()
        A(f"s_waitcnt vmcnt({wn - 3})")
        consume(j, KA, VA)
        ns = range(3*j + wn, 3*j + 3 + wn)
        cur = [n for n in ns if n < 12]
        nxt = [n - 12 for n in ns if n >= 12]
        if cur:
            A(f"s_cmp_lg_u32 s41, 0\ns_cbranch_scc1 L_sk{j}")
            for n in cur: load1(n, 43)
            A(f"L_sk{j}:")
        if j == 1 and nxt:
            A("s_cmp_ge_u32 s85, 240\ns_cbranch_scc1 L_st1")
            uoff(99, 85)
            for n in nxt: load1(n, 99)
            A("L_rt1:")
            stubs.append(len(nxt))
        if j == 2:
            prog()
            A("s_cmp_ge_u32 s85, 240\ns_cbranch_scc1 L_last")
            if not stubs: uoff(99, 85)
            for n in nxt: load1(n, 99)
            advance()
        if j == 3:
            for n in nxt: load1(n, 99)
            A("s_mov_b32 s43, s99\ns_mov_b32 s41, 0")
        if j == 1 and xe:
            A("s_lshr_b32 s47, s85, 4\ns_cmp_eq_u32 s47, s86\ns_cbranch_scc1 L_early\nL_early_ret:")
        if j == 1 and not stubs: A("s_nop 0")
    WO = KA

    def wo_load(j):
        o = j * 1280
        A(f"buffer_load_dwordx4 v[{WO+4*j}:{WO+4*j+3}], v3, s[36:39], s{72 if o < 4096 else 73} offen offset:{o if o < 4096 else o-5120}{P}")
    if deep or rd:
        if rd: A(f"s_cmp_lt_u32 s85, {16*(rd+1)}\ns_cbranch_scc1 L_loop")
        else: A("s_cmp_eq_u32 s47, 0\ns_cbranch_scc1 L_loop")
        group(2, KA, VA, 43); group(3, KA, VA, 43)
        for j in range(4): group(j, KB, VB, 44)
        A("s_mov_b32 s100, 0\nL_deep:")
        if stamps: A("s_memrealtime s[60:61]")
        A(f"v_mov_b32 v{SA}, 0\nv_mov_b32 v{SB}, 0")
        for j in range(4):
            if j == 2: softmax_part()
            A("s_waitcnt vmcnt(9)")
            consume(j, KA, VA)
            if j == 0:
                prog()
                A("s_cmp_ge_u32 s85, 240\ns_cselect_b32 s45, 1, 0\ns_cbranch_scc1 L_dsub0")
                uoff(43, 85)
                group(0, KA, VA, 43)
                advance()
                A("L_dret0:")
            elif j < 3:
                A(f"s_cmp_lg_u32 s45, 0\ns_cbranch_scc1 L_dsub{j}")
                group(j, KA, VA, 43)
                A(f"L_dret{j}:")
            else:
                A("s_cmp_lg_u32 s45, 0\ns_cbranch_scc1 L_F")
                group(3, KA, VA, 43)
                A("s_branch L_deep")
        for j in range(3):
            A(f"L_dsub{j}:")
            if wolate:
                dummies(3)
            else:
                for jj in range(3*j, min(3*j+3, 8)): wo_load(jj)
                if j == 2: dummies(1)
            A(f"s_branch L_dret{j}")
    else:
        A("s_branch L_loop")
    if stubs:
        A("L_st1:")
        dummies(stubs[0])
        A("s_branch L_rt1")
    if rbd:
        A(f"""L_board:
        s_cmp_lg_u32 s3, 0
        s_cbranch_scc1 L_board_ret
        global_load_dword v{FL}, v{BD}, s[26:27] sc1
        s_cmp_lg_u32 s86, 0
        s_cbranch_scc1 L_board_ret
        v_mul_u32_u24 v{PA}, 384, v1
        v_add_u32 v{PA}, s87, v{PA}
        v_mov_b32 v{PB}, s82
        s_mov_b64 exec, 0xff
        global_store_dword v{PA}, v{PB}, s[26:27] sc1
        s_mov_b64 exec, -1
        s_branch L_board_ret
        L_judge:
        s_cmp_eq_u32 s47, {rbd+3}
        s_cbranch_scc1 L_judge2
        s_cmp_gt_u32 s47, {rbd+3}
        s_cbranch_scc1 L_early_ret
        s_cmp_lg_u32 s3, 0
        s_cbranch_scc1 L_early_ret
        v_cmp_eq_u32 vcc, s82, v{FL}
        s_bcnt1_i32_b64 s48, vcc
        s_cmp_lt_u32 s48, {nq}
        s_cbranch_scc1 L_early_ret
        v_mov_b32 v{FL}, 1
        ds_write_b32 v{ZERO}, v{FL} offset:{L_FLAG}
        s_branch L_early_ret
        L_judge2:
        ds_read_b32 v{FL}, v{ZERO} offset:{L_FLAG}
        s_waitcnt lgkmcnt(0)
        v_cmp_eq_u32 vcc, 1, v{FL}
        s_cbranch_vccz L_early_ret""")
    if th < 999 or rbd or xe:
        A("L_early:\ns_mov_b32 s100, 0")
        for j in range(4): group(j, KB, VB, 44)
        A("s_branch L_early_ret")
    A("L_last:")
    g.stamp(3)
    A("s_mov_b32 s45, 1")
    if th < 999 or rbd or xe:
        A("s_cmp_eq_u32 s100, 0\ns_cbranch_scc1 L_last3")
    for j in range(4): group(j, KB, VB, 44)
    WO = KA

    def wo_loads():
        for j in range(8):
            o = j * 1280
            A(f"buffer_load_dwordx4 v[{WO+4*j}:{WO+4*j+3}], v3, s[36:39], s{72 if o < 4096 else 73} offen offset:{o if o < 4096 else o-5120}{P}")
    if wolate:
        if wn < 6:
            for n in range(6 + wn, 12): pass
        dummies(6)
        A(f"s_waitcnt vmcnt({18 + (stubs[0] if stubs else 0)})")
    else:
        wo_loads()
        A("s_waitcnt vmcnt(20)")
    if th < 999 or rbd or xe:
        A("s_branch L_last4\nL_last3:")
        if wolate:
            dummies(6)
            A("s_waitcnt vmcnt(6)")
        else:
            wo_loads()
            A("s_waitcnt vmcnt(8)")
        A("L_last4:")
    consume(3, KA, VA)
    A("s_branch L_F")
    if wolate == 2:
        A("L_Fl:")
        wo_loads()
        g.dpp("v_add_f32", LL, LL, LL, "row_ror:8")
        g.allred_16_32("v_add_f32", LL, T)
        A(f"ds_write_b64 v{LS}, v[{MC}:{LL}] offset:{L_ST}")
        A("s_waitcnt vmcnt(17)")
        consume(2, KB, VB)
        A("s_waitcnt vmcnt(14)")
        consume(3, KB, VB)
    A("L_exit:")
    if wolate == 1: wo_loads()
    g.stamp(4)
    if wolate != 2:
        g.dpp("v_add_f32", LL, LL, LL, "row_ror:8")
        g.allred_16_32("v_add_f32", LL, T)
    else:
        A("s_nop 6")
    O0, S0, XR = 108, 112, 96
    A(f"""{f"v_mov_b32 v{T}, 1" if deep else ""}
    ds_write_b128 v{LA}, v[{ACC}:{ACC+3}] offset:{L_ACC}
    ds_write_b128 v{LA}, v[{ACC+4}:{ACC+7}] offset:{L_ACC+1024}
    ds_write_b128 v{LA}, v[{ACC+8}:{ACC+11}] offset:{L_ACC+2048}
    {f"ds_write_b64 v{LS}, v[{MC}:{LL}] offset:{L_ST}" if wolate != 2 else ""}""")
    if deep: A(f"ds_write_b32 v{ZERO}, v{T} offset:{L_DONE}")
    A(f"""s_waitcnt lgkmcnt(0)
    s_barrier
    s_cmp_lg_u32 s83, 0
    s_cbranch_scc1 L_sdone""")
    if wolate == 3:
        for j in range(8):
            A(f"ds_read_b128 v[{WO+4*j}:{WO+4*j+3}], v3 offset:{L_WO+1024*j}")
    if sready:
        A("""L_pollR:
        s_load_dwordx8 s[4:11], s[26:27], s88 glc
        s_mov_b64 s[92:93], s[26:27]
        s_sub_u32 s58, s58, 1
        s_waitcnt lgkmcnt(0)""")
        for j in range(0, 8, 2):
            A(f"s_xor_b64 s[{4+j}:{5+j}], s[{4+j}:{5+j}], s[86:87]")
        A("""s_or_b64 s[4:5], s[4:5], s[6:7]
        s_or_b64 s[8:9], s[8:9], s[10:11]
        s_or_b64 s[4:5], s[4:5], s[8:9]
        s_cbranch_scc0 L_pollO
        s_and_b32 s47, s58, 63
        s_cbranch_scc1 L_pollR
        s_mov_b64 s[92:93], s[90:91]""")
    def ohead(b):
        g.dpp("v_max_f32", T, b + 4, b + 4, "quad_perm:[1,0,3,2]")
        A("s_nop 1")
        g.dpp("v_max_f32", T, T, T, "quad_perm:[2,3,0,1]")
        A(f"""v_sub_f32 v{T}, v{b+4}, v{T}
        v_exp_f32 v{T}, v{T}
        s_nop 0
        v_mul_f32 v136, v{b+5}, v{T}""")
        for e in range(4):
            A(f"v_mul_f32 v{132+e}, v{b+e}, v{T}")
    if osets == 2:
        O1 = 124

        def oissue(b):
            A(f"""global_load_dwordx4 v[{b}:{b+3}], v{OA}, s[92:93] sc1
            global_load_dwordx4 v[{b+4}:{b+7}], v{OS}, s[92:93] offset:768 sc1""")
        oissue(O0)
        A(f"s_sleep {ostag}\nL_pollO:")
        oissue(O1)
        A("s_waitcnt vmcnt(2)")
        g.tagcheck(list(range(O0, O0 + 8)), T)
        A("s_cbranch_vccz L_gotO")
        g.pick("s89")
        oissue(O0)
        A("s_waitcnt vmcnt(2)")
        g.tagcheck(list(range(O1, O1 + 8)), T)
        A("s_cbranch_vccz L_gotO1")
        g.spin("L_pollO", 0)
        A("L_gotO1:")
        ohead(O1)
        A("s_branch L_ocommon")
    else:
        A(f"""L_pollO:
        global_load_dwordx4 v[{O0}:{O0+3}], v{OA}, s[92:93] sc1
        global_load_dwordx4 v[{S0}:{S0+3}], v{OS}, s[92:93] offset:768 sc1
        s_waitcnt vmcnt(0)""")
        g.tagcheck(list(range(O0, O0 + 8)), T)
        A("s_cbranch_vccz L_gotO")
        if dual: g.pick("s89")
        g.spin("L_pollO", sleep)
    A("L_gotO:")
    g.stamp(5)
    ohead(O0)
    A("L_ocommon:")
    O0, S0 = 132, 135
    for ctl in ["quad_perm:[1,0,3,2]", "quad_perm:[2,3,0,1]"]:
        g.dpp("v_add_f32", S0 + 1, S0 + 1, S0 + 1, ctl)
        for e in range(4):
            g.dpp("v_add_f32", O0 + e, O0 + e, O0 + e, ctl)
    A(f"""v_rcp_f32 v{T}, v{S0+1}
    s_nop 0""")
    for e in range(4):
        A(f"v_mul_f32 v{O0+e}, v{O0+e}, v{T}")
    for e in range(4):
        A(f"v_cvt_pk_bf16_f32 v{O0+e}, v{O0+e}, v{O0+e}")
    for rq in range(8):
        A(f"ds_bpermute_b32 v{XR+rq}, v{BP0 if rq < 4 else BP1}, v{O0+(rq&3)}")
    D = ACC
    AR = [A0, A1, 116, 120]
    for rq in range(8):
        A(f"s_waitcnt lgkmcnt({7-rq})")
        Ar = AR[rq % 4]
        for r in range(4):
            A(f"v_and_b32 v{Ar+r}, v{XR+rq}, v{M+r}")
        if rq >= 1:
            p = rq - 1
            c = "0" if p == 0 else f"v[{D}:{D+3}]"
            A(f"v_mfma_f32_16x16x32_bf16 v[{D}:{D+3}], v[{AR[p%4]}:{AR[p%4]+3}], v[{WO+4*p}:{WO+4*p+3}], {c}")
    A(f"""s_nop 0
    v_mfma_f32_16x16x32_bf16 v[{D}:{D+3}], v[{AR[3]}:{AR[3]+3}], v[{WO+28}:{WO+31}], v[{D}:{D+3}]
    s_nop 7
    ds_write_b128 v{LY}, v[{D}:{D+3}] offset:{L_YP}
    s_waitcnt lgkmcnt(0)
    s_barrier""")
    if warm & 4: A("@end")
    A("L_sdone:")
    g.stamp(6)
    g.stamp_flush()
    A("s_endpgm")

    A("L_aux2:")
    if aprio != prio: A(f"s_setprio {aprio}")
    g.stamp(6)
    A(f"""s_mul_i32 s96, s95, 15
    s_add_u32 s96, s96, s101
    s_sub_u32 s69, s101, 15
    s_sub_u32 s70, s101, 24
    s_cmp_ge_u32 s101, 30
    s_cselect_b32 s69, s70, s69
    s_cselect_b32 s48, 0, s69
    s_lshl_b32 s70, s95, 3
    s_add_u32 s70, s70, s69
    s_add_u32 s70, s70, 120
    s_cmp_lt_u32 s48, 6
    s_cselect_b32 s70, s70, 255
    s_cmp_lt_u32 s101, 15
    s_cselect_b32 s96, s96, s70
    s_mul_i32 s59, s95, 10
    s_sub_u32 s69, s101, 21
    s_add_u32 s59, s59, s69
    s_cmp_lt_u32 s69, 10
    s_cselect_b32 s59, s59, 255
    s_lshl_b32 s68, s66, 3
    s_lshl_b32 s47, s67, 2
    s_add_u32 s68, s68, s47
    s_add_u32 s68, s68, s49
    s_lshl_b32 s68, s68, 10
    s_add_u32 s68, s68, {WS_O}
    s_add_u32 s98, s101, 17
    s_and_b32 s98, s98, 31
    s_cmp_ge_u32 s98, 30
    s_cselect_b32 s83, 1, 0
    s_mul_i32 s74, s95, 30
    s_add_u32 s74, s74, s98
    s_lshl_b32 s74, s74, 10
    s_add_u32 s74, s74, {WS_Y}
    s_lshl_b32 s47, s96, 10
    s_add_u32 s75, s47, {WS_G}
    s_add_u32 s48, s47, {WS_Y + 120*1024}
    s_cmp_lt_u32 s96, 120
    s_cselect_b32 s75, s75, s48
    s_mul_i32 s69, s96, 205
    s_lshr_b32 s69, s69, 10
    s_mul_i32 s70, s69, 5
    s_sub_u32 s70, s96, s70
    s_mov_b32 s63, 0
    s_cmp_lt_u32 s96, 120
    s_cbranch_scc1 L_gtask
    L_wo:""")
    if wolate == 3:
        A(f"""s_cmp_lg_u32 s83, 0
        s_cbranch_scc1 L_wo_done
        s_mul_i32 s47, s95, 30
        s_add_u32 s47, s47, s98
        s_mul_i32 s48, s47, 205
        s_lshr_b32 s48, s48, 10
        s_mul_i32 s72, s48, 5
        s_sub_u32 s72, s47, s72
        s_lshl_b32 s72, s72, 8
        s_mul_i32 s48, s48, 163840
        s_add_u32 s72, s72, s48
        s_mov_b32 s36, s12
        s_mov_b32 s37, s13
        v_lshrrev_b32 v{T0}, 4, v1
        v_mul_u32_u24 v{T0}, 10240, v{T0}
        v_and_b32 v{T1}, 15, v1
        v_lshl_add_u32 v{T0}, v{T1}, 4, v{T0}
        s_mov_b32 s73, {L_WO}
        s_mov_b32 s77, 1280
        L_wo_loop:
        s_mov_b32 m0, s73
        s_add_u32 s73, s73, 1024
        buffer_load_dwordx4 v{T0}, s[36:39], s72 offen{P} lds
        s_and_b32 s47, s73, 0x1c00
        s_cmp_eq_u32 s47, {L_WO & 0x1c00}
        s_cselect_b32 s47, {40960 - 7*1280}, s77
        s_add_u32 s72, s72, s47
        s_waitcnt vmcnt({ww - 1})
        s_cmp_lt_u32 s73, {L_WO + 32768}
        s_cbranch_scc1 L_wo_loop
        s_waitcnt vmcnt(0)
        L_wo_done:""")
    A(f"""s_sub_u32 s47, s96, 120
    s_cmp_lt_u32 s47, 60
    s_cbranch_scc0 L_ffn_done""")
    A(f"""s_sub_u32 s76, s69, 24
    s_mul_i32 s47, s76, 10240
    s_add_u32 s47, s47, {WS_G + 4096}
    v_lshl_add_u32 v{T0}, v1, 4, s47
    v_add_u32 v{T1}, 5120, v{T0}
    {f"s_sleep {gs0}" if gs0 else ""}
    L_pollG:
    s_sleep {lsleep}""")
    for j in range(5):
        A(f"global_load_dwordx4 v[{W+4*j}:{W+4*j+3}], v{T0}, s[26:27] offset:{j*1024-4096} sc1")
    for j in range(5):
        A(f"global_load_dwordx4 v[{W+20+4*j}:{W+20+4*j+3}], v{T1}, s[26:27] offset:{j*1024-4096} sc1")
    A("s_waitcnt vmcnt(0)")
    g.tagcheck(list(range(W, W + 40)), T2)
    A("s_cbranch_vccz L_gotG")
    g.spin("L_pollG", lsleep)
    A("L_gotG:")
    for f in range(2):
        for j in range(1, 5):
            for e in range(4):
                A(f"v_add_f32 v{W+20*f+e}, v{W+20*f+e}, v{W+20*f+4*j+e}")
    S0_, S1_ = W, W + 20
    GG, UU = W + 4, W + 8
    for e in range(4):
        A(f"v_mov_b32 v{GG+e}, v{S0_+e}\nv_mov_b32 v{UU+e}, v{S1_+e}")
    A("s_nop 1")
    for e in range(4):
        A(f"v_mov_b32_dpp v{GG+e}, v{S1_+e} row_ror:8 row_mask:0xf bank_mask:0xc")
        A(f"v_mov_b32_dpp v{UU+e}, v{S0_+e} row_ror:8 row_mask:0xf bank_mask:0x3")
    for e in range(4):
        gg, uu = GG + e, UU + e
        g.rbf(gg); g.rbf(uu)
        A(f"""v_mul_f32 v{T2}, v{gg}, v{gg}
        v_mul_f32 v{T2}, v{T2}, v{gg}
        v_mov_b32 v{T3}, v{gg}
        v_fmac_f32 v{T3}, 0x3d372713, v{T2}
        v_mul_f32 v{T3}, 0xc0135761, v{T3}
        v_exp_f32 v{T3}, v{T3}
        s_nop 0
        v_add_f32 v{T3}, 1.0, v{T3}
        v_rcp_f32 v{T3}, v{T3}
        s_nop 0
        v_mul_f32 v{gg}, v{gg}, v{T3}""")
        g.rbf(gg)
        A(f"v_mul_f32 v{gg}, v{gg}, v{uu}")
    A(f"""v_cvt_pk_bf16_f32 v{GG}, v{GG}, v{GG+1}
    v_cvt_pk_bf16_f32 v{GG+1}, v{GG+2}, v{GG+3}""")

    def wr_h():
        A(f"""v_and_b32 v{T1}, 15, v1
        v_lshlrev_b32 v{T1}, 4, v{T1}
        v_and_b32 v{T2}, 32, v1
        v_lshl_add_u32 v{T1}, v{T2}, 3, v{T1}
        v_bfe_u32 v{T2}, v1, 4, 1
        v_lshl_add_u32 v{T1}, v{T2}, 3, v{T1}
        ds_write_b64 v{T1}, v[{GG}:{GG+1}] offset:{L_X}""")

    xbuf_roundtrip(wr_h)
    A(f"""v_lshrrev_b32 v{T0}, 4, v1
    v_mul_u32_u24 v2, 40960, v{T0}
    v_and_b32 v{T1}, 15, v1
    v_lshl_add_u32 v2, v{T1}, 4, v2
    s_mul_i32 s47, s76, 163840
    s_lshl_b32 s48, s70, 8
    s_add_u32 s47, s47, s48
    v_add_u32 v2, s47, v2
    v_mov_b32 v3, 0
    s_mov_b32 s62, 1280
    v_lshl_add_u64 v[2:3], v[2:3], 0, s[20:21]""")
    nat_off(T2, T1)
    A(f"""v_add_u32 v{T2}, s75, v{T2}
    s_waitcnt lgkmcnt(0)
    s_branch L_tile2
    L_gtask:
    v_lshrrev_b32 v{T0}, 4, v1
    v_mul_u32_u24 v2, 98304, v{T0}
    v_and_b32 v{T1}, 7, v1
    v_lshl_add_u32 v2, v{T1}, 4, v2
    s_mul_i32 s47, s70, 393216
    s_lshl_b32 s48, s69, 7
    s_add_u32 s47, s47, s48
    v_add_u32 v2, s47, v2
    v_mov_b32 v3, 0
    s_mov_b32 s62, 3072
    v_and_b32 v{T1}, 8, v1
    v_cmp_eq_u32 vcc, 0, v{T1}
    v_mov_b32 v{T0}, s18
    v_mov_b32 v{T1}, s19
    v_mov_b32 v{T2}, s16
    v_mov_b32 v{T3}, s17
    v_cndmask_b32 v{T0}, v{T0}, v{T2}, vcc
    v_cndmask_b32 v{T1}, v{T1}, v{T3}, vcc
    v_lshl_add_u64 v[2:3], v[2:3], 0, v[{T0}:{T1}]
    v_lshl_add_u32 v{T2}, v1, 4, s75
    L_tile2:""")
    def t2_issue(i):
        A(f"global_load_dwordx4 v[{W+4*i}:{W+4*i+3}], v[2:3], off{P}")
        if i < 31:
            A("v_lshl_add_u64 v[2:3], v[2:3], 0, s[62:63]")
    for i in range(fw): t2_issue(i)
    tile_compute(fw, t2_issue)
    A(f"v_mov_b32 v{T1}, {TAGM}\ns_nop 7")
    g.tagput(range(DD, DD + 4), T1)
    A(f"""global_store_dwordx4 v{T2}, v[{DD}:{DD+3}], s[26:27] sc1
    s_cmp_lt_u32 s96, 120
    s_cbranch_scc1 L_wo
    L_ffn_done:""")
    g.stamp(7)
    GV, XO, YA = 8, 12, 16
    A(f"""s_cmp_ge_u32 s59, 80
    s_cbranch_scc1 L_c_done
    s_cmp_ge_u32 s59, 40
    s_cselect_b32 s78, 1, 0
    s_mul_i32 s47, s78, 40
    s_sub_u32 s77, s59, s47
    s_lshr_b32 s47, s77, 3
    s_lshl_b32 s47, s47, 10
    s_and_b32 s48, s77, 7
    s_lshl_b32 s48, s48, 6
    s_add_u32 s47, s47, s48
    s_lshl_b32 s48, s78, 9
    s_add_u32 s47, s47, s48
    s_add_u32 s47, s47, {WS_Y}
    v_lshrrev_b32 v{T0}, 2, v1
    v_mul_u32_u24 v{T0}, 5120, v{T0}
    v_and_b32 v{T1}, 3, v1
    v_lshl_add_u32 v{T0}, v{T1}, 4, v{T0}
    v_add_u32 v{YA}, s47, v{T0}
    v_add_u32 v{YA+1}, 81920, v{YA}
    v_add_u32 v{YA+2}, 81920, v{YA+1}
    v_add_u32 v{T0}, 81920, v{YA+2}
    s_mul_i32 s47, s78, 1280
    s_lshl_b32 s48, s77, 5
    s_add_u32 s47, s47, s48
    v_lshl_add_u32 v{YA+3}, v{T1}, 3, s47
    v_bfe_u32 v{T1}, v1, 4, 1
    v_lshl_add_u32 v{YA+3}, v{T1}, 2, v{YA+3}
    v_lshrrev_b32 v{T1}, 5, v1
    v_lshl_add_u32 v{YA+3}, v{T1}, 1, v{YA+3}
    global_load_ushort v{XO}, v{YA+3}, s[4:5]
    v_mov_b32 v{GV}, 0
    v_mov_b32 v{GV+1}, 0
    v_mov_b32 v{GV+2}, 0
    v_mov_b32 v{GV+3}, 0
    s_bfm_b64 exec, 48, 0
    {f"s_sleep {fs0}" if fs0 else ""}
    L_pollF:
    s_sleep {2*lsleep}
    global_load_dwordx4 v[{GV}:{GV+3}], v{T0}, s[26:27] sc1
    s_waitcnt vmcnt(0)""")
    g.tagcheck(list(range(GV, GV + 4)), T2)
    A("s_cbranch_vccz L_gotF")
    g.spin("L_pollF", lsleep)
    A("L_gotF:\ns_mov_b64 exec, -1\ns_nop 1")

    def red16(base):
        A(f"""v_permlane32_swap_b32 v{base}, v{base+1}
        v_permlane32_swap_b32 v{base+2}, v{base+3}
        s_nop 0
        v_add_f32 v{base}, v{base}, v{base+1}
        v_add_f32 v{base+2}, v{base+2}, v{base+3}
        s_nop 1
        v_permlane16_swap_b32 v{base}, v{base+2}
        s_nop 0
        v_add_f32 v{base}, v{base}, v{base+2}
        s_nop 1""")
        g.dpp("v_add_f32", base, base, base, "row_ror:4")
        A("s_nop 1")
        g.dpp("v_add_f32", base, base, base, "row_ror:8")

    red16(GV)
    A(f"v_lshlrev_b32 v{XO}, 16, v{XO}")
    g.rbf(GV)
    A(f"""v_mul_f32 v{T3}, 0xbfb8aa3b, v{GV}
    v_exp_f32 v{T3}, v{T3}
    s_nop 0
    v_add_f32 v{T3}, 1.0, v{T3}
    v_rcp_f32 v{T3}, v{T3}
    s_nop 0
    v_mul_f32 v{GV}, v{GV}, v{T3}""")
    g.rbf(GV)
    A("L_c_done:")
    g.stamp(8)
    MA = 20
    A(f"""v_lshrrev_b32 v{MA}, 4, v1
    v_lshlrev_b32 v{MA}, 10, v{MA}
    v_bfe_u32 v{T0}, v1, 1, 3
    v_lshl_add_u32 v{MA}, v{T0}, 4, v{MA}
    v_and_b32 v{T0}, 1, v1
    v_lshl_add_u32 v{MA}, v{T0}, 8, v{MA}
    v_mov_b32 v{MA+1}, 0
    v_lshl_add_u32 v{MA+2}, v1, 4, s68
    v_mov_b32 v{MA+3}, {TAGM}
    v_cmp_eq_u32 s[50:51], 48, v1""")
    nat_off(2, T1)
    A(f"""v_add_u32 v2, s74, v2
    v_lshlrev_b32 v{DD}, 4, v1""")
    if sready:
        A(f"""s_lshl_b32 s47, s66, 5
        s_lshl_b32 s48, s67, 2
        s_add_u32 s47, s47, s48
        s_add_u32 s47, s47, s49
        s_lshl_b32 s47, s47, 2
        s_add_u32 s47, s47, {WS_R}
        v_mov_b32 v3, s47
        v_mov_b32 v{T3}, s82""")
    if deep:
        A(f"""s_lshl_b32 s47, s95, 7
        s_add_u32 s47, s47, {WS_D}
        v_lshl_add_u32 v{T0}, v1, 2, s47
        s_lshl_b32 s48, s101, 2
        s_add_u32 s47, s47, s48
        v_mov_b32 v3, s47
        s_bfm_b64 exec, 32, 0
        L_pollD:
        s_sleep {dsleep}
        global_load_dword v{T1}, v{T0}, s[26:27] sc1
        ds_read_b32 v{T2}, v{MA+1} offset:{L_DONE}
        s_waitcnt vmcnt(0) lgkmcnt(0)
        v_cmp_ne_u32 vcc, 0, v{T2}
        s_cbranch_vccnz L_gotD
        v_cmp_eq_u32 vcc, s82, v{T1}
        s_bcnt1_i32_b64 s47, vcc
        s_cmp_ge_u32 s47, {ndone}
        s_cbranch_scc1 L_setD""")
        g.spin("L_pollD", 0)
        A(f"""L_setD:
        v_mov_b32 v{T1}, 1
        ds_write_b32 v{MA+1}, v{T1} offset:{L_FLAG}
        L_gotD:
        s_mov_b64 exec, -1
        v_mov_b32 v{T3}, s82""")
    if aprio != prio: A(f"s_setprio {prio}")
    if warm & 8: A("s_mov_b64 exec, 0\ns_branch WT_0\nL_wt_ret:\ns_mov_b64 exec, -1\ns_branch L_wt_go\n@chain WT 1 L_wt_ret\nL_wt_go:")
    A(f"""s_barrier
    ds_read_b128 v[{AX0}:{AX0+3}], v{MA+1} offset:{L_ST}
    ds_read_b128 v[{AX1}:{AX1+3}], v{MA+1} offset:{L_ST+16}""")
    g.stamp(9)
    for w in range(4):
        A(f"ds_read_b128 v[{W+8*w}:{W+8*w+3}], v{MA} offset:{L_ACC+3072*w}")
        A(f"ds_read_b128 v[{W+8*w+4}:{W+8*w+7}], v{MA} offset:{L_ACC+3072*w+640}")
    ms = [AX0, AX0 + 2, AX1, AX1 + 2]
    OD = W + 32
    A(f"""s_waitcnt lgkmcnt(8)
    v_max_f32 v{T0}, v{ms[0]}, v{ms[1]}
    v_max3_f32 v{T0}, v{T0}, v{ms[2]}, v{ms[3]}
    v_and_b32 v{T0}, s81, v{T0}""")
    for w in range(4):
        A(f"v_sub_f32 v{ms[w]}, v{ms[w]}, v{T0}")
    for w in range(4):
        A(f"v_exp_f32 v{ms[w]}, v{ms[w]}")
    A(f"s_nop 0\nv_mul_f32 v{T1}, v{ms[0]}, v{ms[0]+1}")
    for w in range(1, 4):
        A(f"v_fmac_f32 v{T1}, v{ms[w]}, v{ms[w]+1}")
    for w in range(4):
        A(f"s_waitcnt lgkmcnt({6-2*w})")
        for e in (0, 2):
            a_ = W + 8*w + e
            A(f"v_pk_add_f32 v[{a_}:{a_+1}], v[{a_}:{a_+1}], v[{a_+4}:{a_+5}]")
        for e in (0, 2):
            a_ = W + 8*w + e
            if w == 0:
                A(f"v_pk_mul_f32 v[{OD+e}:{OD+e+1}], v[{ms[0]}:{ms[0]+1}], v[{a_}:{a_+1}] op_sel_hi:[0,1]")
            else:
                A(f"v_pk_fma_f32 v[{OD+e}:{OD+e+1}], v[{ms[w]}:{ms[w]+1}], v[{a_}:{a_+1}], v[{OD+e}:{OD+e+1}] op_sel_hi:[0,1,1]")
    A(f"""v_cndmask_b32 v{OD}, v{OD}, v{T0}, s[50:51]
    v_cndmask_b32 v{OD+1}, v{OD+1}, v{T1}, s[50:51]""")
    g.tagput(range(OD, OD + 4), MA + 3)
    A(f"""s_bfm_b64 exec, 49, 0
    global_store_dwordx4 v{MA+2}, v[{OD}:{OD+3}], s[26:27]{'' if dual else ' sc1'}""")
    if sready: A(f"s_mov_b64 exec, 1\nglobal_store_dword v3, v{T3}, s[26:27]\ns_bfm_b64 exec, 49, 0")
    if dual: A(f"global_store_dwordx4 v{MA+2}, v[{OD}:{OD+3}], s[90:91] sc1")
    A("s_mov_b64 exec, -1")
    g.stamp(10)
    A(f"""s_cmp_lg_u32 s83, 0
    s_cbranch_scc1 L_noy
    s_barrier""")
    for w in range(4):
        A(f"ds_read_b128 v[{W+4*w}:{W+4*w+3}], v{DD} offset:{L_YP+1024*w}")
    for w in range(1, 4):
        A(f"s_waitcnt lgkmcnt({3-w})")
        for e in (0, 2):
            A(f"v_pk_add_f32 v[{W+e}:{W+e+1}], v[{W+e}:{W+e+1}], v[{W+4*w+e}:{W+4*w+e+1}]")
    g.tagput(range(W, W + 4), MA + 3)
    A(f"""global_store_dwordx4 v2, v[{W}:{W+3}], s[26:27] sc1
    L_noy:""")
    g.stamp(11)
    A(f"""s_cmp_ge_u32 s59, 80
    s_cbranch_scc1 L_adone""")
    YS = [W + 16 + 12 * j for j in range(ysets)]

    def yissue(j):
        for k in range(3):
            A(f"global_load_dwordx4 v[{YS[j]+4*k}:{YS[j]+4*k+3}], v{YA+k}, s[26:27] sc1")
    if ymiss < 64:
        A("L_pollY1:")
        yissue(0)
        A("s_waitcnt vmcnt(0)")
        g.tagcheck(list(range(YS[0], YS[0] + 12)), T2)
        A(f"""s_cbranch_vccz L_gotY0
        s_bcnt1_i32_b64 s47, vcc
        s_cmp_le_u32 s47, {ymiss}
        s_cbranch_scc1 L_pollY2""")
        g.spin("L_pollY1", ysleep)
        A("L_pollY2:")
    for j in range(ysets - 1):
        yissue(j)
        A(f"s_sleep {ystag}")
    A("L_pollY:")
    for j in range(ysets):
        yissue((j + ysets - 1) % ysets)
        A(f"s_waitcnt vmcnt({3*(ysets-1)})")
        g.tagcheck(list(range(YS[j], YS[j] + 12)), T2)
        A(f"s_cbranch_vccz L_gotY{j}")
    g.spin("L_pollY", sleep if ysets == 1 else 0)
    Y0 = YS[0]
    for j in range(ysets - 1, -1, -1):
        A(f"L_gotY{j}:")
        for e in (0, 2):
            A(f"v_pk_add_f32 v[{T0+e}:{T0+e+1}], v[{YS[j]+e}:{YS[j]+e+1}], v[{YS[j]+4+e}:{YS[j]+5+e}]")
        for e in (0, 2):
            A(f"v_pk_add_f32 v[{T0+e}:{T0+e+1}], v[{T0+e}:{T0+e+1}], v[{YS[j]+8+e}:{YS[j]+9+e}]")
        if j > 0: A("s_branch L_gotY")
    A("L_gotY:")
    g.stamp(12)
    A("s_nop 1")
    red16(T0)
    g.rbf(T0)
    A(f"v_mul_f32 v{T0}, v{T0}, v{GV}")
    g.rbf(T0)
    A(f"""v_add_f32 v{T0}, v{T0}, v{XO}
    s_mov_b32 exec_lo, 0x000f000f
    s_mov_b32 exec_hi, 0x000f000f
    v_cvt_pk_bf16_f32 v{T0}, v{T0}, v{T0}
    global_store_short v{YA+3}, v{T0}, s[22:23]
    s_cmp_lg_u32 s59, 79
    s_cbranch_scc1 L_adone
    s_mov_b64 exec, 1
    v_mov_b32 v{T2}, {WS_E}
    v_mov_b32 v{T1}, s82
    global_store_dword v{T2}, v{T1}, s[26:27]{' sc1' if dbg else ''}
    L_adone:
    s_mov_b64 exec, -1""")
    if warm & 8: A("@end")
    g.stamp(13)
    g.stamp_flush(True)
    A("L_end:\ns_endpgm")
    if cpf:
        A(f".fill (16384 - (. - {KN}))/4, 4, 0xbf810000")

    g.L = [x for x in insert_pads(g.L, space) if x.strip() not in ("@nopad", "@pad")]
    nv = 176 if stamps else 168
    out = [HDR + f"; @launch grid=(256,1,1) block=(320,1,1) lds={LDS_BYTES + (32768 if wolate == 3 else 0)}",
           '.amdgcn_target "amdgcn-amd-amdhsa--gfx950"', ".text", f".globl {KN}", ".p2align 8",
           f".type {KN},@function", f"{KN}:"] + g.L + [
        '.section .rodata,"a"', ".p2align 6", f".amdhsa_kernel {KN}",
        f"  .amdhsa_next_free_vgpr {nv}", "  .amdhsa_next_free_sgpr 102", f"  .amdhsa_accum_offset {nv}",
        "  .amdhsa_group_segment_fixed_size 0", "  .amdhsa_kernarg_size 96", "  .amdhsa_user_sgpr_count 2",
        "  .amdhsa_user_sgpr_kernarg_segment_ptr 1", "  .amdhsa_system_sgpr_workgroup_id_x 1",
        "  .amdhsa_float_denorm_mode_32 3", ".end_amdhsa_kernel"]
    return "\n".join(out) + "\n"


if __name__ == "__main__":
    kw = {}
    for kv in sys.argv[2:]:
        k, v = kv.split("=")
        kw[k] = int(v) if v.lstrip("-").isdigit() else v.replace("+", " ")
    open(sys.argv[1], "w").write(gen(**kw))
```

```python
import sys
KN = "recurrent_scan__gqa_block_cached__geglu_ffn__decode_kernel"

HDR = """; Kernarg layout for this problem (96 bytes, ptrs only, base s[0:1]):
;
"""

WS_Q = 0x00000
WS_E = 0x4F000
WS_O = 0x50000
WS_Y = 0x90000
WS_G = 0x100000
WS_D = 0x140000
WS_R = 0x141000
WS_B = 0x180000
WS_STAMP = 0x300000
TAGM = 0x1ff
TAGS = [80, 0, 1, 14]
L_X = 0
L_Q = 512
L_FLAG = 896
L_DONE = 900
L_ST = 960
L_YP = 1024
L_ACC = 5120
L_WO = 5120 + 12288 + 2048
LDS_BYTES = 5120 + 12288 + 2048

LOG2E = 0x3FB8AA3B
SCALE = 0x3D93CD3A


class G:
    def __init__(self, stamps, dbg):
        self.L = []
        self.stamps = stamps
        self.dbg = dbg
        self.nlab = 0

    def A(self, s):
        for x in s.split("\n"):
            x = x.strip()
            if x:
                self.L.append("    " + x if not x.endswith(":") else x)

    def lab(self, p="L"):
        self.nlab += 1
        return f"{p}_{self.nlab}"

    def stamp(self, idx):
        if not self.stamps:
            return
        self.A(f"""s_memrealtime s[60:61]
        s_waitcnt lgkmcnt(0)
        v_writelane_b32 v168, s60, {idx}""")

    def stamp_flush(self, aux=False):
        if not self.stamps:
            return
        if self.dbg:
            sel = ([(2, 1, 0), (3, 3, 0), (6, 8, 0), (7, 9, 0), (8, 9, 1), (9, 10, 0), (11, 11, 0), (12, 12, 0), (13, 13, 0), (14, 2, 0)] if aux
                   else [(0, 0, 1), (1, 0, 0), (4, 2, 0), (5, 2, 1), (10, 5, 0), (15, 1, 0)])
            self.A("s_mov_b64 exec, 1")
            lw = self.lab("L_dw"); lo = self.lab("L_dwo")
            self.A(f"""v_mov_b32 v170, {WS_E}
            s_mov_b32 s58, 20000
            {lw}:
            s_sleep 64
            global_load_dword v169, v170, s[26:27] sc1
            s_waitcnt vmcnt(0)
            v_and_b32 v169, {TAGM}, v169
            v_cmp_eq_u32 vcc, s80, v169
            s_cbranch_vccnz {lo}
            s_sub_u32 s58, s58, 1
            s_cmp_gt_i32 s58, 0
            s_cbranch_scc1 {lw}
            {lo}:
            s_sleep 64""")
            for slot, idx, inv in sel:
                l = self.lab("L_dbg")
                self.A(f"v_readlane_b32 s47, v168, {idx}\ns_nop 3\ns_cmp_eq_u32 s47, 0\ns_cbranch_scc1 {l}")
                if inv: self.A("s_not_b32 s47, s47")
                self.A(f"v_mov_b32 v169, s47\nv_mov_b32 v170, {slot*4}\nglobal_atomic_umax v170, v169, s[24:25]\n{l}:")
            self.A("s_mov_b64 exec, -1")
            return
        self.A(f"""s_getreg_b32 s47, hwreg(HW_REG_HW_ID)
        s_getreg_b32 s48, hwreg(HW_REG_XCC_ID)
        s_lshl_b32 s48, s48, 24
        s_and_b32 s47, s47, 0xffffff
        s_or_b32 s47, s47, s48
        s_or_b32 s47, s47, 0x80000000
        v_writelane_b32 v168, s47, 15
        s_mul_i32 s47, s2, 5
        s_add_u32 s47, s47, s79
        s_lshl_b32 s47, s47, 8
        s_add_u32 s47, s47, {WS_STAMP}
        v_lshl_add_u32 v169, v1, 2, s47
        global_store_dword v169, v168, s[26:27]""")

    def spin(self, back, sleep):
        if sleep: self.A(f"s_sleep {sleep}")
        self.A(f"""s_sub_u32 s58, s58, 1
        s_cmp_gt_i32 s58, 0
        s_cbranch_scc1 {back}""")

    def pick(self, mask):
        self.A(f"""s_and_b32 s47, s58, {mask}
        s_cmp_eq_u32 s47, 0
        s_cselect_b64 s[92:93], s[90:91], s[26:27]""")

    def allred_16_32(self, op, v, t):
        self.A(f"""v_mov_b32 v{t}, v{v}
        s_nop 1
        v_permlane16_swap_b32 v{v}, v{t}
        s_nop 0
        {op} v{v}, v{v}, v{t}
        v_mov_b32 v{t}, v{v}
        s_nop 1
        v_permlane32_swap_b32 v{v}, v{t}
        s_nop 0
        {op} v{v}, v{v}, v{t}""")

    def dpp(self, op, d, a, b, ctl, bank="0xf"):
        self.A(f"{op}_dpp v{d}, v{a}, v{b} {ctl} row_mask:0xf bank_mask:{bank}")

    def tagcheck(self, regs, t, TAGM=None):
        TAGM = TAGM or globals()["TAGM"]
        for j, r in enumerate(regs):
            self.A(f"v_xor_b32 v{r}, s{TAGS[j & 3]}, v{r}")
        self.A(f"v_or_b32 v{t}, v{regs[0]}, v{regs[1]}")
        for j in range(2, len(regs), 2):
            self.A(f"v_or3_b32 v{t}, v{t}, v{regs[j]}, v{regs[j+1]}")
        self.A(f"v_and_b32 v{t}, {TAGM}, v{t}\nv_cmp_ne_u32 vcc, 0, v{t}")

    def tagput(self, regs, tg, TAGM=None):
        TAGM = TAGM or globals()["TAGM"]
        for r in regs:
            self.A(f"v_add_u32 v{r}, {(TAGM+1)//2}, v{r}")
        for j, r in enumerate(regs):
            self.A(f"v_bfi_b32 v{r}, v{tg}, s{TAGS[j & 3]}, v{r}")

    def tags(self, m):
        self.A(f"""s_and_b32 s80, s82, {m}
        s_add_u32 s0, s82, 173
        s_and_b32 s0, s0, {m}
        s_add_u32 s1, s82, 346
        s_and_b32 s1, s1, {m}
        s_add_u32 s14, s82, 519
        s_and_b32 s14, s14, {m}""")

    def rbf(self, v):
        self.A(f"""v_cvt_pk_bf16_f32 v{v}, v{v}, v{v}
        v_and_b32 v{v}, 0xffff0000, v{v}""")

    def masks(self, M, t0, t1):
        self.A(f"""v_and_b32 v{t0}, 1, v1
        v_lshlrev_b32 v{t0}, 4, v{t0}
        v_mov_b32 v{t1}, 0xffff
        v_lshlrev_b32 v{t0}, v{t0}, v{t1}
        v_bfe_u32 v{t1}, v1, 1, 2
        v_cmp_eq_u32 s[50:51], 0, v{t1}
        v_cmp_eq_u32 s[52:53], 1, v{t1}
        v_cmp_eq_u32 s[54:55], 2, v{t1}
        v_cmp_eq_u32 s[56:57], 3, v{t1}
        s_nop 0
        v_cndmask_b32 v{M}, 0, v{t0}, s[50:51]
        v_cndmask_b32 v{M+1}, 0, v{t0}, s[52:53]
        v_cndmask_b32 v{M+2}, 0, v{t0}, s[54:55]
        v_cndmask_b32 v{M+3}, 0, v{t0}, s[56:57]""")


def isize(line):
    t = line.strip()
    if not t or t.endswith(":") or t.startswith((";", "@", ".")):
        return 0
    op = t.split()[0]
    if op.startswith(("buffer_", "global_", "ds_", "s_load", "s_memrealtime", "s_memtime", "v_mfma", "v_perm_b32", "v_cvt_pk", "v_lshl_add", "v_and_or",
                      "v_or3", "v_pk_", "v_bfi", "v_max3", "v_fma_", "v_bfe", "v_writelane", "v_readlane", "v_add3")) or "_dpp" in op:
        return 8
    if op.startswith(("v_cmp", "v_cndmask")) and "s[" in t:
        return 8
    import re
    args = t[len(op):]
    for m in re.finditer(r"(?<![\w\[:])(-?0x[0-9a-fA-F]+|-?\d+)(?![\w\]:.])", args):
        v = int(m.group(1), 0)
        if not (-16 <= v <= 64) and not op.startswith(("s_waitcnt", "s_nop", "s_sleep", "s_setprio")):
            return 8
    return 4


def insert_pads(L, space):
    out = []
    i = 0
    while i < len(L):
        t = L[i].strip()
        if not t.startswith("@chain"):
            out.append(L[i]); i += 1; continue
        _, name, n, ret = t.split(); n = int(n)
        j = i + 1
        body = []
        while L[j].strip() != "@end":
            body.append(L[j]); j += 1
        pos = []; acc = space; ok = True
        for k, ln in enumerate(body):
            tt = ln.strip()
            if tt == "@nopad":
                if ok and acc > 64: pos.append(k); acc = 0
                ok = False
                continue
            if tt == "@pad":
                ok = True
                continue
            sz = isize(ln)
            if ok and sz and acc + sz > space:
                pos.append(k); acc = 0
            acc += sz
        per = -(-len(pos) // n)
        lab = {}
        for q, k in enumerate(pos):
            c = q // per
            first = q % per == 0
            last = q % per == per - 1 or q == len(pos) - 1
            me = f"{name}_{c}" if first else f"{name}_p{q}"
            nxt = ret if last else f"{name}_p{q+1}"
            lab[k] = [f"{me}:", f"    s_cbranch_execz {nxt}"]
        extra = [f"{name}_{c}:" for c in range((len(pos) - 1) // per + 1, n)]
        if extra: lab[pos[-1]] = extra + lab[pos[-1]]
        for k, ln in enumerate(body):
            if k in lab: out += lab[k]
            if ln.strip() not in ("@nopad", "@pad"): out.append(ln)
        i = j + 1
    return out


def gen(tb=9, tbq=9, tbg=9, stamps=0, pol="nt", sleep=1, lsleep=16, prio=3, pace=3, pre=0, ph=97, deep=0, ndone=6, dsleep=16,
        th=999, dbg=0, cpf=0, dual=1, fill4=1, wolate=2, warm=14, space=192, fw=8, ysets=3, ystag=5, rbd=0, nq=32, rd=0, sready=0, ymiss=64, ysleep=12, touch=0, wprio=1, aprio=0, ww=8, osets=1, ostag=2, wn=6, qcount=0, blate=0, qdelay=0, gs0=0, fs0=0, al=0, xe=0, xm=0xf0, polk=None, polv=None, polw=None, xg=1, peel=1):
    global TAGM
    TAGM = (1 << tb) - 1
    g = G(stamps, dbg)
    A = g.A
    P = (" " + pol) if pol else ""
    PK = P if polk is None else ((" " + polk) if polk else "")
    PV = P if polv is None else ((" " + polv) if polv else "")
    if polw is not None: P = (" " + polw) if polw else ""
    M = 4
    A(f"""s_cmp_ge_u32 s2, 256
    s_cbranch_scc1 L_end
    s_load_dwordx16 s[4:19], s[0:1], 0
    s_load_dwordx8 s[20:27], s[0:1], 64
    v_lshrrev_b32 v2, 6, v0
    v_and_b32 v1, 63, v0
    v_readfirstlane_b32 s3, v2""")
    if stamps:
        A("v_mov_b32 v168, 0\ns_memrealtime s[60:61]\ns_mov_b32 s79, s3")
    A("""s_lshr_b32 s101, s2, 3
    s_and_b32 s95, s2, 7
    s_and_b32 s66, s101, 3
    s_lshl_b32 s47, s95, 2
    s_add_u32 s66, s66, s47
    s_bfe_u32 s67, s101, 0x10002
    s_lshr_b32 s49, s101, 3
    s_mul_i32 s96, s95, 30
    s_cmp_lg_u32 s3, 0
    s_cbranch_scc1 L_stream""")

    XP = 8; AX0 = 24; AX1 = 28; W = 32; DD = 160; T0, T1, T2, T3 = 164, 165, 166, 167
    A(f"""s_setprio {prio}
    s_add_u32 s97, s96, s101
    s_mul_i32 s69, s97, 205
    s_lshr_b32 s69, s69, 10
    s_mul_i32 s70, s69, 5
    s_sub_u32 s70, s97, s70
    v_lshrrev_b32 v{T0}, 4, v1
    v_and_b32 v{T1}, 7, v1
    v_bfe_u32 v{T2}, v1, 3, 1
    v_mul_u32_u24 v{T2}, 1280, v{T2}
    v_lshl_add_u32 v{T3}, v{T0}, 3, v{T1}
    v_lshl_add_u32 v{DD}, v{T3}, 4, v{T2}
    v_lshl_add_u32 v{DD+1}, v{T3}, 3, v{T2}
    s_lshl_b32 s47, s70, 8
    v_add_u32 v{DD+1}, s47, v{DD+1}
    v_mul_u32_u24 v2, 393216, v{T0}
    v_and_b32 v{T1}, 15, v1
    v_lshl_add_u32 v2, v{T1}, 4, v2
    s_mul_i32 s62, s70, 1572864
    s_lshl_b32 s48, s69, 8
    s_add_u32 s62, s62, s48
    v_mov_b32 v{XP+8}, 0
    v_mov_b32 v{XP+9}, 0
    v_mov_b32 v{XP+10}, 0
    v_mov_b32 v{XP+11}, 0
    s_mov_b32 s38, 7864320
    s_mov_b32 s39, 0x20000""")
    if warm & 1: A("s_mov_b64 exec, 0\ns_branch WI_0\nL_wi_ret:\ns_mov_b64 exec, -1")
    A("s_waitcnt lgkmcnt(0)")
    if stamps:
        A("v_writelane_b32 v168, s60, 0")
    A(f"""s_mov_b32 s36, s10
    s_mov_b32 s37, s11
    global_load_dwordx4 v[{XP}:{XP+3}], v{DD}, s[4:5]
    global_load_dwordx4 v[{XP+4}:{XP+7}], v{DD}, s[4:5] offset:512
    global_load_dwordx2 v[{XP+12}:{XP+13}], v{DD+1}, s[4:5]
    s_bfm_b64 exec, 32, 0
    global_load_dwordx4 v[{XP+8}:{XP+11}], v{DD}, s[4:5] offset:1024
    s_mov_b64 exec, -1
    s_load_dword s80, s[26:27], {WS_E}
    s_cmp_ge_u32 s101, 30
    s_cbranch_scc1 L_noq1""")
    if warm & 1: A("@chain WI 1 L_wi_ret")
    for i in range(32):
        A(f"buffer_load_dwordx4 v[{W+4*i}:{W+4*i+3}], v2, s[36:39], s62 offen{P}")
        if i < 31:
            A("s_add_u32 s62, s62, 12288")
    if warm & 1: A("@end")
    A(f"""L_noq1:
    s_barrier""")
    if warm & 2: A("@chain WA 4 L_wa_ret")
    g.stamp(1)
    g.masks(M, T0, T1)
    A(f"""s_mov_b32 s81, {(~TAGM) & 0xffffffff}
    s_mov_b32 s64, 0x01000100
    s_mov_b32 s65, 0x03020302
    s_mov_b32 s58, 399999
    s_add_u32 s90, s26, {WS_B}
    s_addc_u32 s91, s27, 0
    v_mov_b32 v{T0}, 0
    v_mov_b32 v{T1}, 0
    ds_write_b64 v{T0}, v[{T0}:{T1}] offset:{L_FLAG}
    s_waitcnt lgkmcnt(0)
    s_add_u32 s82, s80, 1""")
    QM_ = (1 << tbq) - 1
    GM_ = (1 << tbg) - 1
    g.tags(GM_)
    A(f"""    s_mov_b32 s84, 1
    s_cmp_ge_u32 s101, 30
    s_cbranch_scc1 L_qgather""")
    SUM, VAR, MEAN = T0, T1, T2
    A(f"""s_mov_b32 s47, 0x3f803f80
    s_waitcnt vmcnt(32)""")
    for r in range(12):
        A(f"v_dot2c_f32_bf16 v{SUM}, s47, v{XP+r}")
    A("s_nop 2")

    def allred_stats(v, t):
        for ctl in ["quad_perm:[1,0,3,2]", "quad_perm:[2,3,0,1]", "row_half_mirror"]:
            g.dpp("v_add_f32", v, v, v, ctl)
            A("s_nop 1")
        g.allred_16_32("v_add_f32", v, t)

    allred_stats(SUM, T3)
    A(f"v_mul_f32 v{MEAN}, 0x3acccccd, v{SUM}")
    for r in range(12):
        if r == 8:
            A("s_bfm_b64 exec, 32, 0")
        A(f"""v_lshlrev_b32 v{AX1}, 16, v{XP+r}
        v_and_b32 v{AX1+1}, 0xffff0000, v{XP+r}
        v_sub_f32 v{AX1}, v{AX1}, v{MEAN}
        v_sub_f32 v{AX1+1}, v{AX1+1}, v{MEAN}
        v_fmac_f32 v{VAR}, v{AX1}, v{AX1}
        v_fmac_f32 v{VAR}, v{AX1+1}, v{AX1+1}""")
    A("s_mov_b64 exec, -1\ns_nop 1")
    allred_stats(VAR, T3)
    A(f"v_mul_f32 v{VAR}, 0x3acccccd, v{VAR}")
    g.rbf(VAR)
    g.rbf(MEAN)
    A(f"v_add_f32 v{VAR}, 0x37280000, v{VAR}")
    g.rbf(VAR)
    A(f"v_sqrt_f32 v{VAR}, v{VAR}\ns_nop 0")
    g.rbf(VAR)
    A(f"v_rcp_f32 v{VAR}, v{VAR}")
    for k in range(2):
        r = XP + 12 + k
        A(f"""v_lshlrev_b32 v{AX1}, 16, v{r}
        v_and_b32 v{AX1+1}, 0xffff0000, v{r}
        v_sub_f32 v{AX1}, v{AX1}, v{MEAN}
        v_sub_f32 v{AX1+1}, v{AX1+1}, v{MEAN}
        v_cvt_pk_bf16_f32 v{r}, v{AX1}, v{AX1+1}
        v_lshlrev_b32 v{AX1}, 16, v{r}
        v_and_b32 v{AX1+1}, 0xffff0000, v{r}
        v_mul_f32 v{AX1}, v{AX1}, v{VAR}
        v_mul_f32 v{AX1+1}, v{AX1+1}, v{VAR}
        v_cvt_pk_bf16_f32 v{r}, v{AX1}, v{AX1+1}""")

    def xbuf_roundtrip(src):
        A(f"""v_lshrrev_b32 v{T0}, 4, v1
        v_lshlrev_b32 v{T0}, 6, v{T0}
        v_and_b32 v{T1}, 8, v1
        v_lshl_add_u32 v{T0}, v{T1}, 5, v{T0}""")
        src()
        A("s_waitcnt lgkmcnt(0)")
        for j in range(4):
            A(f"ds_read_b128 v[{XP+4*j}:{XP+4*j+3}], v{T0} offset:{L_X+16*j}")

    def wr_x():
        A(f"""v_and_b32 v{T1}, 7, v1
        v_lshl_add_u32 v{T1}, v{T1}, 3, v{T0}
        ds_write_b64 v{T1}, v[{XP+12}:{XP+13}] offset:{L_X}""")

    def tile_compute(win=32, issue=None):
        for i in range(32):
            Ar = AX0 if i % 2 == 0 else AX1
            if issue and i > 0 and i - 1 + win < 32:
                issue(i - 1 + win)
            A(f"v_perm_b32 v{T3}, v{XP+(i>>1)}, v{XP+(i>>1)}, s{64+(i&1)}")
            for r in range(4):
                A(f"v_and_b32 v{Ar+r}, v{T3}, v{M+r}")
            A(f"s_waitcnt vmcnt({min(31-i, win-1)})")
            A("s_nop 0")
            c = "0" if i == 0 else f"v[{DD}:{DD+3}]"
            A(f"v_mfma_f32_16x16x32_bf16 v[{DD}:{DD+3}], v[{Ar}:{Ar+3}], v[{W+4*i}:{W+4*i+3}], {c}")

    def nat_off(dst, tmp):
        A(f"""v_and_b32 v{dst}, 15, v1
        v_lshlrev_b32 v{dst}, 5, v{dst}
        v_and_b32 v{tmp}, 16, v1
        v_add_u32 v{dst}, v{dst}, v{tmp}
        v_and_b32 v{tmp}, 32, v1
        v_lshl_add_u32 v{dst}, v{tmp}, 4, v{dst}""")

    if warm & 2: A("@end\n@chain WQ 4 L_wq_ret")
    xbuf_roundtrip(wr_x)
    nat_off(T2, T1)
    QC = 3
    A(f"""s_mul_i32 s47, s97, 1280
    v_lshrrev_b32 v{QC}, 2, v{T2}
    v_add_u32 v{T2}, s47, v{T2}
    s_add_u32 s47, s47, 1024
    v_add_u32 v{QC}, s47, v{QC}
    s_mov_b32 s84, 0
    s_waitcnt lgkmcnt(0)""")
    g.stamp(2)
    tile_compute()
    A(f"""s_nop 7
    global_store_dwordx4 v{T2}, v[{DD}:{DD+3}], s[26:27]
    v_xor_b32 v{T1}, v{DD}, v{DD+1}
    v_xor_b32 v{T3}, v{DD+2}, v{DD+3}
    v_xor_b32 v{T1}, s82, v{T1}
    v_xor_b32 v{T1}, v{T1}, v{T3}
    global_store_dword v{QC}, v{T1}, s[26:27]""")
    g.stamp(3)
    A(f"""L_qgather:
    s_mul_i32 s47, s66, 192
    v_lshl_add_u32 v{T0}, v1, 2, s47
    v_lshrrev_b32 v{T3}, 7, v{T0}
    v_mul_u32_u24 v{T3}, 6400, v{T3}
    v_and_b32 v{T0}, 127, v{T0}
    s_lshl_b32 s47, s67, 7
    s_add_u32 s47, s47, {WS_Q + 2560 + 1024}
    v_add3_u32 v2, v{T3}, v{T0}, s47
    v_lshl_add_u32 v{T3}, v{T0}, 2, v{T3}
    s_lshl_b32 s47, s67, 9
    s_add_u32 s47, s47, {WS_Q + 2560}
    v_add_u32 v{T3}, s47, v{T3}
    s_bfm_b64 s[86:87], 48, 0
    s_mov_b64 s[88:89], s[86:87]
    s_mov_b64 s[98:99], s[86:87]
    s_mov_b64 s[76:77], s[86:87]
    s_mov_b64 s[74:75], s[86:87]
    s_mov_b64 s[92:93], s[26:27]
    {f"s_sleep {qdelay}" if qdelay else ""}
    @nopad
    L_pollQ:""")
    QM = [86, 88, 98, 76, 74]
    for rb in range(5):
        A(f"s_mov_b64 exec, s[{QM[rb]}:{QM[rb]+1}]")
        l = g.lab("L_pq")
        A(f"s_cbranch_execz {l}")
        A(f"global_load_dwordx4 v[{W+4*rb}:{W+4*rb+3}], v{T3}, s[92:93] offset:{rb*1280-2560} sc1")
        A(f"global_load_dword v{W+20+rb}, v2, s[92:93] offset:{rb*1280-2560} sc1")
        A(f"{l}:")
    if dual:
        if blate: A(f"s_cmp_gt_u32 s58, {399999 - blate}\ns_cbranch_scc1 L_pq_w0")
        A(f"""s_cmp_lg_u32 s84, 0
        s_cbranch_scc1 L_pq_w0
        s_mov_b32 s84, 1
        s_mov_b64 exec, -1
        global_store_dwordx4 v{T2}, v[{DD}:{DD+3}], s[90:91] sc1
        global_store_dword v{QC}, v{T1}, s[90:91] sc1
        s_waitcnt vmcnt(2)
        s_branch L_pq_w1
        L_pq_w0:""")
    A("s_waitcnt vmcnt(0)\nL_pq_w1:\ns_mov_b64 exec, -1\n@pad\ns_nop 0\n@nopad")
    if qcount:
        A("""s_memrealtime s[60:61]
        s_sub_u32 s47, 400015, s58
        s_min_u32 s47, s47, 40
        s_mov_b32 m0, s47
        s_waitcnt lgkmcnt(0)
        v_writelane_b32 v168, s60, m0""")
    for rb in range(5):
        A(f"s_mov_b64 exec, s[{QM[rb]}:{QM[rb]+1}]")
        A(f"""v_xor_b32 v{T0}, v{W+4*rb}, v{W+4*rb+1}
        v_xor_b32 v{W+20+rb}, v{W+20+rb}, v{W+4*rb+2}
        v_xor_b32 v{T0}, v{T0}, v{W+4*rb+3}
        v_xor_b32 v{T0}, v{T0}, v{W+20+rb}
        v_cmp_ne_u32 vcc, s82, v{T0}""")
        A(f"s_mov_b64 s[{QM[rb]}:{QM[rb]+1}], vcc")
    A(f"""s_or_b64 s[50:51], s[{QM[0]}:{QM[0]+1}], s[{QM[1]}:{QM[1]+1}]
    s_or_b64 s[52:53], s[{QM[2]}:{QM[2]+1}], s[{QM[3]}:{QM[3]+1}]
    s_or_b64 s[50:51], s[50:51], s[{QM[4]}:{QM[4]+1}]
    s_or_b64 s[50:51], s[50:51], s[52:53]
    s_cbranch_scc0 L_gotQ""")
    if dual: g.pick(7)
    g.spin("L_pollQ", 0)
    A("L_gotQ:\ns_bfm_b64 exec, 48, 0\n@pad")
    if dual:
        A(f"""s_cmp_eq_u32 s92, s26
        s_cselect_b32 s47, 63, 0
        v_mov_b32 v{T1}, s47
        v_mov_b32 v{T0}, 0
        ds_write_b32 v{T0}, v{T1} offset:{L_DONE}""")
    g.stamp(5)
    A(f"v_lshlrev_b32 v{T0}, 3, v1")
    for rb in range(1, 5):
        for e in range(4):
            A(f"v_add_f32 v{W+e}, v{W+e}, v{W+4*rb+e}")
    A(f"""v_cvt_pk_bf16_f32 v{W}, v{W}, v{W+1}
    v_cvt_pk_bf16_f32 v{W+1}, v{W+2}, v{W+3}
    ds_write_b64 v{T0}, v[{W}:{W+1}] offset:{L_Q}
    s_mov_b64 exec, -1
    s_waitcnt lgkmcnt(0)
    s_barrier""")
    if blate:
        A(f"""s_cmp_lg_u32 s84, 0
        s_cbranch_scc1 L_aux2
        global_store_dwordx4 v{T2}, v[{DD}:{DD+3}], s[90:91] sc1""")
    A(f"""s_branch L_aux2
    @nopad""")

    Q = 8; ACC = 20; A0 = 32; A1 = 36
    SA, SB, T, MM, MC, LL, PA, PB = 40, 41, 42, 43, 44, 45, 46, 47
    KA, VA, KB, VB = 48, 72, 96, 120
    FL, OOB, ZERO = 144, 145, 146
    OA, OS, BP0, BP1, LA, LS, LY = 148, 149, 150, 151, 152, 153, 154
    CP = 156
    BD = 155
    OFFS = [0, 128, 256, 3072, 3200, 3328]

    def group(j, K, V, sreg):
        base = (K if j < 2 else V) + 12 * (j & 1)
        srd = 28 if j < 2 else 32
        for t in range(3):
            A(f"buffer_load_dwordx4 v[{base+4*t}:{base+4*t+3}], v2, s[{srd}:{srd+3}], s{sreg} offen offset:{OFFS[3*(j&1)+t]}{PK if j < 2 else PV}")

    def uoff(dst, src):
        A(f"""s_add_u32 s48, s{src}, s94
        s_and_b32 s48, s48, 255
        s_mul_i32 s48, s48, 6144
        s_add_u32 s{dst}, s40, s48""")

    A(f"""L_stream:
    s_sub_u32 s3, s3, 1
    s_lshl_b32 s42, s49, 2
    s_add_u32 s42, s42, s3
    s_lshl_b32 s40, s67, 5
    s_add_u32 s40, s40, s66
    s_mul_i32 s94, s40, {ph}
    s_mul_i32 s40, s40, 1572864
    v_lshrrev_b32 v2, 3, v1
    v_mul_u32_u24 v2, 384, v2
    v_and_b32 v3, 7, v1
    v_lshl_add_u32 v2, v3, 4, v2""")
    uoff(44, 42)
    A("""s_add_u32 s47, s42, 4
    s_and_b32 s47, s47, 15
    s_add_u32 s47, s47, 16""")
    uoff(43, 47)
    if cpf:
        A(f"""s_getpc_b64 s[50:51]
        L_pc:
        s_lshl_b32 s47, s3, 12
        s_sub_u32 s47, s47, L_pc-{KN}
        s_ashr_i32 s48, s47, 31
        s_add_u32 s50, s50, s47
        s_addc_u32 s51, s51, s48
        v_lshlrev_b32 v{CP}, 4, v1
        v_mov_b32 v{CP+1}, 0
        v_lshl_add_u64 v[{CP}:{CP+1}], v[{CP}:{CP+1}], 0, s[50:51]""")
        for j in range(4):
            A(f"global_load_dwordx4 v[{CP+4}:{CP+7}], v[{CP}:{CP+1}], off offset:{j*1024}")
    A("""s_mov_b32 s30, 100663296
    s_mov_b32 s31, 0x20000
    s_mov_b32 s34, 100663296
    s_mov_b32 s35, 0x20000""")

    def hop4(name, ret):
        A(f"""@nopad
        s_mov_b64 exec, 0
        s_cmp_eq_u32 s3, 0
        s_cbranch_scc1 {name}_0
        s_cmp_eq_u32 s3, 1
        s_cbranch_scc1 {name}_1
        s_cmp_eq_u32 s3, 2
        s_cbranch_scc1 {name}_2
        s_branch {name}_3
        {ret}:
        s_mov_b64 exec, -1
        @pad""")
    if warm & 2: hop4("WA", "L_wa_ret")
    A("s_waitcnt lgkmcnt(0)")
    if stamps:
        A("v_writelane_b32 v168, s60, 0")
    A("""s_mov_b32 s28, s6
    s_mov_b32 s29, s7
    s_mov_b32 s32, s8
    s_mov_b32 s33, s9""")
    if touch:
        A(f"buffer_load_dword v{FL}, v2, s[28:31], s44 offen{P}\nbuffer_load_dword v{FL}, v2, s[32:35], s44 offen{P}")
    if wprio: A(f"s_setprio {wprio}")
    seq = [(0, KB, VB, 44), (1, KB, VB, 44), (2, KB, VB, 44), (3, KB, VB, 44), (0, KA, VA, 43), (1, KA, VA, 43)]
    if fill4: seq += [(2, KA, VA, 43), (3, KA, VA, 43)]
    for n, (j, K, V, sr) in enumerate(seq):
        if n == pre:
            A("s_barrier")
        if n == 2:
            if warm & 2: hop4("WQ", "L_wq_ret")
            A(f"s_load_dword s80, s[26:27], {WS_E}")
            g.masks(M, T, PA)
            A(f"""s_add_u32 s98, s101, 17
            s_and_b32 s98, s98, 31
            s_cmp_ge_u32 s98, 30
            s_cselect_b32 s83, 1, 0
            s_add_u32 s98, s98, s96
            s_mul_i32 s69, s98, 205
            s_lshr_b32 s69, s69, 10
            s_mul_i32 s70, s69, 5
            s_sub_u32 s70, s98, s70
            s_mov_b32 s36, s12
            s_mov_b32 s37, s13
            s_mov_b32 s38, 7864320
            s_mov_b32 s39, 0x20000
            s_lshl_b32 s71, s69, 2
            s_add_u32 s71, s71, s3
            s_mul_i32 s72, s71, 40960
            s_lshl_b32 s47, s70, 8
            s_add_u32 s72, s72, s47
            s_add_u32 s73, s72, 5120
            v_lshrrev_b32 v3, 4, v1
            v_mul_u32_u24 v3, 10240, v3
            v_and_b32 v{T}, 15, v1
            v_lshl_add_u32 v3, v{T}, 4, v3
            s_lshl_b32 s47, s83, 30
            v_add_u32 v3, s47, v3
            {f"s_lshl_b32 s47, s3, 13" if wolate == 3 else ""}
            {f"v_lshl_add_u32 v3, v1, 4, s47" if wolate == 3 else ""}
            s_mov_b32 s41, {2 if peel else 1}
            s_mov_b32 s46, {LOG2E}
            s_mov_b32 s58, 399999
            s_add_u32 s90, s26, {WS_B}
            s_addc_u32 s91, s27, 0
            s_mov_b64 s[92:93], s[26:27]""")
            if touch: A(f"buffer_load_dword v{FL}, v3, s[36:39], s72 offen{P}")
        if n == 3:
            for r in range(12):
                A(f"v_mov_b32 v{ACC+r}, 0")
            A(f"""v_mov_b32 v{MM}, 0xff800000
            v_mov_b32 v{MC}, 0xff800000
            v_mov_b32 v{LL}, 0
            v_mov_b32 v{OOB}, 0x7ff00000
            v_mov_b32 v{ZERO}, 0
            s_mul_i32 s47, s71, 171
            s_lshr_b32 s47, s47, 10
            s_mul_i32 s48, s47, 6
            s_sub_u32 s48, s71, s48
            {"s_lshl_b32 s88, s47, 7" if sready else ""}
            {f"s_add_u32 s88, s88, {WS_R}" if sready else ""}
            s_lshl_b32 s47, s47, 13
            s_add_u32 s47, s47, {WS_O}
            v_and_b32 v{OS}, 7, v1
            v_lshl_add_u32 v{OS}, v{OS}, 10, s47
            v_lshrrev_b32 v{OA}, 3, v1
            s_lshl_b32 s48, s48, 7
            v_lshl_add_u32 v{OA}, v{OA}, 4, s48
            v_add_u32 v{OA}, v{OA}, v{OS}
            v_lshrrev_b32 v{BP0}, 4, v1
            v_lshlrev_b32 v{BP0}, 6, v{BP0}
            v_and_b32 v{BP1}, 8, v1
            v_lshl_add_u32 v{BP0}, v{BP1}, 1, v{BP0}
            v_add_u32 v{BP1}, 32, v{BP0}
            s_mul_i32 s47, s3, 3072
            v_lshl_add_u32 v{LA}, v1, 4, s47
            s_lshl_b32 s47, s3, 3
            v_mov_b32 v{LS}, s47
            s_lshl_b32 s47, s3, 10
            v_lshl_add_u32 v{LY}, v1, 4, s47""")
            if rbd:
                A(f"""s_mul_i32 s47, s95, 384
                s_add_u32 s47, s47, {WS_D}
                v_lshl_add_u32 v{BD}, v1, 2, s47
                s_and_b32 s86, s101, 3
                s_lshl_b32 s47, s95, 3
                s_lshr_b32 s48, s101, 2
                s_add_u32 s47, s47, s48
                s_lshl_b32 s47, s47, 2
                s_add_u32 s87, s47, {WS_D}""")
        if n == 4 and warm & 4: hop4("WS", "L_ws_ret")
        if n >= 2:
            A(f"s_waitcnt vmcnt({pace})")
        group(j, K, V, sr)
    XG = 156
    A(f"""s_add_u32 s85, s42, 8
    s_and_b32 s85, s85, 15
    s_add_u32 s85, s85, 32""")
    if xg:
        assert wn == 6
        uoff(99, 85)
        A(f"s_waitcnt vmcnt({pace})")
        for t in range(3):
            A(f"buffer_load_dwordx4 v[{XG+4*t}:{XG+4*t+3}], v2, s[28:31], s99 offen offset:{OFFS[t]}{PK}")
    g.stamp(1)
    A(f"""
    s_add_u32 s47, s42, 12
    s_and_b32 s47, s47, 15
    s_add_u32 s47, s47, 240""")
    uoff(44, 47)
    A(f"""s_mov_b32 s45, 0
    {"s_mov_b32 s100, 1" if (xe or deep or rd or rbd or th < 999) else ""}
    {"s_mov_b32 s84, 16" if stamps else ""}
    v_and_b32 v{T}, 7, v1
    v_lshlrev_b32 v{T}, 4, v{T}
    s_waitcnt lgkmcnt(0)
    s_add_u32 s82, s80, 1
    s_and_b32 s80, s82, {TAGM}
    s_add_u32 s0, s82, 173
    s_and_b32 s0, s0, {TAGM}
    s_add_u32 s1, s82, 346
    s_and_b32 s1, s1, {TAGM}
    s_add_u32 s14, s82, 519
    s_and_b32 s14, s14, {TAGM}
    {f"s_lshr_b32 s47, {xm}, s95" if xe else ""}
    {"s_and_b32 s47, s47, 1" if xe else ""}
    {f"s_cselect_b32 s86, {xe + 1}, 0" if xe else ""}
    s_barrier
    ds_read_b128 v[{Q}:{Q+3}], v{T} offset:{L_Q}
    ds_read_b128 v[{Q+4}:{Q+7}], v{T} offset:{L_Q+128}
    ds_read_b128 v[{Q+8}:{Q+11}], v{T} offset:{L_Q+256}
    ds_read_b32 v{PA}, v{ZERO} offset:{L_DONE}
    s_waitcnt lgkmcnt(0)
    v_readfirstlane_b32 s89, v{PA}""")
    g.stamp(2)

    def softmax_part():
        for ctl in ["quad_perm:[1,0,3,2]", "quad_perm:[2,3,0,1]", "row_half_mirror"]:
            g.dpp("v_add_f32", SA, SA, SA, ctl)
            g.dpp("v_add_f32", SB, SB, SB, ctl)
            A("s_nop 0")
        skip = g.lab("L_skip")
        A(f"""v_cvt_pk_bf16_f32 v{T}, v{SA}, v{SB}
        v_lshlrev_b32 v{SA}, 16, v{T}
        v_and_b32 v{SB}, 0xffff0000, v{T}
        v_mul_f32 v{SA}, {SCALE}, v{SA}
        v_mul_f32 v{SB}, {SCALE}, v{SB}
        v_cvt_pk_bf16_f32 v{T}, v{SA}, v{SB}
        v_lshlrev_b32 v{SA}, 16, v{T}
        v_and_b32 v{SB}, 0xffff0000, v{T}
        v_max_f32 v{T}, v{SA}, v{SB}
        v_cmp_gt_f32 vcc, v{T}, v{MM}
        s_cbranch_vccz {skip}""")
        g.dpp("v_max_f32", T, T, T, "row_ror:8")
        g.allred_16_32("v_max_f32", T, PA)
        A(f"""v_max_f32 v{MM}, v{MM}, v{T}
        v_mul_f32 v{PA}, s46, v{MM}
        v_sub_f32 v{PB}, v{MC}, v{PA}
        v_exp_f32 v{PB}, v{PB}
        v_mov_b32 v{MC}, v{PA}
        v_mul_f32 v{LL}, v{LL}, v{PB}""")
        for r in range(12):
            A(f"v_mul_f32 v{ACC+r}, v{ACC+r}, v{PB}")
        A(f"""{skip}:
        v_fma_f32 v{PA}, v{SA}, s46, -v{MC}
        v_fma_f32 v{PB}, v{SB}, s46, -v{MC}
        v_exp_f32 v{PA}, v{PA}
        v_exp_f32 v{PB}, v{PB}
        s_nop 0
        v_add_f32 v{LL}, v{LL}, v{PA}
        v_cvt_pk_bf16_f32 v{PA}, v{PA}, v{PA}
        v_add_f32 v{LL}, v{LL}, v{PB}
        v_cvt_pk_bf16_f32 v{PB}, v{PB}, v{PB}""")
        for r in range(4):
            A(f"v_and_b32 v{A0+r}, v{PA}, v{M+r}")
        for r in range(4):
            A(f"v_and_b32 v{A1+r}, v{PB}, v{M+r}")

    def consume(j, K, V):
        if j < 2:
            for r in range(12):
                A(f"v_dot2c_f32_bf16 v{SA+j}, v{K+12*j+r}, v{Q+r}")
        else:
            Ar = A0 if j == 2 else A1
            for t in range(3):
                b = V + 12 * (j - 2) + 4 * t
                A(f"v_mfma_f32_16x16x32_bf16 v[{ACC+4*t}:{ACC+4*t+3}], v[{Ar}:{Ar+3}], v[{b}:{b+3}], v[{ACC+4*t}:{ACC+4*t+3}]")

    def dummies(n):
        for j in range(n):
            A(f"buffer_load_dword v{FL}, v{OOB}, s[36:39], 0 offen")

    def advance():
        A("""s_add_u32 s48, s85, 4
        s_and_b32 s48, s48, 15
        s_andn2_b32 s85, s85, 15
        s_add_u32 s85, s85, s48
        s_add_u32 s85, s85, 16""")

    def prog():
        if stamps:
            A("""s_waitcnt lgkmcnt(0)
            s_mov_b32 m0, s84
            s_add_u32 s84, s84, 1
            s_min_u32 s84, s84, 63
            v_writelane_b32 v168, s60, m0""")

    if warm & 2: A("@end")
    if warm & 4: A("@chain WS 4 L_ws_ret")
    if peel:
        assert wn == 6
        y = 3 if xg else 0
        A(f"v_mov_b32 v{SA}, 0\nv_mov_b32 v{SB}, 0")
        uoff(43, 85)
        A(f"s_waitcnt vmcnt({9 + y})")
        consume(0, KA, VA)
        if not xg: group(0, KA, VA, 43)
        A("s_waitcnt vmcnt(9)")
        consume(1, KA, VA)
        group(1, KA, VA, 43)
        advance()
        softmax_part()
        A("s_waitcnt vmcnt(9)")
        consume(2, KA, VA)
        A("s_waitcnt vmcnt(6)")
        consume(3, KA, VA)
    A(f"L_F:\nv_mov_b32 v{SA}, 0\nv_mov_b32 v{SB}, 0")
    for j in range(4):
        if j == 2:
            A("s_nop 2"); softmax_part()
            if wolate == 2: A("s_cmp_lg_u32 s45, 0\ns_cbranch_scc1 L_Fl")
        A(f"s_waitcnt vmcnt({15 - 3*j})")
        consume(j, KB, VB)
    if wolate != 2: A("s_cmp_lg_u32 s45, 0\ns_cbranch_scc1 L_exit")
    if al: A(f".p2align {al}")
    A("L_loop:")
    if stamps: A("s_memrealtime s[60:61]")
    if deep: A(f"ds_read_b32 v{FL}, v{ZERO} offset:{L_FLAG}")
    if rbd: A(f"s_lshr_b32 s47, s85, 4\ns_cmp_eq_u32 s47, {rbd+1}\ns_cbranch_scc1 L_board\nL_board_ret:")
    def load1(n, sreg):
        j, t = divmod(n, 3)
        base = (KA if j < 2 else VA) + 12 * (j & 1) + 4 * t
        srd = 28 if j < 2 else 32
        A(f"buffer_load_dwordx4 v[{base}:{base+3}], v2, s[{srd}:{srd+3}], s{sreg} offen offset:{OFFS[3*(j&1)+t]}{PK if j < 2 else PV}")

    assert 4 <= wn <= 8 and fill4 and not (deep or rd or rbd or th < 999)
    A(f"v_mov_b32 v{SA}, 0\nv_mov_b32 v{SB}, 0")
    stubs = []
    for j in range(4):
        if j == 2:
            softmax_part()
        A(f"s_waitcnt vmcnt({wn - 3})")
        if j == 0 and xg: A("s_cmp_eq_u32 s41, 2\ns_cbranch_scc1 L_xg")
        consume(j, KA, VA)
        if j == 0 and xg: A("L_xg_ret:")
        ns = range(3*j + wn, 3*j + 3 + wn)
        cur = [n for n in ns if n < 12]
        nxt = [n - 12 for n in ns if n >= 12]
        if cur:
            if not peel: A(f"s_cmp_eq_u32 s41, 1\ns_cbranch_scc1 L_sk{j}")
            for n in cur: load1(n, 43)
            A(f"L_sk{j}:")
        if j == 1 and nxt:
            A("s_cmp_ge_u32 s85, 240\ns_cbranch_scc1 L_st1")
            uoff(99, 85)
            for n in nxt: load1(n, 99)
            A("L_rt1:")
            stubs.append(len(nxt))
        if j == 2:
            prog()
            A("s_cmp_ge_u32 s85, 240\ns_cbranch_scc1 L_last")
            if not stubs: uoff(99, 85)
            if xg and not peel: A("s_cmp_eq_u32 s41, 1\ns_cbranch_scc1 L_skx")
            for n in nxt: load1(n, 99)
            if xg: A("L_skx:")
            advance()
        if j == 3:
            for n in nxt: load1(n, 99)
            A("s_mov_b32 s43, s99")
            if not peel: A("s_lshl_b32 s41, s41, 1\ns_and_b32 s41, s41, 2" if xg else "s_mov_b32 s41, 0")
        if j == 1 and xe:
            A("s_lshr_b32 s47, s85, 4\ns_cmp_eq_u32 s47, s86\ns_cbranch_scc1 L_early\nL_early_ret:")
        if j == 1 and not stubs: A("s_nop 0")
    WO = KA

    def wo_load(j):
        o = j * 1280
        A(f"buffer_load_dwordx4 v[{WO+4*j}:{WO+4*j+3}], v3, s[36:39], s{72 if o < 4096 else 73} offen offset:{o if o < 4096 else o-5120}{P}")
    if deep or rd:
        if rd: A(f"s_cmp_lt_u32 s85, {16*(rd+1)}\ns_cbranch_scc1 L_loop")
        else: A("s_cmp_eq_u32 s47, 0\ns_cbranch_scc1 L_loop")
        group(2, KA, VA, 43); group(3, KA, VA, 43)
        for j in range(4): group(j, KB, VB, 44)
        A("s_mov_b32 s100, 0\nL_deep:")
        if stamps: A("s_memrealtime s[60:61]")
        A(f"v_mov_b32 v{SA}, 0\nv_mov_b32 v{SB}, 0")
        for j in range(4):
            if j == 2: softmax_part()
            A("s_waitcnt vmcnt(9)")
            consume(j, KA, VA)
            if j == 0:
                prog()
                A("s_cmp_ge_u32 s85, 240\ns_cselect_b32 s45, 1, 0\ns_cbranch_scc1 L_dsub0")
                uoff(43, 85)
                group(0, KA, VA, 43)
                advance()
                A("L_dret0:")
            elif j < 3:
                A(f"s_cmp_lg_u32 s45, 0\ns_cbranch_scc1 L_dsub{j}")
                group(j, KA, VA, 43)
                A(f"L_dret{j}:")
            else:
                A("s_cmp_lg_u32 s45, 0\ns_cbranch_scc1 L_F")
                group(3, KA, VA, 43)
                A("s_branch L_deep")
        for j in range(3):
            A(f"L_dsub{j}:")
            if wolate:
                dummies(3)
            else:
                for jj in range(3*j, min(3*j+3, 8)): wo_load(jj)
                if j == 2: dummies(1)
            A(f"s_branch L_dret{j}")
    else:
        A("s_branch L_loop")
    if xg:
        A("L_xg:")
        if peel: A("s_mov_b32 s41, 0")
        for r in range(12):
            A(f"v_dot2c_f32_bf16 v{SA}, v{XG+r}, v{Q+r}")
        A("s_branch L_xg_ret")
    if stubs:
        A("L_st1:")
        dummies(stubs[0])
        A("s_branch L_rt1")
    if rbd:
        A(f"""L_board:
        s_cmp_lg_u32 s3, 0
        s_cbranch_scc1 L_board_ret
        global_load_dword v{FL}, v{BD}, s[26:27] sc1
        s_cmp_lg_u32 s86, 0
        s_cbranch_scc1 L_board_ret
        v_mul_u32_u24 v{PA}, 384, v1
        v_add_u32 v{PA}, s87, v{PA}
        v_mov_b32 v{PB}, s82
        s_mov_b64 exec, 0xff
        global_store_dword v{PA}, v{PB}, s[26:27] sc1
        s_mov_b64 exec, -1
        s_branch L_board_ret
        L_judge:
        s_cmp_eq_u32 s47, {rbd+3}
        s_cbranch_scc1 L_judge2
        s_cmp_gt_u32 s47, {rbd+3}
        s_cbranch_scc1 L_early_ret
        s_cmp_lg_u32 s3, 0
        s_cbranch_scc1 L_early_ret
        v_cmp_eq_u32 vcc, s82, v{FL}
        s_bcnt1_i32_b64 s48, vcc
        s_cmp_lt_u32 s48, {nq}
        s_cbranch_scc1 L_early_ret
        v_mov_b32 v{FL}, 1
        ds_write_b32 v{ZERO}, v{FL} offset:{L_FLAG}
        s_branch L_early_ret
        L_judge2:
        ds_read_b32 v{FL}, v{ZERO} offset:{L_FLAG}
        s_waitcnt lgkmcnt(0)
        v_cmp_eq_u32 vcc, 1, v{FL}
        s_cbranch_vccz L_early_ret""")
    if th < 999 or rbd or xe:
        A("L_early:\ns_mov_b32 s100, 0")
        for j in range(4): group(j, KB, VB, 44)
        A("s_branch L_early_ret")
    A("L_last:")
    g.stamp(3)
    A("s_mov_b32 s45, 1")
    if th < 999 or rbd or xe:
        A("s_cmp_eq_u32 s100, 0\ns_cbranch_scc1 L_last3")
    for j in range(4): group(j, KB, VB, 44)
    WO = KA

    def wo_loads():
        for j in range(8):
            o = j * 1280
            A(f"buffer_load_dwordx4 v[{WO+4*j}:{WO+4*j+3}], v3, s[36:39], s{72 if o < 4096 else 73} offen offset:{o if o < 4096 else o-5120}{P}")
    if wolate:
        if wn < 6:
            for n in range(6 + wn, 12): pass
        dummies(6)
        A(f"s_waitcnt vmcnt({18 + (stubs[0] if stubs else 0)})")
    else:
        wo_loads()
        A("s_waitcnt vmcnt(20)")
    if th < 999 or rbd or xe:
        A("s_branch L_last4\nL_last3:")
        if wolate:
            dummies(6)
            A("s_waitcnt vmcnt(6)")
        else:
            wo_loads()
            A("s_waitcnt vmcnt(8)")
        A("L_last4:")
    consume(3, KA, VA)
    A("s_branch L_F")
    if wolate == 2:
        A("L_Fl:")
        wo_loads()
        g.dpp("v_add_f32", LL, LL, LL, "row_ror:8")
        g.allred_16_32("v_add_f32", LL, T)
        A(f"ds_write_b64 v{LS}, v[{MC}:{LL}] offset:{L_ST}")
        A("s_waitcnt vmcnt(17)")
        consume(2, KB, VB)
        A("s_waitcnt vmcnt(14)")
        consume(3, KB, VB)
    A("L_exit:")
    if wolate == 1: wo_loads()
    g.stamp(4)
    if wolate != 2:
        g.dpp("v_add_f32", LL, LL, LL, "row_ror:8")
        g.allred_16_32("v_add_f32", LL, T)
    else:
        A("s_nop 6")
    O0, S0, XR = 108, 112, 96
    A(f"""{f"v_mov_b32 v{T}, 1" if deep else ""}
    ds_write_b128 v{LA}, v[{ACC}:{ACC+3}] offset:{L_ACC}
    ds_write_b128 v{LA}, v[{ACC+4}:{ACC+7}] offset:{L_ACC+1024}
    ds_write_b128 v{LA}, v[{ACC+8}:{ACC+11}] offset:{L_ACC+2048}
    {f"ds_write_b64 v{LS}, v[{MC}:{LL}] offset:{L_ST}" if wolate != 2 else ""}""")
    if deep: A(f"ds_write_b32 v{ZERO}, v{T} offset:{L_DONE}")
    A(f"""s_waitcnt lgkmcnt(0)
    s_barrier
    s_cmp_lg_u32 s83, 0
    s_cbranch_scc1 L_sdone""")
    if wolate == 3:
        for j in range(8):
            A(f"ds_read_b128 v[{WO+4*j}:{WO+4*j+3}], v3 offset:{L_WO+1024*j}")
    if sready:
        A("""L_pollR:
        s_load_dwordx8 s[4:11], s[26:27], s88 glc
        s_mov_b64 s[92:93], s[26:27]
        s_sub_u32 s58, s58, 1
        s_waitcnt lgkmcnt(0)""")
        for j in range(0, 8, 2):
            A(f"s_xor_b64 s[{4+j}:{5+j}], s[{4+j}:{5+j}], s[86:87]")
        A("""s_or_b64 s[4:5], s[4:5], s[6:7]
        s_or_b64 s[8:9], s[8:9], s[10:11]
        s_or_b64 s[4:5], s[4:5], s[8:9]
        s_cbranch_scc0 L_pollO
        s_and_b32 s47, s58, 63
        s_cbranch_scc1 L_pollR
        s_mov_b64 s[92:93], s[90:91]""")
    def ohead(b):
        g.dpp("v_max_f32", T, b + 4, b + 4, "quad_perm:[1,0,3,2]")
        A("s_nop 1")
        g.dpp("v_max_f32", T, T, T, "quad_perm:[2,3,0,1]")
        A(f"""v_sub_f32 v{T}, v{b+4}, v{T}
        v_exp_f32 v{T}, v{T}
        s_nop 0
        v_mul_f32 v136, v{b+5}, v{T}""")
        for e in range(4):
            A(f"v_mul_f32 v{132+e}, v{b+e}, v{T}")
    if osets == 2:
        O1 = 124

        def oissue(b):
            A(f"""global_load_dwordx4 v[{b}:{b+3}], v{OA}, s[92:93] sc1
            global_load_dwordx4 v[{b+4}:{b+7}], v{OS}, s[92:93] offset:768 sc1""")
        oissue(O0)
        A(f"s_sleep {ostag}\nL_pollO:")
        oissue(O1)
        A("s_waitcnt vmcnt(2)")
        g.tagcheck(list(range(O0, O0 + 8)), T)
        A("s_cbranch_vccz L_gotO")
        g.pick("s89")
        oissue(O0)
        A("s_waitcnt vmcnt(2)")
        g.tagcheck(list(range(O1, O1 + 8)), T)
        A("s_cbranch_vccz L_gotO1")
        g.spin("L_pollO", 0)
        A("L_gotO1:")
        ohead(O1)
        A("s_branch L_ocommon")
    else:
        A(f"""L_pollO:
        global_load_dwordx4 v[{O0}:{O0+3}], v{OA}, s[92:93] sc1
        global_load_dwordx4 v[{S0}:{S0+3}], v{OS}, s[92:93] offset:768 sc1
        s_waitcnt vmcnt(0)""")
        g.tagcheck(list(range(O0, O0 + 8)), T)
        A("s_cbranch_vccz L_gotO")
        if dual: g.pick("s89")
        g.spin("L_pollO", sleep)
    A("L_gotO:")
    g.stamp(5)
    ohead(O0)
    A("L_ocommon:")
    O0, S0 = 132, 135
    for ctl in ["quad_perm:[1,0,3,2]", "quad_perm:[2,3,0,1]"]:
        g.dpp("v_add_f32", S0 + 1, S0 + 1, S0 + 1, ctl)
        for e in range(4):
            g.dpp("v_add_f32", O0 + e, O0 + e, O0 + e, ctl)
    A(f"""v_rcp_f32 v{T}, v{S0+1}
    s_nop 0""")
    for e in range(4):
        A(f"v_mul_f32 v{O0+e}, v{O0+e}, v{T}")
    for e in range(4):
        A(f"v_cvt_pk_bf16_f32 v{O0+e}, v{O0+e}, v{O0+e}")
    for rq in range(8):
        A(f"ds_bpermute_b32 v{XR+rq}, v{BP0 if rq < 4 else BP1}, v{O0+(rq&3)}")
    D = ACC
    AR = [A0, A1, 116, 120]
    for rq in range(8):
        A(f"s_waitcnt lgkmcnt({7-rq})")
        Ar = AR[rq % 4]
        for r in range(4):
            A(f"v_and_b32 v{Ar+r}, v{XR+rq}, v{M+r}")
        if rq >= 1:
            p = rq - 1
            c = "0" if p == 0 else f"v[{D}:{D+3}]"
            A(f"v_mfma_f32_16x16x32_bf16 v[{D}:{D+3}], v[{AR[p%4]}:{AR[p%4]+3}], v[{WO+4*p}:{WO+4*p+3}], {c}")
    A(f"""s_nop 0
    v_mfma_f32_16x16x32_bf16 v[{D}:{D+3}], v[{AR[3]}:{AR[3]+3}], v[{WO+28}:{WO+31}], v[{D}:{D+3}]
    s_nop 7
    ds_write_b128 v{LY}, v[{D}:{D+3}] offset:{L_YP}
    s_waitcnt lgkmcnt(0)
    s_barrier""")
    if warm & 4: A("@end")
    A("L_sdone:")
    g.stamp(6)
    g.stamp_flush()
    A("s_endpgm")

    A("L_aux2:")
    if aprio != prio: A(f"s_setprio {aprio}")
    g.stamp(6)
    A(f"""s_mul_i32 s96, s95, 15
    s_add_u32 s96, s96, s101
    s_sub_u32 s69, s101, 15
    s_sub_u32 s70, s101, 24
    s_cmp_ge_u32 s101, 30
    s_cselect_b32 s69, s70, s69
    s_cselect_b32 s48, 0, s69
    s_lshl_b32 s70, s95, 3
    s_add_u32 s70, s70, s69
    s_add_u32 s70, s70, 120
    s_cmp_lt_u32 s48, 6
    s_cselect_b32 s70, s70, 255
    s_cmp_lt_u32 s101, 15
    s_cselect_b32 s96, s96, s70
    s_mul_i32 s59, s95, 10
    s_sub_u32 s69, s101, 21
    s_add_u32 s59, s59, s69
    s_cmp_lt_u32 s69, 10
    s_cselect_b32 s59, s59, 255
    s_lshl_b32 s68, s66, 3
    s_lshl_b32 s47, s67, 2
    s_add_u32 s68, s68, s47
    s_add_u32 s68, s68, s49
    s_lshl_b32 s68, s68, 10
    s_add_u32 s68, s68, {WS_O}
    s_add_u32 s98, s101, 17
    s_and_b32 s98, s98, 31
    s_cmp_ge_u32 s98, 30
    s_cselect_b32 s83, 1, 0
    s_mul_i32 s74, s95, 30
    s_add_u32 s74, s74, s98
    s_lshl_b32 s74, s74, 10
    s_add_u32 s74, s74, {WS_Y}
    s_lshl_b32 s47, s96, 10
    s_add_u32 s75, s47, {WS_G}
    s_add_u32 s48, s47, {WS_Y + 120*1024}
    s_cmp_lt_u32 s96, 120
    s_cselect_b32 s75, s75, s48
    s_mul_i32 s69, s96, 205
    s_lshr_b32 s69, s69, 10
    s_mul_i32 s70, s69, 5
    s_sub_u32 s70, s96, s70
    s_mov_b32 s63, 0
    s_cmp_lt_u32 s96, 120
    s_cbranch_scc1 L_gtask
    L_wo:""")
    if wolate == 3:
        A(f"""s_cmp_lg_u32 s83, 0
        s_cbranch_scc1 L_wo_done
        s_mul_i32 s47, s95, 30
        s_add_u32 s47, s47, s98
        s_mul_i32 s48, s47, 205
        s_lshr_b32 s48, s48, 10
        s_mul_i32 s72, s48, 5
        s_sub_u32 s72, s47, s72
        s_lshl_b32 s72, s72, 8
        s_mul_i32 s48, s48, 163840
        s_add_u32 s72, s72, s48
        s_mov_b32 s36, s12
        s_mov_b32 s37, s13
        v_lshrrev_b32 v{T0}, 4, v1
        v_mul_u32_u24 v{T0}, 10240, v{T0}
        v_and_b32 v{T1}, 15, v1
        v_lshl_add_u32 v{T0}, v{T1}, 4, v{T0}
        s_mov_b32 s73, {L_WO}
        s_mov_b32 s77, 1280
        L_wo_loop:
        s_mov_b32 m0, s73
        s_add_u32 s73, s73, 1024
        buffer_load_dwordx4 v{T0}, s[36:39], s72 offen{P} lds
        s_and_b32 s47, s73, 0x1c00
        s_cmp_eq_u32 s47, {L_WO & 0x1c00}
        s_cselect_b32 s47, {40960 - 7*1280}, s77
        s_add_u32 s72, s72, s47
        s_waitcnt vmcnt({ww - 1})
        s_cmp_lt_u32 s73, {L_WO + 32768}
        s_cbranch_scc1 L_wo_loop
        s_waitcnt vmcnt(0)
        L_wo_done:""")
    A(f"""s_sub_u32 s47, s96, 120
    s_cmp_lt_u32 s47, 60
    s_cbranch_scc0 L_ffn_done""")
    A(f"""s_sub_u32 s76, s69, 24
    s_mul_i32 s47, s76, 10240
    s_add_u32 s47, s47, {WS_G + 4096}
    v_lshl_add_u32 v{T0}, v1, 4, s47
    v_add_u32 v{T1}, 5120, v{T0}
    {f"s_sleep {gs0}" if gs0 else ""}
    L_pollG:
    s_sleep {lsleep}""")
    for j in range(5):
        A(f"global_load_dwordx4 v[{W+4*j}:{W+4*j+3}], v{T0}, s[26:27] offset:{j*1024-4096} sc1")
    for j in range(5):
        A(f"global_load_dwordx4 v[{W+20+4*j}:{W+20+4*j+3}], v{T1}, s[26:27] offset:{j*1024-4096} sc1")
    A("s_waitcnt vmcnt(0)")
    g.tagcheck(list(range(W, W + 40)), T2, GM_)
    A("s_cbranch_vccz L_gotG")
    g.spin("L_pollG", lsleep)
    A("L_gotG:")
    for f in range(2):
        for j in range(1, 5):
            for e in range(4):
                A(f"v_add_f32 v{W+20*f+e}, v{W+20*f+e}, v{W+20*f+4*j+e}")
    S0_, S1_ = W, W + 20
    GG, UU = W + 4, W + 8
    for e in range(4):
        A(f"v_mov_b32 v{GG+e}, v{S0_+e}\nv_mov_b32 v{UU+e}, v{S1_+e}")
    A("s_nop 1")
    for e in range(4):
        A(f"v_mov_b32_dpp v{GG+e}, v{S1_+e} row_ror:8 row_mask:0xf bank_mask:0xc")
        A(f"v_mov_b32_dpp v{UU+e}, v{S0_+e} row_ror:8 row_mask:0xf bank_mask:0x3")
    for e in range(4):
        gg, uu = GG + e, UU + e
        g.rbf(gg); g.rbf(uu)
        A(f"""v_mul_f32 v{T2}, v{gg}, v{gg}
        v_mul_f32 v{T2}, v{T2}, v{gg}
        v_mov_b32 v{T3}, v{gg}
        v_fmac_f32 v{T3}, 0x3d372713, v{T2}
        v_mul_f32 v{T3}, 0xc0135761, v{T3}
        v_exp_f32 v{T3}, v{T3}
        s_nop 0
        v_add_f32 v{T3}, 1.0, v{T3}
        v_rcp_f32 v{T3}, v{T3}
        s_nop 0
        v_mul_f32 v{gg}, v{gg}, v{T3}""")
        g.rbf(gg)
        A(f"v_mul_f32 v{gg}, v{gg}, v{uu}")
    A(f"""v_cvt_pk_bf16_f32 v{GG}, v{GG}, v{GG+1}
    v_cvt_pk_bf16_f32 v{GG+1}, v{GG+2}, v{GG+3}""")

    def wr_h():
        A(f"""v_and_b32 v{T1}, 15, v1
        v_lshlrev_b32 v{T1}, 4, v{T1}
        v_and_b32 v{T2}, 32, v1
        v_lshl_add_u32 v{T1}, v{T2}, 3, v{T1}
        v_bfe_u32 v{T2}, v1, 4, 1
        v_lshl_add_u32 v{T1}, v{T2}, 3, v{T1}
        ds_write_b64 v{T1}, v[{GG}:{GG+1}] offset:{L_X}""")

    xbuf_roundtrip(wr_h)
    A(f"""v_lshrrev_b32 v{T0}, 4, v1
    v_mul_u32_u24 v2, 40960, v{T0}
    v_and_b32 v{T1}, 15, v1
    v_lshl_add_u32 v2, v{T1}, 4, v2
    s_mul_i32 s47, s76, 163840
    s_lshl_b32 s48, s70, 8
    s_add_u32 s47, s47, s48
    v_add_u32 v2, s47, v2
    v_mov_b32 v3, 0
    s_mov_b32 s62, 1280
    v_lshl_add_u64 v[2:3], v[2:3], 0, s[20:21]""")
    nat_off(T2, T1)
    A(f"""v_add_u32 v{T2}, s75, v{T2}
    s_waitcnt lgkmcnt(0)
    s_branch L_tile2
    L_gtask:
    v_lshrrev_b32 v{T0}, 4, v1
    v_mul_u32_u24 v2, 98304, v{T0}
    v_and_b32 v{T1}, 7, v1
    v_lshl_add_u32 v2, v{T1}, 4, v2
    s_mul_i32 s47, s70, 393216
    s_lshl_b32 s48, s69, 7
    s_add_u32 s47, s47, s48
    v_add_u32 v2, s47, v2
    v_mov_b32 v3, 0
    s_mov_b32 s62, 3072
    v_and_b32 v{T1}, 8, v1
    v_cmp_eq_u32 vcc, 0, v{T1}
    v_mov_b32 v{T0}, s18
    v_mov_b32 v{T1}, s19
    v_mov_b32 v{T2}, s16
    v_mov_b32 v{T3}, s17
    v_cndmask_b32 v{T0}, v{T0}, v{T2}, vcc
    v_cndmask_b32 v{T1}, v{T1}, v{T3}, vcc
    v_lshl_add_u64 v[2:3], v[2:3], 0, v[{T0}:{T1}]
    v_lshl_add_u32 v{T2}, v1, 4, s75
    L_tile2:""")
    def t2_issue(i):
        A(f"global_load_dwordx4 v[{W+4*i}:{W+4*i+3}], v[2:3], off{P}")
        if i < 31:
            A("v_lshl_add_u64 v[2:3], v[2:3], 0, s[62:63]")
    for i in range(fw): t2_issue(i)
    tile_compute(fw, t2_issue)
    A(f"v_mov_b32 v{T1}, {GM_}\ns_nop 7")
    g.tagput(range(DD, DD + 4), T1, GM_)
    A(f"""global_store_dwordx4 v{T2}, v[{DD}:{DD+3}], s[26:27] sc1
    s_cmp_lt_u32 s96, 120
    s_cbranch_scc1 L_wo
    L_ffn_done:""")
    g.stamp(7)
    GV, XO, YA = 8, 12, 16
    A(f"""s_cmp_ge_u32 s59, 80
    s_cbranch_scc1 L_c_done
    s_cmp_ge_u32 s59, 40
    s_cselect_b32 s78, 1, 0
    s_mul_i32 s47, s78, 40
    s_sub_u32 s77, s59, s47
    s_lshr_b32 s47, s77, 3
    s_lshl_b32 s47, s47, 10
    s_and_b32 s48, s77, 7
    s_lshl_b32 s48, s48, 6
    s_add_u32 s47, s47, s48
    s_lshl_b32 s48, s78, 9
    s_add_u32 s47, s47, s48
    s_add_u32 s47, s47, {WS_Y}
    v_lshrrev_b32 v{T0}, 2, v1
    v_mul_u32_u24 v{T0}, 5120, v{T0}
    v_and_b32 v{T1}, 3, v1
    v_lshl_add_u32 v{T0}, v{T1}, 4, v{T0}
    v_add_u32 v{YA}, s47, v{T0}
    v_add_u32 v{YA+1}, 81920, v{YA}
    v_add_u32 v{YA+2}, 81920, v{YA+1}
    v_add_u32 v{T0}, 81920, v{YA+2}
    s_mul_i32 s47, s78, 1280
    s_lshl_b32 s48, s77, 5
    s_add_u32 s47, s47, s48
    v_lshl_add_u32 v{YA+3}, v{T1}, 3, s47
    v_bfe_u32 v{T1}, v1, 4, 1
    v_lshl_add_u32 v{YA+3}, v{T1}, 2, v{YA+3}
    v_lshrrev_b32 v{T1}, 5, v1
    v_lshl_add_u32 v{YA+3}, v{T1}, 1, v{YA+3}
    global_load_ushort v{XO}, v{YA+3}, s[4:5]
    v_mov_b32 v{GV}, 0
    v_mov_b32 v{GV+1}, 0
    v_mov_b32 v{GV+2}, 0
    v_mov_b32 v{GV+3}, 0
    s_bfm_b64 exec, 48, 0
    {f"s_sleep {fs0}" if fs0 else ""}
    L_pollF:
    s_sleep {2*lsleep}
    global_load_dwordx4 v[{GV}:{GV+3}], v{T0}, s[26:27] sc1
    s_waitcnt vmcnt(0)""")
    g.tagcheck(list(range(GV, GV + 4)), T2, GM_)
    A("s_cbranch_vccz L_gotF")
    g.spin("L_pollF", lsleep)
    A("L_gotF:\ns_mov_b64 exec, -1\ns_nop 1")

    def red16(base):
        A(f"""v_permlane32_swap_b32 v{base}, v{base+1}
        v_permlane32_swap_b32 v{base+2}, v{base+3}
        s_nop 0
        v_add_f32 v{base}, v{base}, v{base+1}
        v_add_f32 v{base+2}, v{base+2}, v{base+3}
        s_nop 1
        v_permlane16_swap_b32 v{base}, v{base+2}
        s_nop 0
        v_add_f32 v{base}, v{base}, v{base+2}
        s_nop 1""")
        g.dpp("v_add_f32", base, base, base, "row_ror:4")
        A("s_nop 1")
        g.dpp("v_add_f32", base, base, base, "row_ror:8")

    red16(GV)
    A(f"v_lshlrev_b32 v{XO}, 16, v{XO}")
    g.rbf(GV)
    A(f"""v_mul_f32 v{T3}, 0xbfb8aa3b, v{GV}
    v_exp_f32 v{T3}, v{T3}
    s_nop 0
    v_add_f32 v{T3}, 1.0, v{T3}
    v_rcp_f32 v{T3}, v{T3}
    s_nop 0
    v_mul_f32 v{GV}, v{GV}, v{T3}""")
    g.rbf(GV)
    A("L_c_done:")
    if tbg != tb: g.tags(TAGM)
    g.stamp(8)
    MA = 20
    A(f"""v_lshrrev_b32 v{MA}, 4, v1
    v_lshlrev_b32 v{MA}, 10, v{MA}
    v_bfe_u32 v{T0}, v1, 1, 3
    v_lshl_add_u32 v{MA}, v{T0}, 4, v{MA}
    v_and_b32 v{T0}, 1, v1
    v_lshl_add_u32 v{MA}, v{T0}, 8, v{MA}
    v_mov_b32 v{MA+1}, 0
    v_lshl_add_u32 v{MA+2}, v1, 4, s68
    v_mov_b32 v{MA+3}, {TAGM}
    v_cmp_eq_u32 s[50:51], 48, v1""")
    nat_off(2, T1)
    A(f"""v_add_u32 v2, s74, v2
    v_lshlrev_b32 v{DD}, 4, v1""")
    if sready:
        A(f"""s_lshl_b32 s47, s66, 5
        s_lshl_b32 s48, s67, 2
        s_add_u32 s47, s47, s48
        s_add_u32 s47, s47, s49
        s_lshl_b32 s47, s47, 2
        s_add_u32 s47, s47, {WS_R}
        v_mov_b32 v3, s47
        v_mov_b32 v{T3}, s82""")
    if deep:
        A(f"""s_lshl_b32 s47, s95, 7
        s_add_u32 s47, s47, {WS_D}
        v_lshl_add_u32 v{T0}, v1, 2, s47
        s_lshl_b32 s48, s101, 2
        s_add_u32 s47, s47, s48
        v_mov_b32 v3, s47
        s_bfm_b64 exec, 32, 0
        L_pollD:
        s_sleep {dsleep}
        global_load_dword v{T1}, v{T0}, s[26:27] sc1
        ds_read_b32 v{T2}, v{MA+1} offset:{L_DONE}
        s_waitcnt vmcnt(0) lgkmcnt(0)
        v_cmp_ne_u32 vcc, 0, v{T2}
        s_cbranch_vccnz L_gotD
        v_cmp_eq_u32 vcc, s82, v{T1}
        s_bcnt1_i32_b64 s47, vcc
        s_cmp_ge_u32 s47, {ndone}
        s_cbranch_scc1 L_setD""")
        g.spin("L_pollD", 0)
        A(f"""L_setD:
        v_mov_b32 v{T1}, 1
        ds_write_b32 v{MA+1}, v{T1} offset:{L_FLAG}
        L_gotD:
        s_mov_b64 exec, -1
        v_mov_b32 v{T3}, s82""")
    if aprio != prio: A(f"s_setprio {prio}")
    if warm & 8: A("s_mov_b64 exec, 0\ns_branch WT_0\nL_wt_ret:\ns_mov_b64 exec, -1\ns_branch L_wt_go\n@chain WT 1 L_wt_ret\nL_wt_go:")
    A(f"""s_barrier
    ds_read_b128 v[{AX0}:{AX0+3}], v{MA+1} offset:{L_ST}
    ds_read_b128 v[{AX1}:{AX1+3}], v{MA+1} offset:{L_ST+16}""")
    g.stamp(9)
    for w in range(4):
        A(f"ds_read_b128 v[{W+8*w}:{W+8*w+3}], v{MA} offset:{L_ACC+3072*w}")
        A(f"ds_read_b128 v[{W+8*w+4}:{W+8*w+7}], v{MA} offset:{L_ACC+3072*w+640}")
    ms = [AX0, AX0 + 2, AX1, AX1 + 2]
    OD = W + 32
    A(f"""s_waitcnt lgkmcnt(8)
    v_max_f32 v{T0}, v{ms[0]}, v{ms[1]}
    v_max3_f32 v{T0}, v{T0}, v{ms[2]}, v{ms[3]}
    v_and_b32 v{T0}, s81, v{T0}""")
    for w in range(4):
        A(f"v_sub_f32 v{ms[w]}, v{ms[w]}, v{T0}")
    for w in range(4):
        A(f"v_exp_f32 v{ms[w]}, v{ms[w]}")
    A(f"s_nop 0\nv_mul_f32 v{T1}, v{ms[0]}, v{ms[0]+1}")
    for w in range(1, 4):
        A(f"v_fmac_f32 v{T1}, v{ms[w]}, v{ms[w]+1}")
    for w in range(4):
        A(f"s_waitcnt lgkmcnt({6-2*w})")
        for e in (0, 2):
            a_ = W + 8*w + e
            A(f"v_pk_add_f32 v[{a_}:{a_+1}], v[{a_}:{a_+1}], v[{a_+4}:{a_+5}]")
        for e in (0, 2):
            a_ = W + 8*w + e
            if w == 0:
                A(f"v_pk_mul_f32 v[{OD+e}:{OD+e+1}], v[{ms[0]}:{ms[0]+1}], v[{a_}:{a_+1}] op_sel_hi:[0,1]")
            else:
                A(f"v_pk_fma_f32 v[{OD+e}:{OD+e+1}], v[{ms[w]}:{ms[w]+1}], v[{a_}:{a_+1}], v[{OD+e}:{OD+e+1}] op_sel_hi:[0,1,1]")
    A(f"""v_cndmask_b32 v{OD}, v{OD}, v{T0}, s[50:51]
    v_cndmask_b32 v{OD+1}, v{OD+1}, v{T1}, s[50:51]""")
    g.tagput(range(OD, OD + 4), MA + 3)
    A(f"""s_bfm_b64 exec, 49, 0
    global_store_dwordx4 v{MA+2}, v[{OD}:{OD+3}], s[26:27]{'' if dual else ' sc1'}""")
    if sready: A(f"s_mov_b64 exec, 1\nglobal_store_dword v3, v{T3}, s[26:27]\ns_bfm_b64 exec, 49, 0")
    if dual: A(f"global_store_dwordx4 v{MA+2}, v[{OD}:{OD+3}], s[90:91] sc1")
    A("s_mov_b64 exec, -1")
    g.stamp(10)
    A(f"""s_cmp_lg_u32 s83, 0
    s_cbranch_scc1 L_noy
    s_barrier""")
    for w in range(4):
        A(f"ds_read_b128 v[{W+4*w}:{W+4*w+3}], v{DD} offset:{L_YP+1024*w}")
    for w in range(1, 4):
        A(f"s_waitcnt lgkmcnt({3-w})")
        for e in (0, 2):
            A(f"v_pk_add_f32 v[{W+e}:{W+e+1}], v[{W+e}:{W+e+1}], v[{W+4*w+e}:{W+4*w+e+1}]")
    g.tagput(range(W, W + 4), MA + 3)
    A(f"""global_store_dwordx4 v2, v[{W}:{W+3}], s[26:27] sc1
    L_noy:""")
    g.stamp(11)
    A(f"""s_cmp_ge_u32 s59, 80
    s_cbranch_scc1 L_adone""")
    YS = [W + 16 + 12 * j for j in range(ysets)]

    def yissue(j):
        for k in range(3):
            A(f"global_load_dwordx4 v[{YS[j]+4*k}:{YS[j]+4*k+3}], v{YA+k}, s[26:27] sc1")
    if ymiss < 64:
        A("L_pollY1:")
        yissue(0)
        A("s_waitcnt vmcnt(0)")
        g.tagcheck(list(range(YS[0], YS[0] + 12)), T2)
        A(f"""s_cbranch_vccz L_gotY0
        s_bcnt1_i32_b64 s47, vcc
        s_cmp_le_u32 s47, {ymiss}
        s_cbranch_scc1 L_pollY2""")
        g.spin("L_pollY1", ysleep)
        A("L_pollY2:")
    for j in range(ysets - 1):
        yissue(j)
        A(f"s_sleep {ystag}")
    A("L_pollY:")
    for j in range(ysets):
        yissue((j + ysets - 1) % ysets)
        A(f"s_waitcnt vmcnt({3*(ysets-1)})")
        g.tagcheck(list(range(YS[j], YS[j] + 12)), T2)
        A(f"s_cbranch_vccz L_gotY{j}")
    g.spin("L_pollY", sleep if ysets == 1 else 0)
    Y0 = YS[0]
    for j in range(ysets - 1, -1, -1):
        A(f"L_gotY{j}:")
        for e in (0, 2):
            A(f"v_pk_add_f32 v[{T0+e}:{T0+e+1}], v[{YS[j]+e}:{YS[j]+e+1}], v[{YS[j]+4+e}:{YS[j]+5+e}]")
        for e in (0, 2):
            A(f"v_pk_add_f32 v[{T0+e}:{T0+e+1}], v[{T0+e}:{T0+e+1}], v[{YS[j]+8+e}:{YS[j]+9+e}]")
        if j > 0: A("s_branch L_gotY")
    A("L_gotY:")
    g.stamp(12)
    A("s_nop 1")
    red16(T0)
    g.rbf(T0)
    A(f"v_mul_f32 v{T0}, v{T0}, v{GV}")
    g.rbf(T0)
    A(f"""v_add_f32 v{T0}, v{T0}, v{XO}
    s_mov_b32 exec_lo, 0x000f000f
    s_mov_b32 exec_hi, 0x000f000f
    v_cvt_pk_bf16_f32 v{T0}, v{T0}, v{T0}
    global_store_short v{YA+3}, v{T0}, s[22:23]
    s_cmp_lg_u32 s59, 79
    s_cbranch_scc1 L_adone
    s_mov_b64 exec, 1
    v_mov_b32 v{T2}, {WS_E}
    v_mov_b32 v{T1}, s82
    global_store_dword v{T2}, v{T1}, s[26:27]{' sc1' if dbg else ''}
    L_adone:
    s_mov_b64 exec, -1""")
    if warm & 8: A("@end")
    g.stamp(13)
    g.stamp_flush(True)
    A("L_end:\ns_endpgm")
    if cpf:
        A(f".fill (16384 - (. - {KN}))/4, 4, 0xbf810000")

    g.L = [x for x in insert_pads(g.L, space) if x.strip() not in ("@nopad", "@pad")]
    nv = 176 if stamps else 168
    out = [HDR + f"; @launch grid=(256,1,1) block=(320,1,1) lds={LDS_BYTES + (32768 if wolate == 3 else 0)}",
           '.amdgcn_target "amdgcn-amd-amdhsa--gfx950"', ".text", f".globl {KN}", ".p2align 8",
           f".type {KN},@function", f"{KN}:"] + g.L + [
        '.section .rodata,"a"', ".p2align 6", f".amdhsa_kernel {KN}",
        f"  .amdhsa_next_free_vgpr {nv}", "  .amdhsa_next_free_sgpr 102", f"  .amdhsa_accum_offset {nv}",
        "  .amdhsa_group_segment_fixed_size 0", "  .amdhsa_kernarg_size 96", "  .amdhsa_user_sgpr_count 2",
        "  .amdhsa_user_sgpr_kernarg_segment_ptr 1", "  .amdhsa_system_sgpr_workgroup_id_x 1",
        "  .amdhsa_float_denorm_mode_32 3", ".end_amdhsa_kernel"]
    return "\n".join(out) + "\n"


if __name__ == "__main__":
    kw = {}
    for kv in sys.argv[2:]:
        k, v = kv.split("=")
        kw[k] = int(v) if v.lstrip("-").isdigit() else v.replace("+", " ")
    open(sys.argv[1], "w").write(gen(**kw))
```

```python
import sys
KN = "recurrent_scan__gqa_block_cached__geglu_ffn__decode_kernel"

HDR = """; Kernarg layout for this problem (96 bytes, ptrs only, base s[0:1]):
;
"""

WS_Q = 0x00000
WS_E = 0x4F000
WS_O = 0x50000
WS_Y = 0x90000
WS_G = 0x100000
WS_D = 0x140000
WS_R = 0x141000
WS_B = 0x180000
WS_STAMP = 0x300000
TAGM = 0x1ff
TAGS = [80, 0, 1, 14]
L_X = 0
L_Q = 512
L_FLAG = 896
L_DONE = 900
L_ST = 960
L_YP = 1024
L_ACC = 5120
L_WO = 5120 + 12288 + 2048
LDS_BYTES = 5120 + 12288 + 2048

LOG2E = 0x3FB8AA3B
SCALE = 0x3D93CD3A


class G:
    def __init__(self, stamps, dbg):
        self.L = []
        self.stamps = stamps
        self.dbg = dbg
        self.nlab = 0

    def A(self, s):
        for x in s.split("\n"):
            x = x.strip()
            if x:
                self.L.append("    " + x if not x.endswith(":") else x)

    def lab(self, p="L"):
        self.nlab += 1
        return f"{p}_{self.nlab}"

    def stamp(self, idx):
        if not self.stamps:
            return
        self.A(f"""s_memrealtime s[60:61]
        s_waitcnt lgkmcnt(0)
        v_writelane_b32 v168, s60, {idx}""")

    def stamp_flush(self, aux=False):
        if not self.stamps:
            return
        if self.dbg:
            sel = ([(2, 1, 0), (3, 3, 0), (6, 8, 0), (7, 9, 0), (8, 9, 1), (9, 10, 0), (11, 11, 0), (12, 12, 0), (13, 13, 0), (14, 2, 0)] if aux
                   else [(0, 0, 1), (1, 0, 0), (4, 2, 0), (5, 2, 1), (10, 5, 0), (15, 1, 0)])
            self.A("s_mov_b64 exec, 1")
            lw = self.lab("L_dw"); lo = self.lab("L_dwo")
            self.A(f"""v_mov_b32 v170, {WS_E}
            s_mov_b32 s58, 20000
            {lw}:
            s_sleep 64
            global_load_dword v169, v170, s[26:27] sc1
            s_waitcnt vmcnt(0)
            v_and_b32 v169, {TAGM}, v169
            v_cmp_eq_u32 vcc, s80, v169
            s_cbranch_vccnz {lo}
            s_sub_u32 s58, s58, 1
            s_cmp_gt_i32 s58, 0
            s_cbranch_scc1 {lw}
            {lo}:
            s_sleep 64""")
            for slot, idx, inv in sel:
                l = self.lab("L_dbg")
                self.A(f"v_readlane_b32 s47, v168, {idx}\ns_nop 3\ns_cmp_eq_u32 s47, 0\ns_cbranch_scc1 {l}")
                if inv: self.A("s_not_b32 s47, s47")
                self.A(f"v_mov_b32 v169, s47\nv_mov_b32 v170, {slot*4}\nglobal_atomic_umax v170, v169, s[24:25]\n{l}:")
            self.A("s_mov_b64 exec, -1")
            return
        self.A(f"""s_getreg_b32 s47, hwreg(HW_REG_HW_ID)
        s_getreg_b32 s48, hwreg(HW_REG_XCC_ID)
        s_lshl_b32 s48, s48, 24
        s_and_b32 s47, s47, 0xffffff
        s_or_b32 s47, s47, s48
        s_or_b32 s47, s47, 0x80000000
        v_writelane_b32 v168, s47, 15
        s_mul_i32 s47, s2, 5
        s_add_u32 s47, s47, s79
        s_lshl_b32 s47, s47, 8
        s_add_u32 s47, s47, {WS_STAMP}
        v_lshl_add_u32 v169, v1, 2, s47
        global_store_dword v169, v168, s[26:27]""")

    def spin(self, back, sleep):
        if sleep: self.A(f"s_sleep {sleep}")
        self.A(f"""s_sub_u32 s58, s58, 1
        s_cmp_gt_i32 s58, 0
        s_cbranch_scc1 {back}""")

    def pick(self, mask):
        self.A(f"""s_and_b32 s47, s58, {mask}
        s_cmp_eq_u32 s47, 0
        s_cselect_b64 s[92:93], s[90:91], s[26:27]""")

    def allred_16_32(self, op, v, t):
        self.A(f"""v_mov_b32 v{t}, v{v}
        s_nop 1
        v_permlane16_swap_b32 v{v}, v{t}
        s_nop 0
        {op} v{v}, v{v}, v{t}
        v_mov_b32 v{t}, v{v}
        s_nop 1
        v_permlane32_swap_b32 v{v}, v{t}
        s_nop 0
        {op} v{v}, v{v}, v{t}""")

    def dpp(self, op, d, a, b, ctl, bank="0xf"):
        self.A(f"{op}_dpp v{d}, v{a}, v{b} {ctl} row_mask:0xf bank_mask:{bank}")

    def tagcheck(self, regs, t, TAGM=None):
        TAGM = TAGM or globals()["TAGM"]
        for j, r in enumerate(regs):
            self.A(f"v_xor_b32 v{r}, s{TAGS[j & 3]}, v{r}")
        self.A(f"v_or_b32 v{t}, v{regs[0]}, v{regs[1]}")
        for j in range(2, len(regs), 2):
            self.A(f"v_or3_b32 v{t}, v{t}, v{regs[j]}, v{regs[j+1]}")
        self.A(f"v_and_b32 v{t}, {TAGM}, v{t}\nv_cmp_ne_u32 vcc, 0, v{t}")

    def tagput(self, regs, tg, TAGM=None):
        TAGM = TAGM or globals()["TAGM"]
        for r in regs:
            self.A(f"v_add_u32 v{r}, {(TAGM+1)//2}, v{r}")
        for j, r in enumerate(regs):
            self.A(f"v_bfi_b32 v{r}, v{tg}, s{TAGS[j & 3]}, v{r}")

    def tags(self, m):
        self.A(f"""s_and_b32 s80, s82, {m}
        s_add_u32 s0, s82, 173
        s_and_b32 s0, s0, {m}
        s_add_u32 s1, s82, 346
        s_and_b32 s1, s1, {m}
        s_add_u32 s14, s82, 519
        s_and_b32 s14, s14, {m}""")

    def rbf(self, v):
        self.A(f"""v_cvt_pk_bf16_f32 v{v}, v{v}, v{v}
        v_and_b32 v{v}, 0xffff0000, v{v}""")

    def masks(self, M, t0, t1):
        self.A(f"""v_and_b32 v{t0}, 1, v1
        v_lshlrev_b32 v{t0}, 4, v{t0}
        v_mov_b32 v{t1}, 0xffff
        v_lshlrev_b32 v{t0}, v{t0}, v{t1}
        v_bfe_u32 v{t1}, v1, 1, 2
        v_cmp_eq_u32 s[50:51], 0, v{t1}
        v_cmp_eq_u32 s[52:53], 1, v{t1}
        v_cmp_eq_u32 s[54:55], 2, v{t1}
        v_cmp_eq_u32 s[56:57], 3, v{t1}
        s_nop 0
        v_cndmask_b32 v{M}, 0, v{t0}, s[50:51]
        v_cndmask_b32 v{M+1}, 0, v{t0}, s[52:53]
        v_cndmask_b32 v{M+2}, 0, v{t0}, s[54:55]
        v_cndmask_b32 v{M+3}, 0, v{t0}, s[56:57]""")


def isize(line):
    t = line.strip()
    if not t or t.endswith(":") or t.startswith((";", "@", ".")):
        return 0
    op = t.split()[0]
    if op.startswith(("buffer_", "global_", "ds_", "s_load", "s_memrealtime", "s_memtime", "v_mfma", "v_perm_b32", "v_cvt_pk", "v_lshl_add", "v_and_or",
                      "v_or3", "v_pk_", "v_bfi", "v_max3", "v_fma_", "v_bfe", "v_writelane", "v_readlane", "v_add3")) or "_dpp" in op:
        return 8
    if op.startswith(("v_cmp", "v_cndmask")) and "s[" in t:
        return 8
    import re
    args = t[len(op):]
    for m in re.finditer(r"(?<![\w\[:])(-?0x[0-9a-fA-F]+|-?\d+)(?![\w\]:.])", args):
        v = int(m.group(1), 0)
        if not (-16 <= v <= 64) and not op.startswith(("s_waitcnt", "s_nop", "s_sleep", "s_setprio")):
            return 8
    return 4


def insert_pads(L, space):
    out = []
    i = 0
    while i < len(L):
        t = L[i].strip()
        if not t.startswith("@chain"):
            out.append(L[i]); i += 1; continue
        _, name, n, ret = t.split(); n = int(n)
        j = i + 1
        body = []
        while L[j].strip() != "@end":
            body.append(L[j]); j += 1
        pos = []; acc = space; ok = True
        for k, ln in enumerate(body):
            tt = ln.strip()
            if tt == "@nopad":
                if ok and acc > 64: pos.append(k); acc = 0
                ok = False
                continue
            if tt == "@pad":
                ok = True
                continue
            sz = isize(ln)
            if ok and sz and acc + sz > space:
                pos.append(k); acc = 0
            acc += sz
        per = -(-len(pos) // n)
        lab = {}
        for q, k in enumerate(pos):
            c = q // per
            first = q % per == 0
            last = q % per == per - 1 or q == len(pos) - 1
            me = f"{name}_{c}" if first else f"{name}_p{q}"
            nxt = ret if last else f"{name}_p{q+1}"
            lab[k] = [f"{me}:", f"    s_cbranch_execz {nxt}"]
        extra = [f"{name}_{c}:" for c in range((len(pos) - 1) // per + 1, n)]
        if extra: lab[pos[-1]] = extra + lab[pos[-1]]
        for k, ln in enumerate(body):
            if k in lab: out += lab[k]
            if ln.strip() not in ("@nopad", "@pad"): out.append(ln)
        i = j + 1
    return out


def gen(tb=9, tbq=9, tbg=9, stamps=0, pol="nt", sleep=1, lsleep=16, prio=3, pace=3, pre=0, ph=97, deep=0, ndone=6, dsleep=16,
        th=999, dbg=0, cpf=0, dual=1, fill4=1, wolate=2, warm=14, space=192, fw=8, ysets=3, ystag=5, rbd=0, nq=32, rd=0, sready=0, ymiss=64, ysleep=12, touch=0, wprio=1, aprio=0, ww=8, osets=1, ostag=2, wn=6, qcount=0, blate=0, qdelay=0, gs0=0, fs0=0, al=0, xe=0, xm=0xf0, polk=None, polv=None, polw=None, xg=1, peel=1, nob=0, gw=1, noffn=0, fdelay=0, gprobe=1, gsl=16, fsl=48, osl=0):
    global TAGM
    TAGM = (1 << tb) - 1
    g = G(stamps, dbg)
    A = g.A
    P = (" " + pol) if pol else ""
    PK = P if polk is None else ((" " + polk) if polk else "")
    PV = P if polv is None else ((" " + polv) if polv else "")
    if polw is not None: P = (" " + polw) if polw else ""
    M = 4
    A(f"""s_cmp_ge_u32 s2, 256
    s_cbranch_scc1 L_end
    s_load_dwordx16 s[4:19], s[0:1], 0
    s_load_dwordx8 s[20:27], s[0:1], 64
    v_lshrrev_b32 v2, 6, v0
    v_and_b32 v1, 63, v0
    v_readfirstlane_b32 s3, v2""")
    if stamps:
        A("v_mov_b32 v168, 0\ns_memrealtime s[60:61]\ns_mov_b32 s79, s3")
    A("""s_lshr_b32 s101, s2, 3
    s_and_b32 s95, s2, 7
    s_and_b32 s66, s101, 3
    s_lshl_b32 s47, s95, 2
    s_add_u32 s66, s66, s47
    s_bfe_u32 s67, s101, 0x10002
    s_lshr_b32 s49, s101, 3
    s_mul_i32 s96, s95, 30
    s_cmp_lg_u32 s3, 0
    s_cbranch_scc1 L_stream""")

    XP = 8; AX0 = 24; AX1 = 28; W = 32; DD = 160; T0, T1, T2, T3 = 164, 165, 166, 167
    A(f"""s_setprio {prio}
    s_add_u32 s97, s96, s101
    s_mul_i32 s69, s97, 205
    s_lshr_b32 s69, s69, 10
    s_mul_i32 s70, s69, 5
    s_sub_u32 s70, s97, s70
    v_lshrrev_b32 v{T0}, 4, v1
    v_and_b32 v{T1}, 7, v1
    v_bfe_u32 v{T2}, v1, 3, 1
    v_mul_u32_u24 v{T2}, 1280, v{T2}
    v_lshl_add_u32 v{T3}, v{T0}, 3, v{T1}
    v_lshl_add_u32 v{DD}, v{T3}, 4, v{T2}
    v_lshl_add_u32 v{DD+1}, v{T3}, 3, v{T2}
    s_lshl_b32 s47, s70, 8
    v_add_u32 v{DD+1}, s47, v{DD+1}
    v_mul_u32_u24 v2, 393216, v{T0}
    v_and_b32 v{T1}, 15, v1
    v_lshl_add_u32 v2, v{T1}, 4, v2
    s_mul_i32 s62, s70, 1572864
    s_lshl_b32 s48, s69, 8
    s_add_u32 s62, s62, s48
    v_mov_b32 v3, 0
    v_mov_b32 v{XP+8}, 0
    v_mov_b32 v{XP+9}, 0
    v_mov_b32 v{XP+10}, 0
    v_mov_b32 v{XP+11}, 0
    s_mov_b32 s38, 7864320
    s_mov_b32 s39, 0x20000""")
    if warm & 1: A("s_mov_b64 exec, 0\ns_branch WI_0\nL_wi_ret:\ns_mov_b64 exec, -1")
    A("s_waitcnt lgkmcnt(0)")
    if stamps:
        A("v_writelane_b32 v168, s60, 0")
    A(f"""s_mov_b32 s36, s10
    s_mov_b32 s37, s11
    global_load_dwordx4 v[{XP}:{XP+3}], v{DD}, s[4:5]
    global_load_dwordx4 v[{XP+4}:{XP+7}], v{DD}, s[4:5] offset:512
    global_load_dwordx2 v[{XP+12}:{XP+13}], v{DD+1}, s[4:5]
    s_bfm_b64 exec, 32, 0
    global_load_dwordx4 v[{XP+8}:{XP+11}], v{DD}, s[4:5] offset:1024
    s_mov_b64 exec, -1
    s_load_dword s80, s[26:27], {WS_E}
    s_cmp_ge_u32 s101, 30
    s_cbranch_scc1 L_noq1""")
    if warm & 1: A("@chain WI 1 L_wi_ret")
    for i in range(32):
        A(f"buffer_load_dwordx4 v[{W+4*i}:{W+4*i+3}], v2, s[36:39], s62 offen{P}")
        if i < 31:
            A("s_add_u32 s62, s62, 12288")
    if warm & 1: A("@end")
    A(f"""L_noq1:
    s_barrier""")
    if warm & 2: A("@chain WA 4 L_wa_ret")
    g.stamp(1)
    g.masks(M, T0, T1)
    A(f"""s_mov_b32 s81, {(~TAGM) & 0xffffffff}
    s_mov_b32 s64, 0x01000100
    s_mov_b32 s65, 0x03020302
    s_mov_b32 s58, 399999
    s_add_u32 s90, s26, {WS_B}
    s_addc_u32 s91, s27, 0
    v_mov_b32 v{T0}, 0
    v_mov_b32 v{T1}, 0
    ds_write_b64 v{T0}, v[{T0}:{T1}] offset:{L_FLAG}
    s_waitcnt lgkmcnt(0)
    s_add_u32 s82, s80, 1""")
    QM_ = (1 << tbq) - 1
    GM_ = (1 << tbg) - 1
    g.tags(GM_)
    A(f"""    s_mov_b32 s84, 1
    s_cmp_ge_u32 s101, 30
    s_cbranch_scc1 L_qgather""")
    SUM, VAR, MEAN = T0, T1, T2
    A(f"""s_mov_b32 s47, 0x3f803f80
    s_waitcnt vmcnt(32)""")
    for r in range(12):
        A(f"v_dot2c_f32_bf16 v{SUM}, s47, v{XP+r}")
    A("s_nop 2")

    def allred_stats(v, t):
        for ctl in ["quad_perm:[1,0,3,2]", "quad_perm:[2,3,0,1]", "row_half_mirror"]:
            g.dpp("v_add_f32", v, v, v, ctl)
            A("s_nop 1")
        g.allred_16_32("v_add_f32", v, t)

    allred_stats(SUM, T3)
    A(f"v_mul_f32 v{MEAN}, 0x3acccccd, v{SUM}")
    for r in range(12):
        if r == 8:
            A("s_bfm_b64 exec, 32, 0")
        A(f"""v_lshlrev_b32 v{AX1}, 16, v{XP+r}
        v_and_b32 v{AX1+1}, 0xffff0000, v{XP+r}
        v_sub_f32 v{AX1}, v{AX1}, v{MEAN}
        v_sub_f32 v{AX1+1}, v{AX1+1}, v{MEAN}
        v_fmac_f32 v{VAR}, v{AX1}, v{AX1}
        v_fmac_f32 v{VAR}, v{AX1+1}, v{AX1+1}""")
    A("s_mov_b64 exec, -1\ns_nop 1")
    allred_stats(VAR, T3)
    A(f"v_mul_f32 v{VAR}, 0x3acccccd, v{VAR}")
    g.rbf(VAR)
    g.rbf(MEAN)
    A(f"v_add_f32 v{VAR}, 0x37280000, v{VAR}")
    g.rbf(VAR)
    A(f"v_sqrt_f32 v{VAR}, v{VAR}\ns_nop 0")
    g.rbf(VAR)
    A(f"v_rcp_f32 v{VAR}, v{VAR}")
    for k in range(2):
        r = XP + 12 + k
        A(f"""v_lshlrev_b32 v{AX1}, 16, v{r}
        v_and_b32 v{AX1+1}, 0xffff0000, v{r}
        v_sub_f32 v{AX1}, v{AX1}, v{MEAN}
        v_sub_f32 v{AX1+1}, v{AX1+1}, v{MEAN}
        v_cvt_pk_bf16_f32 v{r}, v{AX1}, v{AX1+1}
        v_lshlrev_b32 v{AX1}, 16, v{r}
        v_and_b32 v{AX1+1}, 0xffff0000, v{r}
        v_mul_f32 v{AX1}, v{AX1}, v{VAR}
        v_mul_f32 v{AX1+1}, v{AX1+1}, v{VAR}
        v_cvt_pk_bf16_f32 v{r}, v{AX1}, v{AX1+1}""")

    def xbuf_roundtrip(src):
        A(f"""v_lshrrev_b32 v{T0}, 4, v1
        v_lshlrev_b32 v{T0}, 6, v{T0}
        v_and_b32 v{T1}, 8, v1
        v_lshl_add_u32 v{T0}, v{T1}, 5, v{T0}""")
        src()
        A("s_waitcnt lgkmcnt(0)")
        for j in range(4):
            A(f"ds_read_b128 v[{XP+4*j}:{XP+4*j+3}], v{T0} offset:{L_X+16*j}")

    def wr_x():
        A(f"""v_and_b32 v{T1}, 7, v1
        v_lshl_add_u32 v{T1}, v{T1}, 3, v{T0}
        ds_write_b64 v{T1}, v[{XP+12}:{XP+13}] offset:{L_X}""")

    def tile_compute(win=32, issue=None):
        for i in range(32):
            Ar = AX0 if i % 2 == 0 else AX1
            if issue and i > 0 and i - 1 + win < 32:
                issue(i - 1 + win)
            A(f"v_perm_b32 v{T3}, v{XP+(i>>1)}, v{XP+(i>>1)}, s{64+(i&1)}")
            for r in range(4):
                A(f"v_and_b32 v{Ar+r}, v{T3}, v{M+r}")
            A(f"s_waitcnt vmcnt({min(31-i, win-1)})")
            A("s_nop 0")
            c = "0" if i == 0 else f"v[{DD}:{DD+3}]"
            A(f"v_mfma_f32_16x16x32_bf16 v[{DD}:{DD+3}], v[{Ar}:{Ar+3}], v[{W+4*i}:{W+4*i+3}], {c}")

    def nat_off(dst, tmp):
        A(f"""v_and_b32 v{dst}, 15, v1
        v_lshlrev_b32 v{dst}, 5, v{dst}
        v_and_b32 v{tmp}, 16, v1
        v_add_u32 v{dst}, v{dst}, v{tmp}
        v_and_b32 v{tmp}, 32, v1
        v_lshl_add_u32 v{dst}, v{tmp}, 4, v{dst}""")

    if warm & 2: A("@end\n@chain WQ 4 L_wq_ret")
    xbuf_roundtrip(wr_x)
    nat_off(T2, T1)
    QC = 3
    A(f"""s_mul_i32 s47, s97, 1280
    v_lshrrev_b32 v{QC}, 2, v{T2}
    v_add_u32 v{T2}, s47, v{T2}
    s_add_u32 s47, s47, 1024
    v_add_u32 v{QC}, s47, v{QC}
    s_mov_b32 s84, 0
    s_waitcnt lgkmcnt(0)""")
    g.stamp(2)
    tile_compute()
    A(f"""s_nop 7
    global_store_dwordx4 v{T2}, v[{DD}:{DD+3}], s[26:27]
    v_xor_b32 v{T1}, v{DD}, v{DD+1}
    v_xor_b32 v{T3}, v{DD+2}, v{DD+3}
    v_xor_b32 v{T1}, s82, v{T1}
    v_xor_b32 v{T1}, v{T1}, v{T3}
    global_store_dword v{QC}, v{T1}, s[26:27]""")
    g.stamp(3)
    A(f"""L_qgather:
    s_mul_i32 s47, s66, 192
    v_lshl_add_u32 v{T0}, v1, 2, s47
    v_lshrrev_b32 v{T3}, 7, v{T0}
    v_mul_u32_u24 v{T3}, 6400, v{T3}
    v_and_b32 v{T0}, 127, v{T0}
    s_lshl_b32 s47, s67, 7
    s_add_u32 s47, s47, {WS_Q + 2560 + 1024}
    v_add3_u32 v2, v{T3}, v{T0}, s47
    v_lshl_add_u32 v{T3}, v{T0}, 2, v{T3}
    s_lshl_b32 s47, s67, 9
    s_add_u32 s47, s47, {WS_Q + 2560}
    v_add_u32 v{T3}, s47, v{T3}
    s_bfm_b64 s[86:87], 48, 0
    s_mov_b64 s[88:89], s[86:87]
    s_mov_b64 s[98:99], s[86:87]
    s_mov_b64 s[76:77], s[86:87]
    s_mov_b64 s[74:75], s[86:87]
    s_mov_b64 s[92:93], s[26:27]
    {f"s_sleep {qdelay}" if qdelay else ""}
    @nopad
    L_pollQ:""")
    QM = [86, 88, 98, 76, 74]
    for rb in range(5):
        A(f"s_mov_b64 exec, s[{QM[rb]}:{QM[rb]+1}]")
        l = g.lab("L_pq")
        A(f"s_cbranch_execz {l}")
        A(f"global_load_dwordx4 v[{W+4*rb}:{W+4*rb+3}], v{T3}, s[92:93] offset:{rb*1280-2560} sc1")
        A(f"global_load_dword v{W+20+rb}, v2, s[92:93] offset:{rb*1280-2560} sc1")
        A(f"{l}:")
    if dual:
        if blate: A(f"s_cmp_gt_u32 s58, {399999 - blate}\ns_cbranch_scc1 L_pq_w0")
        A(f"""s_cmp_lg_u32 s84, 0
        s_cbranch_scc1 L_pq_w0
        s_mov_b32 s84, 1
        s_mov_b64 exec, -1
        {"" if nob & 1 else f"global_store_dwordx4 v{T2}, v[{DD}:{DD+3}], s[90:91] sc1"}
        {"" if nob & 1 else f"global_store_dword v{QC}, v{T1}, s[90:91] sc1"}
        s_waitcnt vmcnt({0 if nob & 1 else 2})
        s_branch L_pq_w1
        L_pq_w0:""")
    A("s_waitcnt vmcnt(0)\nL_pq_w1:\ns_mov_b64 exec, -1\n@pad\ns_nop 0\n@nopad")
    if qcount:
        A("""s_memrealtime s[60:61]
        s_sub_u32 s47, 400015, s58
        s_min_u32 s47, s47, 40
        s_mov_b32 m0, s47
        s_waitcnt lgkmcnt(0)
        v_writelane_b32 v168, s60, m0""")
    for rb in range(5):
        A(f"s_mov_b64 exec, s[{QM[rb]}:{QM[rb]+1}]")
        A(f"""v_xor_b32 v{T0}, v{W+4*rb}, v{W+4*rb+1}
        v_xor_b32 v{W+20+rb}, v{W+20+rb}, v{W+4*rb+2}
        v_xor_b32 v{T0}, v{T0}, v{W+4*rb+3}
        v_xor_b32 v{T0}, v{T0}, v{W+20+rb}
        v_cmp_ne_u32 vcc, s82, v{T0}""")
        A(f"s_mov_b64 s[{QM[rb]}:{QM[rb]+1}], vcc")
    A(f"""s_or_b64 s[50:51], s[{QM[0]}:{QM[0]+1}], s[{QM[1]}:{QM[1]+1}]
    s_or_b64 s[52:53], s[{QM[2]}:{QM[2]+1}], s[{QM[3]}:{QM[3]+1}]
    s_or_b64 s[50:51], s[50:51], s[{QM[4]}:{QM[4]+1}]
    s_or_b64 s[50:51], s[50:51], s[52:53]
    s_cbranch_scc0 L_gotQ""")
    if dual: g.pick(7)
    g.spin("L_pollQ", 0)
    A("L_gotQ:\ns_bfm_b64 exec, 48, 0\n@pad")
    if dual:
        A(f"""s_cmp_eq_u32 s92, s26
        s_cselect_b32 s47, 63, 0
        v_mov_b32 v{T1}, s47
        v_mov_b32 v{T0}, 0
        ds_write_b32 v{T0}, v{T1} offset:{L_DONE}""")
    g.stamp(5)
    A(f"v_lshlrev_b32 v{T0}, 3, v1")
    for rb in range(1, 5):
        for e in range(4):
            A(f"v_add_f32 v{W+e}, v{W+e}, v{W+4*rb+e}")
    A(f"""v_cvt_pk_bf16_f32 v{W}, v{W}, v{W+1}
    v_cvt_pk_bf16_f32 v{W+1}, v{W+2}, v{W+3}
    ds_write_b64 v{T0}, v[{W}:{W+1}] offset:{L_Q}
    s_mov_b64 exec, -1
    s_waitcnt lgkmcnt(0)
    s_barrier""")
    if blate:
        A(f"""s_cmp_lg_u32 s84, 0
        s_cbranch_scc1 L_aux2
        global_store_dwordx4 v{T2}, v[{DD}:{DD+3}], s[90:91] sc1""")
    A(f"""s_branch L_aux2
    @nopad""")

    Q = 8; ACC = 20; A0 = 32; A1 = 36
    SA, SB, T, MM, MC, LL, PA, PB = 40, 41, 42, 43, 44, 45, 46, 47
    KA, VA, KB, VB = 48, 72, 96, 120
    FL, OOB, ZERO = 144, 145, 146
    OA, OS, BP0, BP1, LA, LS, LY = 148, 149, 150, 151, 152, 153, 154
    CP = 156
    BD = 155
    OFFS = [0, 128, 256, 3072, 3200, 3328]

    def group(j, K, V, sreg):
        base = (K if j < 2 else V) + 12 * (j & 1)
        srd = 28 if j < 2 else 32
        for t in range(3):
            A(f"buffer_load_dwordx4 v[{base+4*t}:{base+4*t+3}], v2, s[{srd}:{srd+3}], s{sreg} offen offset:{OFFS[3*(j&1)+t]}{PK if j < 2 else PV}")

    def uoff(dst, src):
        A(f"""s_add_u32 s48, s{src}, s94
        s_and_b32 s48, s48, 255
        s_mul_i32 s48, s48, 6144
        s_add_u32 s{dst}, s40, s48""")

    A(f"""L_stream:
    s_sub_u32 s3, s3, 1
    s_lshl_b32 s42, s49, 2
    s_add_u32 s42, s42, s3
    s_lshl_b32 s40, s67, 5
    s_add_u32 s40, s40, s66
    s_mul_i32 s94, s40, {ph}
    s_mul_i32 s40, s40, 1572864
    v_lshrrev_b32 v2, 3, v1
    v_mul_u32_u24 v2, 384, v2
    v_and_b32 v3, 7, v1
    v_lshl_add_u32 v2, v3, 4, v2""")
    uoff(44, 42)
    A("""s_add_u32 s47, s42, 4
    s_and_b32 s47, s47, 15
    s_add_u32 s47, s47, 16""")
    uoff(43, 47)
    if cpf:
        A(f"""s_getpc_b64 s[50:51]
        L_pc:
        s_lshl_b32 s47, s3, 12
        s_sub_u32 s47, s47, L_pc-{KN}
        s_ashr_i32 s48, s47, 31
        s_add_u32 s50, s50, s47
        s_addc_u32 s51, s51, s48
        v_lshlrev_b32 v{CP}, 4, v1
        v_mov_b32 v{CP+1}, 0
        v_lshl_add_u64 v[{CP}:{CP+1}], v[{CP}:{CP+1}], 0, s[50:51]""")
        for j in range(4):
            A(f"global_load_dwordx4 v[{CP+4}:{CP+7}], v[{CP}:{CP+1}], off offset:{j*1024}")
    A("""s_mov_b32 s30, 100663296
    s_mov_b32 s31, 0x20000
    s_mov_b32 s34, 100663296
    s_mov_b32 s35, 0x20000""")

    def hop4(name, ret):
        A(f"""@nopad
        s_mov_b64 exec, 0
        s_cmp_eq_u32 s3, 0
        s_cbranch_scc1 {name}_0
        s_cmp_eq_u32 s3, 1
        s_cbranch_scc1 {name}_1
        s_cmp_eq_u32 s3, 2
        s_cbranch_scc1 {name}_2
        s_branch {name}_3
        {ret}:
        s_mov_b64 exec, -1
        @pad""")
    if warm & 2: hop4("WA", "L_wa_ret")
    A("s_waitcnt lgkmcnt(0)")
    if stamps:
        A("v_writelane_b32 v168, s60, 0")
    A("""s_mov_b32 s28, s6
    s_mov_b32 s29, s7
    s_mov_b32 s32, s8
    s_mov_b32 s33, s9""")
    if touch:
        A(f"buffer_load_dword v{FL}, v2, s[28:31], s44 offen{P}\nbuffer_load_dword v{FL}, v2, s[32:35], s44 offen{P}")
    if wprio: A(f"s_setprio {wprio}")
    seq = [(0, KB, VB, 44), (1, KB, VB, 44), (2, KB, VB, 44), (3, KB, VB, 44), (0, KA, VA, 43), (1, KA, VA, 43)]
    if fill4: seq += [(2, KA, VA, 43), (3, KA, VA, 43)]
    for n, (j, K, V, sr) in enumerate(seq):
        if n == pre:
            A("s_barrier")
        if n == 2:
            if warm & 2: hop4("WQ", "L_wq_ret")
            A(f"s_load_dword s80, s[26:27], {WS_E}")
            g.masks(M, T, PA)
            A(f"""s_add_u32 s98, s101, 17
            s_and_b32 s98, s98, 31
            s_cmp_ge_u32 s98, 30
            s_cselect_b32 s83, 1, 0
            s_add_u32 s98, s98, s96
            s_mul_i32 s69, s98, 205
            s_lshr_b32 s69, s69, 10
            s_mul_i32 s70, s69, 5
            s_sub_u32 s70, s98, s70
            s_mov_b32 s36, s12
            s_mov_b32 s37, s13
            s_mov_b32 s38, 7864320
            s_mov_b32 s39, 0x20000
            s_lshl_b32 s71, s69, 2
            s_add_u32 s71, s71, s3
            s_mul_i32 s72, s71, 40960
            s_lshl_b32 s47, s70, 8
            s_add_u32 s72, s72, s47
            s_add_u32 s73, s72, 5120
            v_lshrrev_b32 v3, 4, v1
            v_mul_u32_u24 v3, 10240, v3
            v_and_b32 v{T}, 15, v1
            v_lshl_add_u32 v3, v{T}, 4, v3
            s_lshl_b32 s47, s83, 30
            v_add_u32 v3, s47, v3
            {f"s_lshl_b32 s47, s3, 13" if wolate == 3 else ""}
            {f"v_lshl_add_u32 v3, v1, 4, s47" if wolate == 3 else ""}
            s_mov_b32 s41, {2 if peel else 1}
            s_mov_b32 s46, {LOG2E}
            s_mov_b32 s58, 399999
            s_add_u32 s90, s26, {WS_B}
            s_addc_u32 s91, s27, 0
            s_mov_b64 s[92:93], s[26:27]""")
            if touch: A(f"buffer_load_dword v{FL}, v3, s[36:39], s72 offen{P}")
        if n == 3:
            for r in range(12):
                A(f"v_mov_b32 v{ACC+r}, 0")
            A(f"""v_mov_b32 v{MM}, 0xff800000
            v_mov_b32 v{MC}, 0xff800000
            v_mov_b32 v{LL}, 0
            v_mov_b32 v{OOB}, 0x7ff00000
            v_mov_b32 v{ZERO}, 0
            s_mul_i32 s47, s71, 171
            s_lshr_b32 s47, s47, 10
            s_mul_i32 s48, s47, 6
            s_sub_u32 s48, s71, s48
            {"s_lshl_b32 s88, s47, 7" if sready else ""}
            {f"s_add_u32 s88, s88, {WS_R}" if sready else ""}
            s_lshl_b32 s47, s47, 13
            s_add_u32 s47, s47, {WS_O}
            v_and_b32 v{OS}, 7, v1
            v_lshl_add_u32 v{OS}, v{OS}, 10, s47
            v_lshrrev_b32 v{OA}, 3, v1
            s_lshl_b32 s48, s48, 7
            v_lshl_add_u32 v{OA}, v{OA}, 4, s48
            v_add_u32 v{OA}, v{OA}, v{OS}
            v_lshrrev_b32 v{BP0}, 4, v1
            v_lshlrev_b32 v{BP0}, 6, v{BP0}
            v_and_b32 v{BP1}, 8, v1
            v_lshl_add_u32 v{BP0}, v{BP1}, 1, v{BP0}
            v_add_u32 v{BP1}, 32, v{BP0}
            s_mul_i32 s47, s3, 3072
            v_lshl_add_u32 v{LA}, v1, 4, s47
            s_lshl_b32 s47, s3, 3
            v_mov_b32 v{LS}, s47
            s_lshl_b32 s47, s3, 10
            v_lshl_add_u32 v{LY}, v1, 4, s47""")
            if rbd:
                A(f"""s_mul_i32 s47, s95, 384
                s_add_u32 s47, s47, {WS_D}
                v_lshl_add_u32 v{BD}, v1, 2, s47
                s_and_b32 s86, s101, 3
                s_lshl_b32 s47, s95, 3
                s_lshr_b32 s48, s101, 2
                s_add_u32 s47, s47, s48
                s_lshl_b32 s47, s47, 2
                s_add_u32 s87, s47, {WS_D}""")
        if n == 4 and warm & 4: hop4("WS", "L_ws_ret")
        if n >= 2:
            A(f"s_waitcnt vmcnt({pace})")
        group(j, K, V, sr)
    XG = 156
    A(f"""s_add_u32 s85, s42, 8
    s_and_b32 s85, s85, 15
    s_add_u32 s85, s85, 32""")
    if xg:
        assert wn == 6
        uoff(99, 85)
        A(f"s_waitcnt vmcnt({pace})")
        for t in range(3):
            A(f"buffer_load_dwordx4 v[{XG+4*t}:{XG+4*t+3}], v2, s[28:31], s99 offen offset:{OFFS[t]}{PK}")
    g.stamp(1)
    A(f"""
    s_add_u32 s47, s42, 12
    s_and_b32 s47, s47, 15
    s_add_u32 s47, s47, 240""")
    uoff(44, 47)
    A(f"""s_mov_b32 s45, 0
    {"s_mov_b32 s100, 1" if (xe or deep or rd or rbd or th < 999) else ""}
    {"s_mov_b32 s84, 16" if stamps else ""}
    v_and_b32 v{T}, 7, v1
    v_lshlrev_b32 v{T}, 4, v{T}
    s_waitcnt lgkmcnt(0)
    s_add_u32 s82, s80, 1
    s_and_b32 s80, s82, {TAGM}
    s_add_u32 s0, s82, 173
    s_and_b32 s0, s0, {TAGM}
    s_add_u32 s1, s82, 346
    s_and_b32 s1, s1, {TAGM}
    s_add_u32 s14, s82, 519
    s_and_b32 s14, s14, {TAGM}
    {f"s_lshr_b32 s47, {xm}, s95" if xe else ""}
    {"s_and_b32 s47, s47, 1" if xe else ""}
    {f"s_cselect_b32 s86, {xe + 1}, 0" if xe else ""}
    s_barrier
    ds_read_b128 v[{Q}:{Q+3}], v{T} offset:{L_Q}
    ds_read_b128 v[{Q+4}:{Q+7}], v{T} offset:{L_Q+128}
    ds_read_b128 v[{Q+8}:{Q+11}], v{T} offset:{L_Q+256}
    ds_read_b32 v{PA}, v{ZERO} offset:{L_DONE}
    s_waitcnt lgkmcnt(0)
    v_readfirstlane_b32 s89, v{PA}""")
    g.stamp(2)

    def softmax_part():
        for ctl in ["quad_perm:[1,0,3,2]", "quad_perm:[2,3,0,1]", "row_half_mirror"]:
            g.dpp("v_add_f32", SA, SA, SA, ctl)
            g.dpp("v_add_f32", SB, SB, SB, ctl)
            A("s_nop 0")
        skip = g.lab("L_skip")
        A(f"""v_cvt_pk_bf16_f32 v{T}, v{SA}, v{SB}
        v_lshlrev_b32 v{SA}, 16, v{T}
        v_and_b32 v{SB}, 0xffff0000, v{T}
        v_mul_f32 v{SA}, {SCALE}, v{SA}
        v_mul_f32 v{SB}, {SCALE}, v{SB}
        v_cvt_pk_bf16_f32 v{T}, v{SA}, v{SB}
        v_lshlrev_b32 v{SA}, 16, v{T}
        v_and_b32 v{SB}, 0xffff0000, v{T}
        v_max_f32 v{T}, v{SA}, v{SB}
        v_cmp_gt_f32 vcc, v{T}, v{MM}
        s_cbranch_vccz {skip}""")
        g.dpp("v_max_f32", T, T, T, "row_ror:8")
        g.allred_16_32("v_max_f32", T, PA)
        A(f"""v_max_f32 v{MM}, v{MM}, v{T}
        v_mul_f32 v{PA}, s46, v{MM}
        v_sub_f32 v{PB}, v{MC}, v{PA}
        v_exp_f32 v{PB}, v{PB}
        v_mov_b32 v{MC}, v{PA}
        v_mul_f32 v{LL}, v{LL}, v{PB}""")
        for r in range(12):
            A(f"v_mul_f32 v{ACC+r}, v{ACC+r}, v{PB}")
        A(f"""{skip}:
        v_fma_f32 v{PA}, v{SA}, s46, -v{MC}
        v_fma_f32 v{PB}, v{SB}, s46, -v{MC}
        v_exp_f32 v{PA}, v{PA}
        v_exp_f32 v{PB}, v{PB}
        s_nop 0
        v_add_f32 v{LL}, v{LL}, v{PA}
        v_cvt_pk_bf16_f32 v{PA}, v{PA}, v{PA}
        v_add_f32 v{LL}, v{LL}, v{PB}
        v_cvt_pk_bf16_f32 v{PB}, v{PB}, v{PB}""")
        for r in range(4):
            A(f"v_and_b32 v{A0+r}, v{PA}, v{M+r}")
        for r in range(4):
            A(f"v_and_b32 v{A1+r}, v{PB}, v{M+r}")

    def consume(j, K, V):
        if j < 2:
            for r in range(12):
                A(f"v_dot2c_f32_bf16 v{SA+j}, v{K+12*j+r}, v{Q+r}")
        else:
            Ar = A0 if j == 2 else A1
            for t in range(3):
                b = V + 12 * (j - 2) + 4 * t
                A(f"v_mfma_f32_16x16x32_bf16 v[{ACC+4*t}:{ACC+4*t+3}], v[{Ar}:{Ar+3}], v[{b}:{b+3}], v[{ACC+4*t}:{ACC+4*t+3}]")

    def dummies(n):
        for j in range(n):
            A(f"buffer_load_dword v{FL}, v{OOB}, s[36:39], 0 offen")

    def advance():
        A("""s_add_u32 s48, s85, 4
        s_and_b32 s48, s48, 15
        s_andn2_b32 s85, s85, 15
        s_add_u32 s85, s85, s48
        s_add_u32 s85, s85, 16""")

    def prog():
        if stamps:
            A("""s_waitcnt lgkmcnt(0)
            s_mov_b32 m0, s84
            s_add_u32 s84, s84, 1
            s_min_u32 s84, s84, 63
            v_writelane_b32 v168, s60, m0""")

    if warm & 2: A("@end")
    if warm & 4: A("@chain WS 4 L_ws_ret")
    if peel:
        assert wn == 6
        y = 3 if xg else 0
        A(f"v_mov_b32 v{SA}, 0\nv_mov_b32 v{SB}, 0")
        uoff(43, 85)
        A(f"s_waitcnt vmcnt({9 + y})")
        consume(0, KA, VA)
        if not xg: group(0, KA, VA, 43)
        A("s_waitcnt vmcnt(9)")
        consume(1, KA, VA)
        group(1, KA, VA, 43)
        advance()
        softmax_part()
        A("s_waitcnt vmcnt(9)")
        consume(2, KA, VA)
        A("s_waitcnt vmcnt(6)")
        consume(3, KA, VA)
    A(f"L_F:\nv_mov_b32 v{SA}, 0\nv_mov_b32 v{SB}, 0")
    for j in range(4):
        if j == 2:
            A("s_nop 2"); softmax_part()
            if wolate == 2: A("s_cmp_lg_u32 s45, 0\ns_cbranch_scc1 L_Fl")
        A(f"s_waitcnt vmcnt({15 - 3*j})")
        consume(j, KB, VB)
    if wolate != 2: A("s_cmp_lg_u32 s45, 0\ns_cbranch_scc1 L_exit")
    if al: A(f".p2align {al}")
    A("L_loop:")
    if stamps: A("s_memrealtime s[60:61]")
    if deep: A(f"ds_read_b32 v{FL}, v{ZERO} offset:{L_FLAG}")
    if rbd: A(f"s_lshr_b32 s47, s85, 4\ns_cmp_eq_u32 s47, {rbd+1}\ns_cbranch_scc1 L_board\nL_board_ret:")
    def load1(n, sreg):
        j, t = divmod(n, 3)
        base = (KA if j < 2 else VA) + 12 * (j & 1) + 4 * t
        srd = 28 if j < 2 else 32
        A(f"buffer_load_dwordx4 v[{base}:{base+3}], v2, s[{srd}:{srd+3}], s{sreg} offen offset:{OFFS[3*(j&1)+t]}{PK if j < 2 else PV}")

    assert 4 <= wn <= 8 and fill4 and not (deep or rd or rbd or th < 999)
    A(f"v_mov_b32 v{SA}, 0\nv_mov_b32 v{SB}, 0")
    stubs = []
    for j in range(4):
        if j == 2:
            softmax_part()
        A(f"s_waitcnt vmcnt({wn - 3})")
        if j == 0 and xg: A("s_cmp_eq_u32 s41, 2\ns_cbranch_scc1 L_xg")
        consume(j, KA, VA)
        if j == 0 and xg: A("L_xg_ret:")
        ns = range(3*j + wn, 3*j + 3 + wn)
        cur = [n for n in ns if n < 12]
        nxt = [n - 12 for n in ns if n >= 12]
        if cur:
            if not peel: A(f"s_cmp_eq_u32 s41, 1\ns_cbranch_scc1 L_sk{j}")
            for n in cur: load1(n, 43)
            A(f"L_sk{j}:")
        if j == 1 and nxt:
            A("s_cmp_ge_u32 s85, 240\ns_cbranch_scc1 L_st1")
            uoff(99, 85)
            for n in nxt: load1(n, 99)
            A("L_rt1:")
            stubs.append(len(nxt))
        if j == 2:
            prog()
            A("s_cmp_ge_u32 s85, 240\ns_cbranch_scc1 L_last")
            if not stubs: uoff(99, 85)
            if xg and not peel: A("s_cmp_eq_u32 s41, 1\ns_cbranch_scc1 L_skx")
            for n in nxt: load1(n, 99)
            if xg: A("L_skx:")
            advance()
        if j == 3:
            for n in nxt: load1(n, 99)
            A("s_mov_b32 s43, s99")
            if not peel: A("s_lshl_b32 s41, s41, 1\ns_and_b32 s41, s41, 2" if xg else "s_mov_b32 s41, 0")
        if j == 1 and xe:
            A("s_lshr_b32 s47, s85, 4\ns_cmp_eq_u32 s47, s86\ns_cbranch_scc1 L_early\nL_early_ret:")
        if j == 1 and not stubs: A("s_nop 0")
    WO = KA

    def wo_load(j):
        o = j * 1280
        A(f"buffer_load_dwordx4 v[{WO+4*j}:{WO+4*j+3}], v3, s[36:39], s{72 if o < 4096 else 73} offen offset:{o if o < 4096 else o-5120}{P}")
    if deep or rd:
        if rd: A(f"s_cmp_lt_u32 s85, {16*(rd+1)}\ns_cbranch_scc1 L_loop")
        else: A("s_cmp_eq_u32 s47, 0\ns_cbranch_scc1 L_loop")
        group(2, KA, VA, 43); group(3, KA, VA, 43)
        for j in range(4): group(j, KB, VB, 44)
        A("s_mov_b32 s100, 0\nL_deep:")
        if stamps: A("s_memrealtime s[60:61]")
        A(f"v_mov_b32 v{SA}, 0\nv_mov_b32 v{SB}, 0")
        for j in range(4):
            if j == 2: softmax_part()
            A("s_waitcnt vmcnt(9)")
            consume(j, KA, VA)
            if j == 0:
                prog()
                A("s_cmp_ge_u32 s85, 240\ns_cselect_b32 s45, 1, 0\ns_cbranch_scc1 L_dsub0")
                uoff(43, 85)
                group(0, KA, VA, 43)
                advance()
                A("L_dret0:")
            elif j < 3:
                A(f"s_cmp_lg_u32 s45, 0\ns_cbranch_scc1 L_dsub{j}")
                group(j, KA, VA, 43)
                A(f"L_dret{j}:")
            else:
                A("s_cmp_lg_u32 s45, 0\ns_cbranch_scc1 L_F")
                group(3, KA, VA, 43)
                A("s_branch L_deep")
        for j in range(3):
            A(f"L_dsub{j}:")
            if wolate:
                dummies(3)
            else:
                for jj in range(3*j, min(3*j+3, 8)): wo_load(jj)
                if j == 2: dummies(1)
            A(f"s_branch L_dret{j}")
    else:
        A("s_branch L_loop")
    if xg:
        A("L_xg:")
        if peel: A("s_mov_b32 s41, 0")
        for r in range(12):
            A(f"v_dot2c_f32_bf16 v{SA}, v{XG+r}, v{Q+r}")
        A("s_branch L_xg_ret")
    if stubs:
        A("L_st1:")
        dummies(stubs[0])
        A("s_branch L_rt1")
    if rbd:
        A(f"""L_board:
        s_cmp_lg_u32 s3, 0
        s_cbranch_scc1 L_board_ret
        global_load_dword v{FL}, v{BD}, s[26:27] sc1
        s_cmp_lg_u32 s86, 0
        s_cbranch_scc1 L_board_ret
        v_mul_u32_u24 v{PA}, 384, v1
        v_add_u32 v{PA}, s87, v{PA}
        v_mov_b32 v{PB}, s82
        s_mov_b64 exec, 0xff
        global_store_dword v{PA}, v{PB}, s[26:27] sc1
        s_mov_b64 exec, -1
        s_branch L_board_ret
        L_judge:
        s_cmp_eq_u32 s47, {rbd+3}
        s_cbranch_scc1 L_judge2
        s_cmp_gt_u32 s47, {rbd+3}
        s_cbranch_scc1 L_early_ret
        s_cmp_lg_u32 s3, 0
        s_cbranch_scc1 L_early_ret
        v_cmp_eq_u32 vcc, s82, v{FL}
        s_bcnt1_i32_b64 s48, vcc
        s_cmp_lt_u32 s48, {nq}
        s_cbranch_scc1 L_early_ret
        v_mov_b32 v{FL}, 1
        ds_write_b32 v{ZERO}, v{FL} offset:{L_FLAG}
        s_branch L_early_ret
        L_judge2:
        ds_read_b32 v{FL}, v{ZERO} offset:{L_FLAG}
        s_waitcnt lgkmcnt(0)
        v_cmp_eq_u32 vcc, 1, v{FL}
        s_cbranch_vccz L_early_ret""")
    if th < 999 or rbd or xe:
        A("L_early:\ns_mov_b32 s100, 0")
        for j in range(4): group(j, KB, VB, 44)
        A("s_branch L_early_ret")
    A("L_last:")
    g.stamp(3)
    A("s_mov_b32 s45, 1")
    if th < 999 or rbd or xe:
        A("s_cmp_eq_u32 s100, 0\ns_cbranch_scc1 L_last3")
    for j in range(4): group(j, KB, VB, 44)
    WO = KA

    def wo_loads():
        for j in range(8):
            o = j * 1280
            A(f"buffer_load_dwordx4 v[{WO+4*j}:{WO+4*j+3}], v3, s[36:39], s{72 if o < 4096 else 73} offen offset:{o if o < 4096 else o-5120}{P}")
    if wolate:
        if wn < 6:
            for n in range(6 + wn, 12): pass
        dummies(6)
        A(f"s_waitcnt vmcnt({18 + (stubs[0] if stubs else 0)})")
    else:
        wo_loads()
        A("s_waitcnt vmcnt(20)")
    if th < 999 or rbd or xe:
        A("s_branch L_last4\nL_last3:")
        if wolate:
            dummies(6)
            A("s_waitcnt vmcnt(6)")
        else:
            wo_loads()
            A("s_waitcnt vmcnt(8)")
        A("L_last4:")
    consume(3, KA, VA)
    A("s_branch L_F")
    if wolate == 2:
        A("L_Fl:")
        wo_loads()
        g.dpp("v_add_f32", LL, LL, LL, "row_ror:8")
        g.allred_16_32("v_add_f32", LL, T)
        A(f"ds_write_b64 v{LS}, v[{MC}:{LL}] offset:{L_ST}")
        A("s_waitcnt vmcnt(17)")
        consume(2, KB, VB)
        A("s_waitcnt vmcnt(14)")
        consume(3, KB, VB)
    A("L_exit:")
    if wolate == 1: wo_loads()
    g.stamp(4)
    if wolate != 2:
        g.dpp("v_add_f32", LL, LL, LL, "row_ror:8")
        g.allred_16_32("v_add_f32", LL, T)
    else:
        A("s_nop 6")
    O0, S0, XR = 108, 112, 96
    A(f"""{f"v_mov_b32 v{T}, 1" if deep else ""}
    ds_write_b128 v{LA}, v[{ACC}:{ACC+3}] offset:{L_ACC}
    ds_write_b128 v{LA}, v[{ACC+4}:{ACC+7}] offset:{L_ACC+1024}
    ds_write_b128 v{LA}, v[{ACC+8}:{ACC+11}] offset:{L_ACC+2048}
    {f"ds_write_b64 v{LS}, v[{MC}:{LL}] offset:{L_ST}" if wolate != 2 else ""}""")
    if deep: A(f"ds_write_b32 v{ZERO}, v{T} offset:{L_DONE}")
    A(f"""s_waitcnt lgkmcnt(0)
    s_barrier
    s_cmp_lg_u32 s83, 0
    s_cbranch_scc1 L_sdone""")
    if wolate == 3:
        for j in range(8):
            A(f"ds_read_b128 v[{WO+4*j}:{WO+4*j+3}], v3 offset:{L_WO+1024*j}")
    if sready:
        A("""L_pollR:
        s_load_dwordx8 s[4:11], s[26:27], s88 glc
        s_mov_b64 s[92:93], s[26:27]
        s_sub_u32 s58, s58, 1
        s_waitcnt lgkmcnt(0)""")
        for j in range(0, 8, 2):
            A(f"s_xor_b64 s[{4+j}:{5+j}], s[{4+j}:{5+j}], s[86:87]")
        A("""s_or_b64 s[4:5], s[4:5], s[6:7]
        s_or_b64 s[8:9], s[8:9], s[10:11]
        s_or_b64 s[4:5], s[4:5], s[8:9]
        s_cbranch_scc0 L_pollO
        s_and_b32 s47, s58, 63
        s_cbranch_scc1 L_pollR
        s_mov_b64 s[92:93], s[90:91]""")
    def ohead(b):
        g.dpp("v_max_f32", T, b + 4, b + 4, "quad_perm:[1,0,3,2]")
        A("s_nop 1")
        g.dpp("v_max_f32", T, T, T, "quad_perm:[2,3,0,1]")
        A(f"""v_sub_f32 v{T}, v{b+4}, v{T}
        v_exp_f32 v{T}, v{T}
        s_nop 0
        v_mul_f32 v136, v{b+5}, v{T}""")
        for e in range(4):
            A(f"v_mul_f32 v{132+e}, v{b+e}, v{T}")
    if osets == 2:
        O1 = 124

        def oissue(b):
            A(f"""global_load_dwordx4 v[{b}:{b+3}], v{OA}, s[92:93] sc1
            global_load_dwordx4 v[{b+4}:{b+7}], v{OS}, s[92:93] offset:768 sc1""")
        oissue(O0)
        A(f"s_sleep {ostag}\nL_pollO:")
        oissue(O1)
        A("s_waitcnt vmcnt(2)")
        g.tagcheck(list(range(O0, O0 + 8)), T)
        A("s_cbranch_vccz L_gotO")
        g.pick("s89")
        oissue(O0)
        A("s_waitcnt vmcnt(2)")
        g.tagcheck(list(range(O1, O1 + 8)), T)
        A("s_cbranch_vccz L_gotO1")
        g.spin("L_pollO", 0)
        A("L_gotO1:")
        ohead(O1)
        A("s_branch L_ocommon")
    else:
        A(f"""L_pollO:
        global_load_dwordx4 v[{O0}:{O0+3}], v{OA}, s[92:93] sc1
        global_load_dwordx4 v[{S0}:{S0+3}], v{OS}, s[92:93] offset:768 sc1
        s_waitcnt vmcnt(0)""")
        g.tagcheck(list(range(O0, O0 + 8)), T)
        A("s_cbranch_vccz L_gotO")
        if osl:
            A(f"""s_bcnt1_i32_b64 s47, vcc
            s_cmp_le_u32 s47, 8
            s_cbranch_scc1 L_oshort
            s_sleep {osl}
            L_oshort:""")
        if dual: g.pick("s89")
        g.spin("L_pollO", sleep)
    A("L_gotO:")
    g.stamp(5)
    ohead(O0)
    A("L_ocommon:")
    O0, S0 = 132, 135
    for ctl in ["quad_perm:[1,0,3,2]", "quad_perm:[2,3,0,1]"]:
        g.dpp("v_add_f32", S0 + 1, S0 + 1, S0 + 1, ctl)
        for e in range(4):
            g.dpp("v_add_f32", O0 + e, O0 + e, O0 + e, ctl)
    A(f"""v_rcp_f32 v{T}, v{S0+1}
    s_nop 0""")
    for e in range(4):
        A(f"v_mul_f32 v{O0+e}, v{O0+e}, v{T}")
    for e in range(4):
        A(f"v_cvt_pk_bf16_f32 v{O0+e}, v{O0+e}, v{O0+e}")
    for rq in range(8):
        A(f"ds_bpermute_b32 v{XR+rq}, v{BP0 if rq < 4 else BP1}, v{O0+(rq&3)}")
    D = ACC
    AR = [A0, A1, 116, 120]
    for rq in range(8):
        A(f"s_waitcnt lgkmcnt({7-rq})")
        Ar = AR[rq % 4]
        for r in range(4):
            A(f"v_and_b32 v{Ar+r}, v{XR+rq}, v{M+r}")
        if rq >= 1:
            p = rq - 1
            c = "0" if p == 0 else f"v[{D}:{D+3}]"
            A(f"v_mfma_f32_16x16x32_bf16 v[{D}:{D+3}], v[{AR[p%4]}:{AR[p%4]+3}], v[{WO+4*p}:{WO+4*p+3}], {c}")
    A(f"""s_nop 0
    v_mfma_f32_16x16x32_bf16 v[{D}:{D+3}], v[{AR[3]}:{AR[3]+3}], v[{WO+28}:{WO+31}], v[{D}:{D+3}]
    s_nop 7
    ds_write_b128 v{LY}, v[{D}:{D+3}] offset:{L_YP}
    s_waitcnt lgkmcnt(0)
    s_barrier""")
    if warm & 4: A("@end")
    A("L_sdone:")
    g.stamp(6)
    g.stamp_flush()
    A("s_endpgm")

    A("L_aux2:")
    if aprio != prio: A(f"s_setprio {aprio}")
    g.stamp(6)
    A(f"""s_mul_i32 s96, s95, 15
    s_add_u32 s96, s96, s101
    s_sub_u32 s69, s101, 15
    s_sub_u32 s70, s101, 24
    s_cmp_ge_u32 s101, 30
    s_cselect_b32 s69, s70, s69
    s_cselect_b32 s48, 0, s69
    s_lshl_b32 s70, s95, 3
    s_add_u32 s70, s70, s69
    s_add_u32 s70, s70, 120
    s_cmp_lt_u32 s48, 6
    s_cselect_b32 s70, s70, 255
    s_cmp_lt_u32 s101, 15
    s_cselect_b32 s96, s96, s70
    s_mul_i32 s59, s95, 10
    s_sub_u32 s69, s101, 21
    s_add_u32 s59, s59, s69
    s_cmp_lt_u32 s69, 10
    s_cselect_b32 s59, s59, 255
    s_lshl_b32 s68, s66, 3
    s_lshl_b32 s47, s67, 2
    s_add_u32 s68, s68, s47
    s_add_u32 s68, s68, s49
    s_lshl_b32 s68, s68, 10
    s_add_u32 s68, s68, {WS_O}
    s_add_u32 s98, s101, 17
    s_and_b32 s98, s98, 31
    s_cmp_ge_u32 s98, 30
    s_cselect_b32 s83, 1, 0
    s_mul_i32 s74, s95, 30
    s_add_u32 s74, s74, s98
    s_lshl_b32 s74, s74, 10
    s_add_u32 s74, s74, {WS_Y}
    s_lshl_b32 s47, s96, 10
    s_add_u32 s75, s47, {WS_G}
    s_add_u32 s48, s47, {WS_Y + 120*1024}
    s_cmp_lt_u32 s96, 120
    s_cselect_b32 s75, s75, s48
    s_mul_i32 s69, s96, 205
    s_lshr_b32 s69, s69, 10
    s_mul_i32 s70, s69, 5
    s_sub_u32 s70, s96, s70
    s_mov_b32 s63, 0
    {"s_branch L_c_done0" if noffn == 1 else ""}
    {chr(10).join(["s_sleep 127"] * fdelay)}
    s_cmp_lt_u32 s96, 120
    s_cbranch_scc1 L_gtask
    L_wo:""")
    if wolate == 3:
        A(f"""s_cmp_lg_u32 s83, 0
        s_cbranch_scc1 L_wo_done
        s_mul_i32 s47, s95, 30
        s_add_u32 s47, s47, s98
        s_mul_i32 s48, s47, 205
        s_lshr_b32 s48, s48, 10
        s_mul_i32 s72, s48, 5
        s_sub_u32 s72, s47, s72
        s_lshl_b32 s72, s72, 8
        s_mul_i32 s48, s48, 163840
        s_add_u32 s72, s72, s48
        s_mov_b32 s36, s12
        s_mov_b32 s37, s13
        v_lshrrev_b32 v{T0}, 4, v1
        v_mul_u32_u24 v{T0}, 10240, v{T0}
        v_and_b32 v{T1}, 15, v1
        v_lshl_add_u32 v{T0}, v{T1}, 4, v{T0}
        s_mov_b32 s73, {L_WO}
        s_mov_b32 s77, 1280
        L_wo_loop:
        s_mov_b32 m0, s73
        s_add_u32 s73, s73, 1024
        buffer_load_dwordx4 v{T0}, s[36:39], s72 offen{P} lds
        s_and_b32 s47, s73, 0x1c00
        s_cmp_eq_u32 s47, {L_WO & 0x1c00}
        s_cselect_b32 s47, {40960 - 7*1280}, s77
        s_add_u32 s72, s72, s47
        s_waitcnt vmcnt({ww - 1})
        s_cmp_lt_u32 s73, {L_WO + 32768}
        s_cbranch_scc1 L_wo_loop
        s_waitcnt vmcnt(0)
        L_wo_done:""")
    if noffn in (2, 3): A("s_branch L_c_done0")
    A(f"""s_sub_u32 s47, s96, 120
    s_cmp_lt_u32 s47, 60
    s_cbranch_scc0 L_ffn_done""")
    A(f"""s_sub_u32 s76, s69, 24
    s_mul_i32 s47, s76, 10240
    s_add_u32 s47, s47, {WS_G + 4096}
    v_lshl_add_u32 v{T0}, v1, 4, s47
    v_add_u32 v{T1}, 5120, v{T0}
    {chr(10).join(["s_sleep 127"] * (gs0 // 127) + ([f"s_sleep {gs0 % 127}"] if gs0 % 127 else []))}
    """)
    if gprobe:
        A(f"""s_sub_u32 s47, s47, 4096
        v_lshl_add_u32 v{T3}, v1, 10, s47
        s_mov_b64 exec, 0x3ff
        L_probeG:
        s_sleep {gsl}
        global_load_dwordx4 v[{W}:{W+3}], v{T3}, s[26:27] offset:1008 sc1
        s_waitcnt vmcnt(0)""")
        g.tagcheck(list(range(W, W + 4)), T2, GM_)
        A("s_cbranch_vccz L_probedG")
        g.spin("L_probeG", 0)
        A("L_probedG:\ns_mov_b64 exec, -1\nL_pollG:")
    else:
        A(f"L_pollG:\ns_sleep {lsleep}")
    for j in range(5):
        A(f"global_load_dwordx4 v[{W+4*j}:{W+4*j+3}], v{T0}, s[26:27] offset:{j*1024-4096} sc1")
    for j in range(5):
        A(f"global_load_dwordx4 v[{W+20+4*j}:{W+20+4*j+3}], v{T1}, s[26:27] offset:{j*1024-4096} sc1")
    A("s_waitcnt vmcnt(0)")
    g.tagcheck(list(range(W, W + 40)), T2, GM_)
    A("s_cbranch_vccz L_gotG")
    g.spin("L_pollG", lsleep)
    A("L_gotG:")
    for f in range(2):
        for j in range(1, 5):
            for e in range(4):
                A(f"v_add_f32 v{W+20*f+e}, v{W+20*f+e}, v{W+20*f+4*j+e}")
    S0_, S1_ = W, W + 20
    GG, UU = W + 4, W + 8
    if gw:
        GG, UU = S0_, S1_
    else:
        for e in range(4):
            A(f"v_mov_b32 v{GG+e}, v{S0_+e}\nv_mov_b32 v{UU+e}, v{S1_+e}")
        A("s_nop 1")
        for e in range(4):
            A(f"v_mov_b32_dpp v{GG+e}, v{S1_+e} row_ror:8 row_mask:0xf bank_mask:0xc")
            A(f"v_mov_b32_dpp v{UU+e}, v{S0_+e} row_ror:8 row_mask:0xf bank_mask:0x3")
    for e in range(4):
        gg, uu = GG + e, UU + e
        g.rbf(gg); g.rbf(uu)
        A(f"""v_mul_f32 v{T2}, v{gg}, v{gg}
        v_mul_f32 v{T2}, v{T2}, v{gg}
        v_mov_b32 v{T3}, v{gg}
        v_fmac_f32 v{T3}, 0x3d372713, v{T2}
        v_mul_f32 v{T3}, 0xc0135761, v{T3}
        v_exp_f32 v{T3}, v{T3}
        s_nop 0
        v_add_f32 v{T3}, 1.0, v{T3}
        v_rcp_f32 v{T3}, v{T3}
        s_nop 0
        v_mul_f32 v{gg}, v{gg}, v{T3}""")
        g.rbf(gg)
        A(f"v_mul_f32 v{gg}, v{gg}, v{uu}")
    A(f"""v_cvt_pk_bf16_f32 v{GG}, v{GG}, v{GG+1}
    v_cvt_pk_bf16_f32 v{GG+1}, v{GG+2}, v{GG+3}""")

    def wr_h():
        A(f"""v_and_b32 v{T1}, 15, v1
        v_lshlrev_b32 v{T1}, 4, v{T1}
        v_and_b32 v{T2}, 32, v1
        v_lshl_add_u32 v{T1}, v{T2}, 3, v{T1}
        v_bfe_u32 v{T2}, v1, 4, 1
        v_lshl_add_u32 v{T1}, v{T2}, 3, v{T1}
        ds_write_b64 v{T1}, v[{GG}:{GG+1}] offset:{L_X}""")

    xbuf_roundtrip(wr_h)
    A(f"""v_lshrrev_b32 v{T0}, 4, v1
    v_mul_u32_u24 v2, 40960, v{T0}
    v_and_b32 v{T1}, 15, v1
    v_lshl_add_u32 v2, v{T1}, 4, v2
    s_mul_i32 s47, s76, 163840
    s_lshl_b32 s48, s70, 8
    s_add_u32 s47, s47, s48
    v_add_u32 v2, s47, v2
    v_mov_b32 v3, 0
    s_mov_b32 s62, 1280
    v_lshl_add_u64 v[2:3], v[2:3], 0, s[20:21]""")
    nat_off(T2, T1)
    A(f"""v_add_u32 v{T2}, s75, v{T2}
    s_waitcnt lgkmcnt(0)
    s_branch L_tile2
    L_gtask:""")
    if gw:
        A(f"""v_lshrrev_b32 v{T0}, 4, v1
        v_mul_u32_u24 v2, 98304, v{T0}
        v_and_b32 v{T1}, 15, v1
        v_lshl_add_u32 v2, v{T1}, 4, v2
        s_mul_i32 s47, s70, 393216
        s_lshr_b32 s48, s69, 1
        s_lshl_b32 s48, s48, 8
        s_add_u32 s47, s47, s48
        v_add_u32 v2, s47, v2
        v_mov_b32 v3, 0
        s_mov_b32 s62, 3072
        s_bitcmp1_b32 s69, 0
        s_cselect_b64 s[50:51], s[18:19], s[16:17]
        v_lshl_add_u64 v[2:3], v[2:3], 0, s[50:51]
        v_lshl_add_u32 v{T2}, v1, 4, s75""")
    else:
        A(f"""    v_lshrrev_b32 v{T0}, 4, v1
    v_mul_u32_u24 v2, 98304, v{T0}
    v_and_b32 v{T1}, 7, v1
    v_lshl_add_u32 v2, v{T1}, 4, v2
    s_mul_i32 s47, s70, 393216
    s_lshl_b32 s48, s69, 7
    s_add_u32 s47, s47, s48
    v_add_u32 v2, s47, v2
    v_mov_b32 v3, 0
    s_mov_b32 s62, 3072
    v_and_b32 v{T1}, 8, v1
    v_cmp_eq_u32 vcc, 0, v{T1}
    v_mov_b32 v{T0}, s18
    v_mov_b32 v{T1}, s19
    v_mov_b32 v{T2}, s16
    v_mov_b32 v{T3}, s17
    v_cndmask_b32 v{T0}, v{T0}, v{T2}, vcc
    v_cndmask_b32 v{T1}, v{T1}, v{T3}, vcc
    v_lshl_add_u64 v[2:3], v[2:3], 0, v[{T0}:{T1}]
    v_lshl_add_u32 v{T2}, v1, 4, s75""")
    A(f"""
    L_tile2:""")
    def t2_issue(i):
        A(f"global_load_dwordx4 v[{W+4*i}:{W+4*i+3}], v[2:3], off{P}")
        if i < 31:
            A("v_lshl_add_u64 v[2:3], v[2:3], 0, s[62:63]")
    for i in range(fw): t2_issue(i)
    tile_compute(fw, t2_issue)
    A(f"v_mov_b32 v{T1}, {GM_}\ns_nop 7")
    g.tagput(range(DD, DD + 4), T1, GM_)
    A(f"""{"" if noffn == 3 else f"global_store_dwordx4 v{T2}, v[{DD}:{DD+3}], s[26:27] sc1"}
    {"s_branch L_c_done0" if noffn == 3 else ""}
    s_cmp_lt_u32 s96, 120
    s_cbranch_scc1 L_wo
    L_ffn_done:""")
    g.stamp(7)
    GV, XO, YA = 8, 12, 16
    A(f"""s_cmp_ge_u32 s59, 80
    s_cbranch_scc1 L_c_done
    s_cmp_ge_u32 s59, 40
    s_cselect_b32 s78, 1, 0
    s_mul_i32 s47, s78, 40
    s_sub_u32 s77, s59, s47
    s_lshr_b32 s47, s77, 3
    s_lshl_b32 s47, s47, 10
    s_and_b32 s48, s77, 7
    s_lshl_b32 s48, s48, 6
    s_add_u32 s47, s47, s48
    s_lshl_b32 s48, s78, 9
    s_add_u32 s47, s47, s48
    s_add_u32 s47, s47, {WS_Y}
    v_lshrrev_b32 v{T0}, 2, v1
    v_mul_u32_u24 v{T0}, 5120, v{T0}
    v_and_b32 v{T1}, 3, v1
    v_lshl_add_u32 v{T0}, v{T1}, 4, v{T0}
    v_add_u32 v{YA}, s47, v{T0}
    v_add_u32 v{YA+1}, 81920, v{YA}
    v_add_u32 v{YA+2}, 81920, v{YA+1}
    v_add_u32 v{T0}, 81920, v{YA+2}
    s_mul_i32 s47, s78, 1280
    s_lshl_b32 s48, s77, 5
    s_add_u32 s47, s47, s48
    v_lshl_add_u32 v{YA+3}, v{T1}, 3, s47
    v_bfe_u32 v{T1}, v1, 4, 1
    v_lshl_add_u32 v{YA+3}, v{T1}, 2, v{YA+3}
    v_lshrrev_b32 v{T1}, 5, v1
    v_lshl_add_u32 v{YA+3}, v{T1}, 1, v{YA+3}
    global_load_ushort v{XO}, v{YA+3}, s[4:5]
    v_mov_b32 v{GV}, 0
    v_mov_b32 v{GV+1}, 0
    v_mov_b32 v{GV+2}, 0
    v_mov_b32 v{GV+3}, 0
    s_bfm_b64 exec, 48, 0
    {chr(10).join(["s_sleep 127"] * (fs0 // 127) + ([f"s_sleep {fs0 % 127}"] if fs0 % 127 else []))}
    L_pollF:
    s_sleep {fsl}
    global_load_dwordx4 v[{GV}:{GV+3}], v{T0}, s[26:27] sc1
    s_waitcnt vmcnt(0)""")
    g.tagcheck(list(range(GV, GV + 4)), T2, GM_)
    A("s_cbranch_vccz L_gotF")
    g.spin("L_pollF", 0)
    A("L_gotF:\ns_mov_b64 exec, -1\ns_nop 1")

    def red16(base):
        A(f"""v_permlane32_swap_b32 v{base}, v{base+1}
        v_permlane32_swap_b32 v{base+2}, v{base+3}
        s_nop 0
        v_add_f32 v{base}, v{base}, v{base+1}
        v_add_f32 v{base+2}, v{base+2}, v{base+3}
        s_nop 1
        v_permlane16_swap_b32 v{base}, v{base+2}
        s_nop 0
        v_add_f32 v{base}, v{base}, v{base+2}
        s_nop 1""")
        g.dpp("v_add_f32", base, base, base, "row_ror:4")
        A("s_nop 1")
        g.dpp("v_add_f32", base, base, base, "row_ror:8")

    red16(GV)
    A(f"v_lshlrev_b32 v{XO}, 16, v{XO}")
    g.rbf(GV)
    A(f"""v_mul_f32 v{T3}, 0xbfb8aa3b, v{GV}
    v_exp_f32 v{T3}, v{T3}
    s_nop 0
    v_add_f32 v{T3}, 1.0, v{T3}
    v_rcp_f32 v{T3}, v{T3}
    s_nop 0
    v_mul_f32 v{GV}, v{GV}, v{T3}""")
    g.rbf(GV)
    A("L_c_done:")
    if noffn: A("s_branch L_c_done1\nL_c_done0:\ns_mov_b32 s59, 255\nL_c_done1:")
    if tbg != tb: g.tags(TAGM)
    g.stamp(8)
    MA = 20
    A(f"""v_lshrrev_b32 v{MA}, 4, v1
    v_lshlrev_b32 v{MA}, 10, v{MA}
    v_bfe_u32 v{T0}, v1, 1, 3
    v_lshl_add_u32 v{MA}, v{T0}, 4, v{MA}
    v_and_b32 v{T0}, 1, v1
    v_lshl_add_u32 v{MA}, v{T0}, 8, v{MA}
    v_mov_b32 v{MA+1}, 0
    v_lshl_add_u32 v{MA+2}, v1, 4, s68
    v_mov_b32 v{MA+3}, {TAGM}
    v_cmp_eq_u32 s[50:51], 48, v1""")
    nat_off(2, T1)
    A(f"""v_add_u32 v2, s74, v2
    v_lshlrev_b32 v{DD}, 4, v1""")
    if sready:
        A(f"""s_lshl_b32 s47, s66, 5
        s_lshl_b32 s48, s67, 2
        s_add_u32 s47, s47, s48
        s_add_u32 s47, s47, s49
        s_lshl_b32 s47, s47, 2
        s_add_u32 s47, s47, {WS_R}
        v_mov_b32 v3, s47
        v_mov_b32 v{T3}, s82""")
    if deep:
        A(f"""s_lshl_b32 s47, s95, 7
        s_add_u32 s47, s47, {WS_D}
        v_lshl_add_u32 v{T0}, v1, 2, s47
        s_lshl_b32 s48, s101, 2
        s_add_u32 s47, s47, s48
        v_mov_b32 v3, s47
        s_bfm_b64 exec, 32, 0
        L_pollD:
        s_sleep {dsleep}
        global_load_dword v{T1}, v{T0}, s[26:27] sc1
        ds_read_b32 v{T2}, v{MA+1} offset:{L_DONE}
        s_waitcnt vmcnt(0) lgkmcnt(0)
        v_cmp_ne_u32 vcc, 0, v{T2}
        s_cbranch_vccnz L_gotD
        v_cmp_eq_u32 vcc, s82, v{T1}
        s_bcnt1_i32_b64 s47, vcc
        s_cmp_ge_u32 s47, {ndone}
        s_cbranch_scc1 L_setD""")
        g.spin("L_pollD", 0)
        A(f"""L_setD:
        v_mov_b32 v{T1}, 1
        ds_write_b32 v{MA+1}, v{T1} offset:{L_FLAG}
        L_gotD:
        s_mov_b64 exec, -1
        v_mov_b32 v{T3}, s82""")
    if aprio != prio: A(f"s_setprio {prio}")
    if warm & 8: A("s_mov_b64 exec, 0\ns_branch WT_0\nL_wt_ret:\ns_mov_b64 exec, -1\ns_branch L_wt_go\n@chain WT 1 L_wt_ret\nL_wt_go:")
    A(f"""s_barrier
    ds_read_b128 v[{AX0}:{AX0+3}], v{MA+1} offset:{L_ST}
    ds_read_b128 v[{AX1}:{AX1+3}], v{MA+1} offset:{L_ST+16}""")
    g.stamp(9)
    for w in range(4):
        A(f"ds_read_b128 v[{W+8*w}:{W+8*w+3}], v{MA} offset:{L_ACC+3072*w}")
        A(f"ds_read_b128 v[{W+8*w+4}:{W+8*w+7}], v{MA} offset:{L_ACC+3072*w+640}")
    ms = [AX0, AX0 + 2, AX1, AX1 + 2]
    OD = W + 32
    A(f"""s_waitcnt lgkmcnt(8)
    v_max_f32 v{T0}, v{ms[0]}, v{ms[1]}
    v_max3_f32 v{T0}, v{T0}, v{ms[2]}, v{ms[3]}
    v_and_b32 v{T0}, s81, v{T0}""")
    for w in range(4):
        A(f"v_sub_f32 v{ms[w]}, v{ms[w]}, v{T0}")
    for w in range(4):
        A(f"v_exp_f32 v{ms[w]}, v{ms[w]}")
    A(f"s_nop 0\nv_mul_f32 v{T1}, v{ms[0]}, v{ms[0]+1}")
    for w in range(1, 4):
        A(f"v_fmac_f32 v{T1}, v{ms[w]}, v{ms[w]+1}")
    for w in range(4):
        A(f"s_waitcnt lgkmcnt({6-2*w})")
        for e in (0, 2):
            a_ = W + 8*w + e
            A(f"v_pk_add_f32 v[{a_}:{a_+1}], v[{a_}:{a_+1}], v[{a_+4}:{a_+5}]")
        for e in (0, 2):
            a_ = W + 8*w + e
            if w == 0:
                A(f"v_pk_mul_f32 v[{OD+e}:{OD+e+1}], v[{ms[0]}:{ms[0]+1}], v[{a_}:{a_+1}] op_sel_hi:[0,1]")
            else:
                A(f"v_pk_fma_f32 v[{OD+e}:{OD+e+1}], v[{ms[w]}:{ms[w]+1}], v[{a_}:{a_+1}], v[{OD+e}:{OD+e+1}] op_sel_hi:[0,1,1]")
    A(f"""v_cndmask_b32 v{OD}, v{OD}, v{T0}, s[50:51]
    v_cndmask_b32 v{OD+1}, v{OD+1}, v{T1}, s[50:51]""")
    g.tagput(range(OD, OD + 4), MA + 3)
    A(f"""s_bfm_b64 exec, 49, 0
    global_store_dwordx4 v{MA+2}, v[{OD}:{OD+3}], s[26:27]{'' if dual else ' sc1'}""")
    if sready: A(f"s_mov_b64 exec, 1\nglobal_store_dword v3, v{T3}, s[26:27]\ns_bfm_b64 exec, 49, 0")
    if dual and not nob & 2: A(f"global_store_dwordx4 v{MA+2}, v[{OD}:{OD+3}], s[90:91] sc1")
    A("s_mov_b64 exec, -1")
    g.stamp(10)
    A(f"""s_cmp_lg_u32 s83, 0
    s_cbranch_scc1 L_noy
    s_barrier""")
    for w in range(4):
        A(f"ds_read_b128 v[{W+4*w}:{W+4*w+3}], v{DD} offset:{L_YP+1024*w}")
    for w in range(1, 4):
        A(f"s_waitcnt lgkmcnt({3-w})")
        for e in (0, 2):
            A(f"v_pk_add_f32 v[{W+e}:{W+e+1}], v[{W+e}:{W+e+1}], v[{W+4*w+e}:{W+4*w+e+1}]")
    g.tagput(range(W, W + 4), MA + 3)
    A(f"""global_store_dwordx4 v2, v[{W}:{W+3}], s[26:27] sc1
    L_noy:""")
    g.stamp(11)
    A(f"""s_cmp_ge_u32 s59, 80
    s_cbranch_scc1 L_adone""")
    YS = [W + 16 + 12 * j for j in range(ysets)]

    def yissue(j):
        for k in range(3):
            A(f"global_load_dwordx4 v[{YS[j]+4*k}:{YS[j]+4*k+3}], v{YA+k}, s[26:27] sc1")
    if ymiss < 64:
        A("L_pollY1:")
        yissue(0)
        A("s_waitcnt vmcnt(0)")
        g.tagcheck(list(range(YS[0], YS[0] + 12)), T2)
        A(f"""s_cbranch_vccz L_gotY0
        s_bcnt1_i32_b64 s47, vcc
        s_cmp_le_u32 s47, {ymiss}
        s_cbranch_scc1 L_pollY2""")
        g.spin("L_pollY1", ysleep)
        A("L_pollY2:")
    for j in range(ysets - 1):
        yissue(j)
        A(f"s_sleep {ystag}")
    A("L_pollY:")
    for j in range(ysets):
        yissue((j + ysets - 1) % ysets)
        A(f"s_waitcnt vmcnt({3*(ysets-1)})")
        g.tagcheck(list(range(YS[j], YS[j] + 12)), T2)
        A(f"s_cbranch_vccz L_gotY{j}")
    g.spin("L_pollY", sleep if ysets == 1 else 0)
    Y0 = YS[0]
    for j in range(ysets - 1, -1, -1):
        A(f"L_gotY{j}:")
        for e in (0, 2):
            A(f"v_pk_add_f32 v[{T0+e}:{T0+e+1}], v[{YS[j]+e}:{YS[j]+e+1}], v[{YS[j]+4+e}:{YS[j]+5+e}]")
        for e in (0, 2):
            A(f"v_pk_add_f32 v[{T0+e}:{T0+e+1}], v[{T0+e}:{T0+e+1}], v[{YS[j]+8+e}:{YS[j]+9+e}]")
        if j > 0: A("s_branch L_gotY")
    A("L_gotY:")
    g.stamp(12)
    A("s_nop 1")
    red16(T0)
    g.rbf(T0)
    A(f"v_mul_f32 v{T0}, v{T0}, v{GV}")
    g.rbf(T0)
    A(f"""v_add_f32 v{T0}, v{T0}, v{XO}
    s_mov_b32 exec_lo, 0x000f000f
    s_mov_b32 exec_hi, 0x000f000f
    v_cvt_pk_bf16_f32 v{T0}, v{T0}, v{T0}
    global_store_short v{YA+3}, v{T0}, s[22:23]
    s_cmp_lg_u32 s59, 79
    s_cbranch_scc1 L_adone
    s_mov_b64 exec, 1
    v_mov_b32 v{T2}, {WS_E}
    v_mov_b32 v{T1}, s82
    global_store_dword v{T2}, v{T1}, s[26:27]{' sc1' if dbg else ''}
    L_adone:
    s_mov_b64 exec, -1""")
    if warm & 8: A("@end")
    g.stamp(13)
    g.stamp_flush(True)
    A("L_end:\ns_endpgm")
    if cpf:
        A(f".fill (16384 - (. - {KN}))/4, 4, 0xbf810000")

    g.L = [x for x in insert_pads(g.L, space) if x.strip() not in ("@nopad", "@pad")]
    nv = 176 if stamps else 168
    out = [HDR + f"; @launch grid=(256,1,1) block=(320,1,1) lds={LDS_BYTES + (32768 if wolate == 3 else 0)}",
           '.amdgcn_target "amdgcn-amd-amdhsa--gfx950"', ".text", f".globl {KN}", ".p2align 8",
           f".type {KN},@function", f"{KN}:"] + g.L + [
        '.section .rodata,"a"', ".p2align 6", f".amdhsa_kernel {KN}",
        f"  .amdhsa_next_free_vgpr {nv}", "  .amdhsa_next_free_sgpr 102", f"  .amdhsa_accum_offset {nv}",
        "  .amdhsa_group_segment_fixed_size 0", "  .amdhsa_kernarg_size 96", "  .amdhsa_user_sgpr_count 2",
        "  .amdhsa_user_sgpr_kernarg_segment_ptr 1", "  .amdhsa_system_sgpr_workgroup_id_x 1",
        "  .amdhsa_float_denorm_mode_32 3", ".end_amdhsa_kernel"]
    return "\n".join(out) + "\n"


if __name__ == "__main__":
    kw = {}
    for kv in sys.argv[2:]:
        k, v = kv.split("=")
        kw[k] = int(v) if v.lstrip("-").isdigit() else v.replace("+", " ")
    open(sys.argv[1], "w").write(gen(**kw))
```
